```python
import torch

def _softmax(x, axis=-1):
    return torch.softmax(x, dim=axis)
def _gelu(x):
    return torch.nn.functional.gelu(x, approximate="tanh")
def _silu(x):
    return torch.nn.functional.silu(x)
def _sigmoid(x):
    return torch.sigmoid(x)
def _layernorm(x, axis=-1, eps=1e-5):
    m = x.mean(dim=axis, keepdim=True)
    v = x.var(dim=axis, keepdim=True, unbiased=False)
    return (x - m) / torch.sqrt(v + eps)
def _scatter_add(tgt, idx, src, axis=0):
    return tgt.clone().index_add_(axis, idx, src)
def _segment_sum(src, seg, n):
    out = torch.zeros((n,) + src.shape[1:], dtype=src.dtype)
    return out.index_add_(0, seg, src)
def _pad(x, pw):
    flat = tuple(v for pair in reversed(pw) for v in pair)
    return torch.nn.functional.pad(x, flat)

kernel_name = 'gated_mix__compressed_kv_cla__geglu_ffn__prompt'

def setup_inputs():

    _w = (lambda a: (lambda t: t.to(torch.bfloat16) if t.is_floating_point() else t)(torch.as_tensor(a)))
    def _A_setup():
        B, H, Sq, Sk, D, M = 1, 32, 2048, 2048, 128, 1024
        Dc = 4 * D
        return {
            "x": _w((lambda *s: torch.randn(*s, dtype=torch.bfloat16) * 0.05)(B, Sq, M)),
            "c_kv": _w((lambda *s: torch.randn(*s, dtype=torch.bfloat16) * 0.4)(B, Sk, Dc)),
            "w_q": _w((lambda *s: torch.randn(*s, dtype=torch.bfloat16) * 6.4)(M, H, D) * (M ** -0.5)),
            "w_uk": _w((lambda *s: torch.randn(*s, dtype=torch.bfloat16) * 6.4)(Dc, H, D) * (Dc ** -0.5)),
            "w_uv": _w((lambda *s: torch.randn(*s, dtype=torch.bfloat16) * 0.4)(Dc, H, D) * (Dc ** -0.5)),
            "w_o": _w((lambda *s: torch.randn(*s, dtype=torch.bfloat16) * 0.4)(H, D, M) * ((H * D) ** -0.5)),
        }
    _A_in = _A_setup()

    def _B_setup():
        B, S, D, F = 1, 2048, 1024, 3584
        return {
            "x": _w((lambda *s: torch.randn(*s, dtype=torch.bfloat16) * 0.05)(B, S, D)),
            "w_gate": _w((lambda *s: torch.randn(*s, dtype=torch.bfloat16) * 0.05)(D, F)),
            "w_up": _w((lambda *s: torch.randn(*s, dtype=torch.bfloat16) * 0.05)(D, F)),
            "w_down": _w((lambda *s: torch.randn(*s, dtype=torch.bfloat16) * 0.05)(F, D)),
        }
    _B_in = _B_setup()

    return {
        "A_x": _A_in["x"],
        "A_c_kv": _A_in["c_kv"],
        "A_w_q": _A_in["w_q"],
        "A_w_uk": _A_in["w_uk"],
        "A_w_uv": _A_in["w_uv"],
        "A_w_o": _A_in["w_o"],
        "B_x": _B_in["x"],
        "B_w_gate": _B_in["w_gate"],
        "B_w_up": _B_in["w_up"],
        "B_w_down": _B_in["w_down"],
        "gate_w": _w((lambda *s: torch.randn(*s, dtype=torch.bfloat16) * 0.05)(1024) * 16.0),
    }

def reference(A_x, A_c_kv, A_w_q, A_w_uk, A_w_uv, A_w_o, B_x, B_w_gate, B_w_up, B_w_down, gate_w):
    def _A_ref(x, c_kv, w_q, w_uk, w_uv, w_o):
        B, Sq, M = x.shape[0], x.shape[1], x.shape[2]
        Sk = c_kv.shape[1]
        H, D = w_q.shape[1], w_q.shape[2]
        q = torch.einsum("bqm,mhd->bhqd", x, w_q)
        k = torch.einsum("bkc,chd->bhkd", c_kv, w_uk)
        v = torch.einsum("bkc,chd->bhkd", c_kv, w_uv)
        scores = torch.einsum("bhqd,bhkd->bhqk", q, k) * (D ** -0.5)
        off = Sk - Sq
        qi = torch.arange(Sq)[:, None]
        kj = torch.arange(Sk)[None, :]
        cmask = kj <= (qi + off)
        scores = torch.where(cmask[None, None], scores, -1e9)
        p = _softmax(scores, axis=-1)
        ctx = torch.einsum("bhqk,bhkd->bhqd", p, v)
        return torch.einsum("bhqd,hdm->bqm", ctx, w_o)

    def _B_ref(x, w_gate, w_up, w_down):
        return (_gelu(x @ w_gate) * (x @ w_up)) @ w_down

    x = A_x
    g = _sigmoid((x * gate_w).sum(-1, keepdims=True))
    a = _A_ref(x, A_c_kv, A_w_q, A_w_uk, A_w_uv, A_w_o)
    b = _B_ref(x, B_w_gate, B_w_up, B_w_down)
    return g * a + (1 - g) * b
```

```python
class Asm:
    def __init__(self):
        self.lines = []
        self._lab = 0
    def __call__(self, s):
        if isinstance(s, (list, tuple)):
            for x in s: self(x)
            return
        self.lines.append("    " + s)
    def label(self, l):
        self.lines.append(l + ":")
    def raw(self, s):
        self.lines.append(s)
    def newlabel(self, base="L"):
        self._lab += 1
        return f"{base}_{self._lab}"
    def text(self):
        return "\n".join(self.lines) + "\n"

def vr(b, n=1):
    return f"v{b}" if n == 1 else f"v[{b}:{b+n-1}]"
def ar(b, n=1):
    return f"a{b}" if n == 1 else f"a[{b}:{b+n-1}]"
def sr(b, n=1):
    return f"s{b}" if n == 1 else f"s[{b}:{b+n-1}]"

class RegAlloc:
    def __init__(self, start, limit, kind):
        self.next = start; self.limit = limit; self.kind = kind; self.names = {}
    def alloc(self, name, n=1, align=1):
        b = (self.next + align - 1) // align * align
        assert b + n <= self.limit, f"out of {self.kind} regs allocating {name}"
        self.next = b + n
        self.names[name] = (b, n)
        return b

def kernel_header(a, name):
    a.raw(".text")
    a.raw(f".globl {name}")
    a.raw(".p2align 8")
    a.raw(f".type {name},@function")
    a.label(name)

def kernel_desc(a, name, nvgpr_total, accum_offset, nsgpr=102, wg_y=False):
    a.raw('.section .rodata,"a"')
    a.raw(".p2align 6")
    a.raw(f".amdhsa_kernel {name}")
    a.raw(f"  .amdhsa_next_free_vgpr {nvgpr_total}")
    a.raw(f"  .amdhsa_next_free_sgpr {nsgpr}")
    a.raw(f"  .amdhsa_accum_offset {accum_offset}")
    a.raw("  .amdhsa_group_segment_fixed_size 0")
    a.raw("  .amdhsa_kernarg_size 112")
    a.raw("  .amdhsa_user_sgpr_count 2")
    a.raw("  .amdhsa_user_sgpr_kernarg_segment_ptr 1")
    a.raw("  .amdhsa_system_sgpr_workgroup_id_x 1")
    if wg_y: a.raw("  .amdhsa_system_sgpr_workgroup_id_y 1")
    a.raw("  .amdhsa_float_denorm_mode_32 3")
    a.raw("  .amdhsa_float_denorm_mode_16_64 3")
    a.raw(".end_amdhsa_kernel")

def merge(main, fill, start=0, end=None, per=None):
    n = len(main)
    end = n if end is None else end
    gaps = [[] for _ in range(n)]
    m = len(fill)
    span = end - start
    for i, f in enumerate(fill):
        g = start + (i * span) // m if per is None else start + i // per
        g = min(g, n - 1)
        gaps[g].append(f)
    out = []
    for i in range(n):
        out.append(main[i])
        for f in gaps[i]:
            if isinstance(f, (list, tuple)): out.extend(f)
            else: out.append(f)
    return out
```

```python
from asmb import *
from gemm_gen import GemmCfg, GemmCore

class GemmCore2(GemmCore):
    NWB = 4
    def __init__(self, a, cfg, V, S, acc_in_agpr):
        assert cfg.ms == 16 and cfg.S == 2
        self.a, self.c, self.V, self.S = a, cfg, V, S
        c = cfg
        self.acc_in_agpr = acc_in_agpr
        nacc = c.TI * c.TJ * c.AR
        self.accbase = 0 if acc_in_agpr else V.alloc("acc", nacc, 4)
        self.xf = [[[V.alloc(f"xf{b}{j}{k}", 4, 4) for k in range(2)] for j in range(c.TJ)] for b in range(2)]
        self.wf = [[V.alloc(f"wf{b}{k}", 4, 4) for k in range(2)] for b in range(self.NWB)]
        self.vXrd = [V.alloc(f"vXrd{s}") for s in range(c.NSUB)] if not c.native_a else [V.alloc("vXrd")]
        self.vWrd = [V.alloc(f"vWrd{p}") for p in range(min(c.BPP, c.TI))]
        self.vAsrc = [V.alloc(f"vAsrc{p}") for p in range(2)] if not c.native_a else [V.alloc("vAsrc")]
        self.nB = 2 if not c.native_a else 1
        self.vBsrc = [V.alloc(f"vBsrc{p}") for p in range(self.nB)]
        self.sA = S.alloc("srdA", 4, 4)
        self.sB = S.alloc("srdB", 4, 4)
        self.soffA = [S.alloc(f"soffA{q}") for q in range(c.PA)]
        self.soffB = [S.alloc(f"soffB{q}") for q in range(c.PB)]
        self.sM0A = S.alloc("m0A"); self.sM0B = S.alloc("m0B")
        self.sKA = S.alloc("kstepA"); self.sKB = S.alloc("kstepB")
        self.sLoop = S.alloc("loop")
        assert c.TI % self.NWB == 0 and c.TI >= 4

    def row_mfmas(self, t, i, zero=False):
        c = self.c
        out = []
        for j in range(c.TJ):
            for k in range(2):
                w, x = vr(self.wf[i % self.NWB][k], 4), vr(self.xf[t % 2][j][k], 4)
                A, B = (x, w) if c.swap else (w, x)
                C = "0" if (zero and k == 0) else self.acc(i, j)
                out.append(f"v_mfma_f32_16x16x32_bf16 {self.acc(i,j)}, {A}, {B}, {C}")
        return out
    def xreads(self, t):
        c = self.c
        out = []
        for j in range(c.TJ):
            for k in range(2):
                if c.native_a:
                    off = c.A_BASE + (t % 2) * c.A_STAGE + (j * 2 + k) * 1024
                    out.append(f"ds_read_b128 {vr(self.xf[t%2][j][k],4)}, {vr(self.vXrd[0])} offset:{off}")
                else:
                    off = c.A_BASE + (t % 2) * c.A_STAGE + j * 16 * 128
                    out.append(f"ds_read_b128 {vr(self.xf[t%2][j][k],4)}, {vr(self.vXrd[k])} offset:{off}")
        return out
    def wreads(self, t, i):
        c = self.c
        out = []
        for k in range(2):
            for half in range(2):
                hoff = half * (16 * 128 if c.native_a else 512)
                off = (t % 2) * c.B_STAGE + (i // c.BPP) * 8192 + k * 32 * 128 + hoff
                assert off < 65536
                out.append(f"ds_read_b64_tr_b16 {vr(self.wf[i%self.NWB][k]+2*half,2)}, {vr(self.vWrd[i%c.BPP])} offset:{off}")
        return out

    def step(self, t, dma_carry, read_x_next, read_w_next, dmaW, dmaX, zero=False, barrier=True):
        a, c = self.a, self.c
        TI = c.TI
        nm = 2 * c.TJ
        xr = self.xreads(t + 1) if read_x_next else []
        nrows_x = TI - 2
        xper = [len(xr) * (r + 1) // nrows_x - len(xr) * r // nrows_x for r in range(nrows_x)]
        carry = list(dma_carry)
        newd = []
        nrd_hist = getattr(self, "_nrd_hist", [(0, 0), (0, 0)])
        for i in range(TI):
            w2, x2 = nrd_hist[-2]; w1, x1 = nrd_hist[-1]
            if i == TI - 2:
                if barrier:
                    a("s_waitcnt vmcnt(0) lgkmcnt(0)")
                    a("s_barrier")
                else:
                    a("s_waitcnt lgkmcnt(0)")
                if dmaW: newd += self.dmaB(t % 2)
                if dmaX: newd += self.dmaA((t + 1) % 2)
                carry = newd
            elif i == TI - 1:
                pass
            else:
                a(f"s_waitcnt lgkmcnt({min(15, x2 + w1 + x1)})")
            fill = []
            if i + 2 < TI: wr = self.wreads(t, i + 2)
            elif read_w_next: wr = self.wreads(t + 1, i + 2 - TI)
            else: wr = []
            xs = []
            if i < nrows_x:
                xs = xr[:xper[i]]; xr = xr[xper[i]:]
            nd = min(len(carry), 5)
            ds = carry[:nd]; carry[:] = carry[nd:]
            rd = wr + xs
            fill = self._mix1(rd, ds)
            a(merge(self.row_mfmas(t, i, zero), fill, 0, nm - 2))
            nrd_hist = [nrd_hist[-1], (len(wr), len(xs))]
        self._nrd_hist = nrd_hist
        return carry

    def _mix1(self, rd, dm):
        out = []
        rd = list(rd); dm = list(dm)
        while rd or dm:
            if rd: out.append(rd.pop(0))
            if dm: out.append(dm.pop(0))
        return out

    def prologue_dma(self):
        a = self.a
        for g in self.dmaA(0): a(g)
        for g in self.dmaB(0): a(g)
        for g in self.dmaA(1): a(g)
        for g in self.dmaB(1): a(g)

    def mainloop(self, s_loopcount, label, st=None):
        a, c = self.a, self.c
        a(f"s_waitcnt vmcnt({c.PA + c.PB})")
        a("s_barrier")
        a(self.xreads(0)); a(self.wreads(0, 0)); a(self.wreads(0, 1))
        a(f"s_waitcnt vmcnt({c.PB}) lgkmcnt(0)")
        a("s_barrier")
        if st: st.stamp(1); a("s_waitcnt lgkmcnt(0)")
        self._nrd_hist = [(0, 0), (0, 0)]
        carry = self.dmaA(0)
        carry = self.step(0, carry, True, True, True, True, zero=True)
        saved = ([list(g) for g in carry], list(self._nrd_hist))
        a(f"s_cmp_eq_u32 {sr(s_loopcount)}, 0")
        a(f"s_cbranch_scc1 {label}_tail")
        a.label(label)
        carry = self.step(1, carry, True, True, True, True)
        carry = self.step(2, carry, True, True, True, True)
        assert [list(g) for g in carry] == saved[0] and self._nrd_hist == saved[1]
        a(f"s_sub_u32 {sr(s_loopcount)}, {sr(s_loopcount)}, 1")
        a(f"s_cmp_lg_u32 {sr(s_loopcount)}, 0")
        a(f"s_cbranch_scc1 {label}")
        a.label(label + "_tail")
        carry = self.step(1, carry, True, True, True, False)
        carry = self.step(2, carry, True, True, False, False)
        carry = self.step(3, carry, False, False, False, False, barrier=False)
        assert not carry
```

```python
from asmb import *

class GemmCfg:
    def __init__(self, BT=256, BN=256, wt=2, wn=2, native_a=False, swap=False, stages=2, ms=32,
                 nodma=False, noread=False):
        self.BT, self.BN, self.wt, self.wn = BT, BN, wt, wn
        self.NW = wt * wn
        self.WT, self.WN = BT // wt, BN // wn
        self.ms = ms
        self.KS = 16 if ms == 32 else 32
        self.NSUB = 64 // self.KS
        self.AR = 16 if ms == 32 else 4
        self.TJ, self.TI = self.WT // ms, self.WN // ms
        self.native_a = native_a
        self.swap = swap
        self.S = stages
        self.PA = BT // 8 // self.NW
        self.PB = (BN // 64) * 8 // self.NW
        self.A_STAGE = BT * 128
        self.B_STAGE = BN * 128
        self.LDS = self.S * (self.A_STAGE + self.B_STAGE)
        self.A_BASE = 0
        self.B_BASE = self.S * self.A_STAGE
        self.nodma, self.noread = nodma, noread
        self.BPP = 64 // ms

class GemmCore:
    def __init__(self, a, cfg, V, S, acc_in_agpr):
        self.a, self.c, self.V, self.S = a, cfg, V, S
        c = cfg
        self.acc_in_agpr = acc_in_agpr
        nacc = c.TI * c.TJ * c.AR
        self.accbase = 0 if acc_in_agpr else V.alloc("acc", nacc, 4)
        self.xf = [[V.alloc(f"xf{b}{j}", 4, 4) for j in range(c.TJ)] for b in range(2)]
        self.wf = [[V.alloc(f"wf{b}{i}", 4, 4) for i in range(c.TI)] for b in range(2)]
        self.vXrd = [V.alloc(f"vXrd{s}") for s in range(c.NSUB)] if not c.native_a else [V.alloc("vXrd")]
        self.vWrd = [V.alloc(f"vWrd{p}") for p in range(min(c.BPP, c.TI))]
        self.vAsrc = [V.alloc(f"vAsrc{p}") for p in range(2)] if not c.native_a else [V.alloc("vAsrc")]
        self.nB = 2 if (c.ms == 16 and not c.native_a) else 1
        self.vBsrc = [V.alloc(f"vBsrc{p}") for p in range(self.nB)]
        self.sA = S.alloc("srdA", 4, 4)
        self.sB = S.alloc("srdB", 4, 4)
        self.soffA = [S.alloc(f"soffA{q}") for q in range(c.PA)]
        self.soffB = [S.alloc(f"soffB{q}") for q in range(c.PB)]
        self.sM0A = S.alloc("m0A")
        self.sM0B = S.alloc("m0B")
        self.sKA = S.alloc("kstepA")
        self.sKB = S.alloc("kstepB")
        self.sLoop = S.alloc("loop")

    def acc(self, i, j):
        idx = (i * self.c.TJ + j) * self.c.AR
        return ar(idx, self.c.AR) if self.acc_in_agpr else vr(self.accbase + idx, self.c.AR)
    def accreg(self, i, j, r):
        idx = (i * self.c.TJ + j) * self.c.AR + r
        return ar(idx) if self.acc_in_agpr else vr(self.accbase + idx)

    def mfmas(self, buf, zero=False):
        c = self.c
        op = "v_mfma_f32_32x32x16_bf16" if c.ms == 32 else "v_mfma_f32_16x16x32_bf16"
        out = []
        for i in range(c.TI):
            for j in range(c.TJ):
                w, x = vr(self.wf[buf][i], 4), vr(self.xf[buf][j], 4)
                A, B = (x, w) if c.swap else (w, x)
                C = "0" if zero else self.acc(i, j)
                out.append(f"{op} {self.acc(i,j)}, {A}, {B}, {C}")
        return out

    def reads(self, stage, s, buf):
        c = self.c
        if c.noread: return []
        def xr(j):
            if c.native_a:
                off = c.A_BASE + stage * c.A_STAGE + (j * c.NSUB + s) * 1024
                return f"ds_read_b128 {vr(self.xf[buf][j],4)}, {vr(self.vXrd[0])} offset:{off}"
            off = c.A_BASE + stage * c.A_STAGE + j * c.ms * 128
            return f"ds_read_b128 {vr(self.xf[buf][j],4)}, {vr(self.vXrd[s])} offset:{off}"
        def wr(i, half):
            hoff = half * ((c.KS // 2) * 128 if c.native_a else 512)
            off = stage * c.B_STAGE + (i // c.BPP) * 8192 + s * c.KS * 128 + hoff
            assert off < 65536
            return f"ds_read_b64_tr_b16 {vr(self.wf[buf][i]+2*half,2)}, {vr(self.vWrd[i%c.BPP])} offset:{off}"
        out = [xr(0), wr(0, 0), wr(0, 1)]
        out += [xr(j) for j in range(1, c.TJ)]
        for i in range(1, c.TI):
            out += [wr(i, 0), wr(i, 1)]
        return out

    def dmaA(self, stage):
        c = self.c
        out = []
        for q in range(c.PA):
            grp = []
            if q % 4 == 0:
                grp.append(f"s_add_u32 m0, {sr(self.sM0A)}, {stage*c.A_STAGE + (q//4)*4096}")
                grp.append("s_nop 0")
            va = self.vAsrc[0] if c.native_a else self.vAsrc[q % 2]
            grp.append(f"buffer_load_dwordx4 {vr(va)}, {sr(self.sA,4)}, {sr(self.soffA[q])} offen offset:{(q%4)*1024} lds")
            out.append(grp)
        out.append([f"v_add_u32 {vr(v)}, {sr(self.sKA)}, {vr(v)}" for v in self.vAsrc])
        return out
    def dmaB(self, stage):
        c = self.c
        out = []
        for q in range(c.PB):
            grp = []
            if q % 4 == 0:
                grp.append(f"s_add_u32 m0, {sr(self.sM0B)}, {stage*c.B_STAGE + (q//4)*4096}")
                grp.append("s_nop 0")
            grp.append(f"buffer_load_dwordx4 {vr(self.vBsrc[q % self.nB])}, {sr(self.sB,4)}, {sr(self.soffB[q])} offen offset:{(q%4)*1024} lds")
            out.append(grp)
        out.append([f"v_add_u32 {vr(v)}, {sr(self.sKB)}, {vr(v)}" for v in self.vBsrc])
        return out

    def setup_lane_consts(self, vlane, s_wave, s_wt, s_wn, vt):
        a, c = self.a, self.c
        t0, t1, t2, t3 = vt[:4]
        lgms = 5 if c.ms == 32 else 4
        if c.native_a:
            a(f"v_lshlrev_b32 {vr(t0)}, 4, {vr(vlane)}")
            a(f"s_mul_i32 s3, {sr(s_wt)}, {c.WT*128}")
            a(f"v_add_u32 {vr(self.vXrd[0])}, s3, {vr(t0)}")
        else:
            a(f"v_and_b32 {vr(t0)}, {c.ms-1}, {vr(vlane)}")
            a(f"v_lshrrev_b32 {vr(t1)}, {lgms}, {vr(vlane)}")
            a(f"v_lshrrev_b32 {vr(t2)}, 1, {vr(t0)}")
            a(f"v_and_b32 {vr(t2)}, 7, {vr(t2)}")
            a(f"v_lshlrev_b32 {vr(t0)}, 7, {vr(t0)}")
            a(f"s_mul_i32 s3, {sr(s_wt)}, {c.WT*128}")
            a(f"v_add_u32 {vr(t0)}, s3, {vr(t0)}")
            for s in range(c.NSUB):
                a(f"v_add_u32 {vr(t3)}, {(c.KS//8)*s}, {vr(t1)}")
                a(f"v_xor_b32 {vr(t3)}, {vr(t3)}, {vr(t2)}")
                a(f"v_lshl_add_u32 {vr(self.vXrd[s])}, {vr(t3)}, 4, {vr(t0)}")
        a(f"v_lshrrev_b32 {vr(t0)}, {lgms}, {vr(vlane)}")
        a(f"v_lshlrev_b32 {vr(t0)}, {2 if c.native_a else 3}, {vr(t0)}")
        a(f"v_bfe_u32 {vr(t1)}, {vr(vlane)}, 2, 2")
        a(f"v_add_u32 {vr(t0)}, {vr(t0)}, {vr(t1)}")
        if c.ms == 32:
            a(f"v_bfe_u32 {vr(t1)}, {vr(t0)}, 1, 1")
            a(f"v_lshlrev_b32 {vr(t1)}, 6, {vr(t1)}")
        elif c.native_a:
            a(f"v_bfe_u32 {vr(t1)}, {vr(t0)}, 1, 2")
            a(f"v_lshlrev_b32 {vr(t1)}, 5, {vr(t1)}")
        else:
            a(f"v_bfe_u32 {vr(t1)}, {vr(t0)}, 1, 1")
            a(f"v_lshlrev_b32 {vr(t1)}, 5, {vr(t1)}")
            a(f"v_bfe_u32 {vr(t2)}, {vr(t0)}, 3, 1")
            a(f"v_lshl_add_u32 {vr(t1)}, {vr(t2)}, 6, {vr(t1)}")
        a(f"v_lshlrev_b32 {vr(t0)}, 7, {vr(t0)}")
        if c.ms == 32:
            a(f"v_bfe_u32 {vr(t2)}, {vr(vlane)}, 4, 1")
            a(f"v_lshl_add_u32 {vr(t0)}, {vr(t2)}, 5, {vr(t0)}")
        a(f"v_and_b32 {vr(t2)}, 3, {vr(vlane)}")
        a(f"v_lshl_add_u32 {vr(t0)}, {vr(t2)}, 3, {vr(t0)}")
        a(f"s_mul_i32 s3, {sr(s_wn)}, {c.WN*2}")
        a(f"s_lshr_b32 s4, s3, 7")
        a(f"s_lshl_b32 s4, s4, 13")
        a(f"s_add_u32 s4, s4, {c.B_BASE}")
        a(f"s_and_b32 s3, s3, 127")
        a(f"v_add_u32 {vr(t0)}, s4, {vr(t0)}")
        a(f"v_xor_b32 {vr(t1)}, s3, {vr(t1)}")
        for p in range(len(self.vWrd)):
            a(f"v_xor_b32 {vr(t2)}, {p*c.ms*2}, {vr(t1)}")
            a(f"v_add_u32 {vr(self.vWrd[p])}, {vr(t0)}, {vr(t2)}")
        a(f"s_mul_i32 {sr(self.sM0A)}, {sr(s_wave)}, {c.PA*1024}")
        a(f"s_add_u32 {sr(self.sM0A)}, {sr(self.sM0A)}, {c.A_BASE}")
        a(f"s_mul_i32 {sr(self.sM0B)}, {sr(s_wave)}, {c.PB*1024}")
        a(f"s_add_u32 {sr(self.sM0B)}, {sr(self.sM0B)}, {c.B_BASE}")

    def setup_src(self, vlane, s_wave, s_abase, s_lda, s_bbase, s_ldw, vt):
        a, c = self.a, self.c
        t0, t1, t2, t3 = vt[:4]
        if c.native_a:
            NS = c.NSUB
            assert c.PA % NS == 0 or NS % c.PA == 0
            a(f"s_mul_i32 s3, {sr(s_wave)}, {c.PA}")
            a(f"s_lshr_b32 s4, s3, {NS.bit_length()-1}")
            a(f"s_mul_i32 s4, s4, {sr(s_lda)}")
            a(f"s_and_b32 s3, s3, {NS-1}")
            a(f"s_lshl_b32 s3, s3, 10")
            a(f"s_add_u32 s3, s3, s4")
            a(f"s_add_u32 s3, s3, {sr(s_abase)}")
            a(f"v_lshlrev_b32 {vr(t0)}, 4, {vr(vlane)}")
            a(f"v_add_u32 {vr(self.vAsrc[0])}, s3, {vr(t0)}")
            for q in range(c.PA):
                a(f"s_mul_i32 {sr(self.soffA[q])}, {sr(s_lda)}, {q//NS}")
                adj = (q % NS) * 1024 - (q % 4) * 1024
                if adj: a(f"s_sub_u32 {sr(self.soffA[q])}, {sr(self.soffA[q])}, {-adj}")
            a(f"s_mov_b32 {sr(self.sKA)}, {NS*1024}")
        else:
            a(f"v_lshrrev_b32 {vr(t0)}, 3, {vr(vlane)}")
            a(f"s_mul_i32 s3, {sr(s_wave)}, {c.PA*8}")
            a(f"v_add_u32 {vr(t0)}, s3, {vr(t0)}")
            a(f"v_mul_lo_u32 {vr(t0)}, {vr(t0)}, {sr(s_lda)}")
            a(f"v_add_u32 {vr(t0)}, {sr(s_abase)}, {vr(t0)}")
            a(f"v_and_b32 {vr(t1)}, 7, {vr(vlane)}")
            a(f"v_lshrrev_b32 {vr(t2)}, 4, {vr(vlane)}")
            assert c.PA % 2 == 0
            a(f"v_xor_b32 {vr(t1)}, {vr(t1)}, {vr(t2)}")
            a(f"v_lshl_add_u32 {vr(self.vAsrc[0])}, {vr(t1)}, 4, {vr(t0)}")
            a(f"v_xor_b32 {vr(t1)}, 4, {vr(t1)}")
            a(f"v_lshl_add_u32 {vr(self.vAsrc[1])}, {vr(t1)}, 4, {vr(t0)}")
            for q in range(c.PA):
                a(f"s_mul_i32 {sr(self.soffA[q])}, {sr(s_lda)}, {8*q}")
                if q % 4: a(f"s_sub_u32 {sr(self.soffA[q])}, {sr(self.soffA[q])}, {(q%4)*1024}")
            a(f"s_mov_b32 {sr(self.sKA)}, 128")
        a(f"v_lshrrev_b32 {vr(t0)}, 3, {vr(vlane)}")
        if c.PB < 8:
            assert c.PB % 2 == 0
            a(f"s_mul_i32 s3, {sr(s_wave)}, {c.PB}")
            a(f"s_and_b32 s3, s3, 7")
            a(f"s_lshl_b32 s3, s3, 3")
            a(f"v_add_u32 {vr(t0)}, s3, {vr(t0)}")
        a(f"v_mul_lo_u32 {vr(t0)}, {vr(t0)}, {sr(s_ldw)}")
        a(f"v_add_u32 {vr(t0)}, {sr(s_bbase)}, {vr(t0)}")
        a(f"v_and_b32 {vr(t1)}, 7, {vr(vlane)}")
        if c.ms == 32:
            a(f"v_bfe_u32 {vr(t2)}, {vr(vlane)}, 4, 1")
            a(f"v_lshlrev_b32 {vr(t2)}, 2, {vr(t2)}")
        elif c.native_a:
            a(f"v_bfe_u32 {vr(t2)}, {vr(vlane)}, 4, 2")
            a(f"v_lshlrev_b32 {vr(t2)}, 1, {vr(t2)}")
        else:
            a(f"v_bfe_u32 {vr(t2)}, {vr(vlane)}, 4, 1")
            a(f"v_lshlrev_b32 {vr(t2)}, 1, {vr(t2)}")
        a(f"v_xor_b32 {vr(t1)}, {vr(t1)}, {vr(t2)}")
        a(f"v_lshl_add_u32 {vr(self.vBsrc[0])}, {vr(t1)}, 4, {vr(t0)}")
        if self.nB == 2:
            a(f"v_xor_b32 {vr(t1)}, 4, {vr(t1)}")
            a(f"v_lshl_add_u32 {vr(self.vBsrc[1])}, {vr(t1)}, 4, {vr(t0)}")
        assert c.PB <= 8
        for q in range(c.PB):
            a(f"s_mul_i32 {sr(self.soffB[q])}, {sr(s_ldw)}, {8*q}")
            if q % 4: a(f"s_sub_u32 {sr(self.soffB[q])}, {sr(self.soffB[q])}, {(q%4)*1024}")
        a(f"s_lshl_b32 {sr(self.sKB)}, {sr(s_ldw)}, 6")

    def iteration(self, t, prev_last, do_dma, barrier_end, zero_first=False):
        a, c = self.a, self.c
        S, NS = c.S, c.NSUB
        st = t % S
        dst = (t - 1) % S
        n = c.TI * c.TJ
        do_dma = do_dma and not c.nodma
        dA = self.dmaA(dst) if do_dma else []
        dB = self.dmaB(dst) if do_dma else []
        endgap = n - max(2, n // 8)
        rd = self.reads(st, 0, 0)
        first_d = dB if NS > 2 else dB + dA
        if prev_last:
            a(merge(self.mfmas((NS - 1) % 2), self._mix(rd, first_d), 0, endgap))
        else:
            a([x for f in self._mix(rd, first_d) for x in (f if isinstance(f, list) else [f])])
        for s in range(NS - 1):
            a("s_waitcnt lgkmcnt(0)")
            rd = self.reads(st, s + 1, (s + 1) % 2)
            fill = self._mix(rd, dA if (s == 0 and NS > 2) else [])
            a(merge(self.mfmas(s % 2, zero=(zero_first and s == 0)), fill, 0, endgap))
        if barrier_end:
            a(f"s_waitcnt vmcnt({(S-2)*(c.PA+c.PB)}) lgkmcnt(0)")
            a("s_barrier")
        else:
            a("s_waitcnt lgkmcnt(0)")

    def _mix(self, rd, dm):
        out = []
        rd = list(rd); dm = list(dm)
        while rd or dm:
            if rd: out.append(rd.pop(0))
            if rd: out.append(rd.pop(0))
            if dm: out.append(dm.pop(0))
        return out

    def prologue_dma(self):
        a, c = self.a, self.c
        for st in range(c.S):
            for g in self.dmaA(st): a(g)
            for g in self.dmaB(st): a(g)

    def mainloop(self, s_loopcount, label):
        a, c = self.a, self.c
        S = c.S
        a(f"s_waitcnt vmcnt({(S-1)*(c.PA+c.PB)})")
        a("s_barrier")
        self.iteration(0, False, False, True, zero_first=True)
        a.label(label)
        for t in range(1, S + 1):
            self.iteration(t, True, True, True)
        a(f"s_sub_u32 {sr(s_loopcount)}, {sr(s_loopcount)}, 1")
        a(f"s_cmp_lg_u32 {sr(s_loopcount)}, 0")
        a(f"s_cbranch_scc1 {label}")
        for k in range(S - 1):
            self.iteration(1 + k, True, False, False)
            if k != S - 2:
                a("s_waitcnt vmcnt(0)")
                a("s_barrier")
        a(self.mfmas((c.NSUB - 1) % 2))
```

```python
from asmb import *
from gemm_gen import GemmCfg
from gemm2 import GemmCore2
import math, struct

def f32(x): return "0x%08x" % struct.unpack("<I", struct.pack("<f", x))[0]

WS_Q, WS_K, WS_V, WS_Z, WS_G = 0, 16 << 20, 32 << 20, 48 << 20, 80 << 20
Z_KB = 240
QSCALE = math.log2(math.e) / math.sqrt(128.0)

def srd(a, s, lo, hi, nbytes, off=0):
    if off:
        a(f"s_add_u32 {sr(s)}, {sr(lo)}, {off}")
        a(f"s_addc_u32 {sr(s+1)}, {sr(hi)}, 0")
    else:
        a(f"s_mov_b32 {sr(s)}, {sr(lo)}")
        a(f"s_mov_b32 {sr(s+1)}, {sr(hi)}")
    a(f"s_mov_b32 {sr(s+2)}, {nbytes}")
    a(f"s_mov_b32 {sr(s+3)}, 0x20000")

def gen_k1(a, name="k1_kernel"):
    cfgN = GemmCfg(256, 256, 2, 2, native_a=False, swap=False, stages=2, ms=16)
    cfgS = GemmCfg(256, 256, 2, 2, native_a=False, swap=True, stages=2, ms=16)
    kernel_header(a, name)
    V = RegAlloc(1, 256, "v"); S = RegAlloc(36, 100, "s")
    core = GemmCore2(a, cfgN, V, S, True)
    vlane = V.alloc("lane"); vt = [V.alloc(f"t{i}") for i in range(4)]
    vout = V.alloc("vout")
    s_wave = S.alloc("wave"); s_wt = S.alloc("wt"); s_wn = S.alloc("wn")
    s_tm = S.alloc("tm"); s_col = S.alloc("col"); s_type = S.alloc("type")
    s_ab = S.alloc("ab"); s_lda = S.alloc("lda"); s_bb = S.alloc("bb"); s_ldw = S.alloc("ldw")
    s_scale = S.alloc("scale")
    sO = S.alloc("srdO", 4, 4)
    a("s_cmp_ge_u32 s2, 640")
    a(f"s_cbranch_scc1 {name}_end")
    a("s_load_dwordx16 s[8:23], s[0:1], 0")
    a("s_load_dwordx8 s[24:31], s[0:1], 64")
    a("s_load_dwordx4 s[32:35], s[0:1], 96")
    a(f"v_and_b32 {vr(vlane)}, 63, v0")
    a(f"v_lshrrev_b32 {vr(vt[0])}, 6, v0")
    a("s_nop 0")
    a(f"v_readfirstlane_b32 {sr(s_wave)}, {vr(vt[0])}")
    a("s_nop 3")
    a(f"s_lshr_b32 {sr(s_wt)}, {sr(s_wave)}, 1")
    a(f"s_and_b32 {sr(s_wn)}, {sr(s_wave)}, 1")
    a("s_and_b32 s3, s2, 7")
    a("s_lshr_b32 s4, s2, 3")
    a(f"s_and_b32 {sr(s_tm)}, s4, 7")
    a("s_lshr_b32 s4, s4, 3")
    a("s_mul_i32 s5, s3, 6")
    a("s_mul_i32 s6, s3, 5")
    a("s_add_u32 s6, s6, 4")
    a("s_cmp_lt_u32 s3, 4")
    a("s_cselect_b32 s5, s5, s6")
    a("s_cselect_b32 s7, 6, 5")
    a(f"s_mul_i32 {sr(s_col)}, s3, 3")
    a("s_mul_i32 s6, s3, 5")
    a("s_sub_u32 s6, s6, 8")
    a("s_cmp_lt_u32 s3, 4")
    a(f"s_cselect_b32 s6, {sr(s_col)}, s6")
    a("s_cmp_lt_u32 s4, s7")
    a(f"s_cbranch_scc1 {name}_big")
    a("s_sub_u32 s4, s4, s7")
    a("s_cmp_lt_u32 s3, 4")
    a("s_cselect_b32 s7, 3, 5")
    a("s_cmp_ge_u32 s4, s7")
    a(f"s_cbranch_scc1 {name}_g")
    a("s_add_u32 s4, s4, s6")
    a(f"s_lshr_b32 {sr(s_col)}, s4, 1")
    a(f"s_and_b32 {sr(s_type)}, s4, 1")
    a(f"s_add_u32 {sr(s_type)}, {sr(s_type)}, 1")
    a("s_waitcnt lgkmcnt(0)")
    srd(a, core.sA, 10, 11, 2048 * 512 * 2)
    a(f"s_cmp_eq_u32 {sr(s_type)}, 1")
    a("s_cselect_b32 s4, s14, s16")
    a("s_cselect_b32 s5, s15, s17")
    srd(a, core.sB, 4, 5, 512 * 4096 * 2)
    a(f"s_lshl_b32 s4, {sr(s_type)}, 24")
    a(f"s_add_u32 {sr(sO)}, s34, s4"); a(f"s_addc_u32 {sr(sO+1)}, s35, 0")
    a(f"s_mov_b32 {sr(sO+2)}, {16<<20}"); a(f"s_mov_b32 {sr(sO+3)}, 0x20000")
    a(f"s_mov_b32 {sr(s_lda)}, 1024")
    a(f"s_mov_b32 {sr(s_ldw)}, 8192")
    a(f"s_mov_b32 {sr(core.sLoop)}, {(8-4)//2}")
    a(f"s_mov_b32 {sr(s_scale)}, 1.0")
    a(f"s_lshl_b32 {sr(s_bb)}, {sr(s_col)}, 9")
    a(f"s_lshl_b32 s3, {sr(s_wave)}, 7")
    a(f"s_add_u32 {sr(s_bb)}, {sr(s_bb)}, s3")
    a(f"s_branch {name}_common")
    a.label(f"{name}_big")
    a("s_add_u32 s4, s4, s5")
    a("s_mul_i32 s5, s4, 373")
    a("s_lshr_b32 s5, s5, 12")
    a("s_mul_i32 s6, s5, 11")
    a("s_sub_u32 s6, s4, s6")
    a("s_waitcnt lgkmcnt(0)")
    srd(a, core.sA, 8, 9, 2048 * 1024 * 2)
    a(f"s_mov_b32 {sr(s_lda)}, 2048")
    a(f"s_mov_b32 {sr(core.sLoop)}, {(16-4)//2}")
    a("s_cmp_lt_u32 s6, 4")
    a(f"s_cbranch_scc0 {name}_gu")
    a(f"s_lshl_b32 {sr(s_col)}, s5, 2")
    a(f"s_add_u32 {sr(s_col)}, {sr(s_col)}, s6")
    a(f"s_mov_b32 {sr(s_type)}, 0")
    srd(a, core.sB, 12, 13, 1024 * 4096 * 2)
    srd(a, sO, 34, 35, 16 << 20, WS_Q)
    a(f"s_mov_b32 {sr(s_ldw)}, 8192")
    a(f"s_mov_b32 {sr(s_scale)}, {f32(QSCALE)}")
    a(f"s_lshl_b32 {sr(s_bb)}, {sr(s_col)}, 9")
    a(f"s_lshl_b32 s3, {sr(s_wave)}, 7")
    a(f"s_add_u32 {sr(s_bb)}, {sr(s_bb)}, s3")
    a(f"s_branch {name}_common")
    a.label(f"{name}_gu")
    a(f"s_mul_i32 {sr(s_col)}, s5, 7")
    a(f"s_add_u32 {sr(s_col)}, {sr(s_col)}, s6")
    a(f"s_sub_u32 {sr(s_col)}, {sr(s_col)}, 4")
    a(f"s_mov_b32 {sr(s_type)}, 3")
    a(f"s_and_b32 s3, {sr(s_wave)}, 1")
    a("s_cmp_eq_u32 s3, 0")
    a("s_cselect_b32 s4, s22, s24")
    a("s_cselect_b32 s5, s23, s25")
    srd(a, core.sB, 4, 5, 1024 * 3584 * 2)
    srd(a, sO, 34, 35, 128 * Z_KB * 1024, WS_Z)
    a(f"s_mov_b32 {sr(s_ldw)}, 7168")
    a(f"s_mov_b32 {sr(s_scale)}, 1.0")
    a(f"s_lshl_b32 {sr(s_bb)}, {sr(s_col)}, 8")
    a(f"s_lshr_b32 s3, {sr(s_wave)}, 1")
    a("s_lshl_b32 s3, s3, 7")
    a(f"s_add_u32 {sr(s_bb)}, {sr(s_bb)}, s3")
    a.label(f"{name}_common")
    a(f"s_lshl_b32 s3, {sr(s_tm)}, 8")
    a(f"s_mul_i32 {sr(s_ab)}, s3, {sr(s_lda)}")
    core.setup_src(vlane, s_wave, s_ab, s_lda, s_bb, s_ldw, vt)
    core.setup_lane_consts(vlane, s_wave, s_wt, s_wn, vt)
    core.prologue_dma()
    a(f"v_lshlrev_b32 {vr(vout)}, 4, {vr(vlane)}")
    a(f"s_cmp_eq_u32 {sr(s_type)}, 2")
    a(f"s_cbranch_scc1 {name}_vpath")
    core.mainloop(core.sLoop, f"{name}_loopN")
    T = core.xf[0][0][0]
    a("s_nop 7")
    a(f"s_cmp_eq_u32 {sr(s_type)}, 3")
    a(f"s_cbranch_scc1 {name}_epi_gu")
    a(f"s_lshl_b32 s3, {sr(s_col)}, 1")
    a(f"s_add_u32 s3, s3, {sr(s_wn)}")
    a("s_lshl_b32 s3, s3, 19")
    a(f"s_lshl_b32 s4, {sr(s_tm)}, 16")
    a("s_add_u32 s3, s3, s4")
    a(f"s_lshl_b32 s4, {sr(s_wt)}, 15")
    a("s_add_u32 s3, s3, s4")
    a(f"v_add_u32 {vr(vout)}, s3, {vr(vout)}")
    cnt = 0
    for j in range(8):
        a(f"s_mov_b32 s3, {j*4096}")
        for u in range(4):
            b = T + (cnt % 4) * 12; cnt += 1
            for e in range(8):
                a(f"v_accvgpr_read_b32 {vr(b+4+e)}, {core.accreg(2*u + e//4, j, e%4)}")
            for p in range(4):
                a(f"v_pk_mul_f32 {vr(b+4+2*p,2)}, {vr(b+4+2*p,2)}, {sr(s_scale)} op_sel_hi:[1,0]" if False else
                  f"v_mul_f32 {vr(b+4+2*p)}, {sr(s_scale)}, {vr(b+4+2*p)}")
                a(f"v_mul_f32 {vr(b+5+2*p)}, {sr(s_scale)}, {vr(b+5+2*p)}")
            for p in range(4):
                a(f"v_cvt_pk_bf16_f32 {vr(b+p)}, {vr(b+4+2*p)}, {vr(b+5+2*p)}")
            a(f"buffer_store_dwordx4 {vr(b,4)}, {vr(vout)}, {sr(sO,4)}, s3 offen offset:{u*1024}")
    a("s_endpgm")
    a.label(f"{name}_epi_gu")
    a(f"s_lshl_b32 s3, {sr(s_tm)}, 4")
    a(f"s_lshl_b32 s4, {sr(s_wt)}, 3")
    a("s_add_u32 s3, s3, s4")
    a(f"s_mul_i32 s3, s3, {Z_KB*1024}")
    a(f"s_lshl_b32 s4, {sr(s_col)}, 12")
    a("s_add_u32 s3, s3, s4")
    a(f"s_lshl_b32 s4, {sr(s_wn)}, 11")
    a("s_add_u32 s3, s3, s4")
    a(f"v_add_u32 {vr(vout)}, s3, {vr(vout)}")
    c1 = -2.0 * math.sqrt(2.0 / math.pi) * math.log2(math.e)
    c2 = c1 * 0.044715
    a(f"s_mov_b32 s4, {f32(c1)}"); a(f"s_mov_b32 s5, {f32(c2)}")
    a(f"v_mov_b32 {vr(vt[0])}, s4")
    cnt = 0
    for j in range(8):
        a(f"s_mov_b32 s3, {j*Z_KB*1024}")
        for u in range(2):
            b = T + (cnt % 4) * 28; cnt += 1
            X, U, E = b + 4, b + 12, b + 20
            for e in range(8):
                a(f"v_accvgpr_read_b32 {vr(X+e)}, {core.accreg(2*u + e//4, j, e%4)}")
            for e in range(8):
                a(f"v_mul_f32 {vr(E+e)}, {vr(X+e)}, {vr(X+e)}")
            for e in range(8):
                a(f"v_fma_f32 {vr(E+e)}, {vr(E+e)}, s5, {vr(vt[0])}")
            for e in range(8):
                a(f"v_mul_f32 {vr(E+e)}, {vr(E+e)}, {vr(X+e)}")
            for e in range(8):
                a(f"v_exp_f32 {vr(E+e)}, {vr(E+e)}")
            for e in range(8):
                a(f"v_accvgpr_read_b32 {vr(U+e)}, {core.accreg(4 + 2*u + e//4, j, e%4)}")
            for e in range(8):
                a(f"v_add_f32 {vr(E+e)}, 1.0, {vr(E+e)}")
            for e in range(8):
                a(f"v_rcp_f32 {vr(E+e)}, {vr(E+e)}")
            for e in range(8):
                a(f"v_mul_f32 {vr(X+e)}, {vr(X+e)}, {vr(U+e)}")
            for e in range(8):
                a(f"v_mul_f32 {vr(X+e)}, {vr(X+e)}, {vr(E+e)}")
            for p in range(4):
                a(f"v_cvt_pk_bf16_f32 {vr(b+p)}, {vr(X+2*p)}, {vr(X+2*p+1)}")
            a(f"buffer_store_dwordx4 {vr(b,4)}, {vr(vout)}, {sr(sO,4)}, s3 offen offset:{u*1024}")
    a("s_endpgm")
    a.label(f"{name}_vpath")
    core.c = cfgS
    core.mainloop(core.sLoop, f"{name}_loopS")
    core.c = cfgN
    a("s_nop 7")
    a(f"s_lshl_b32 s3, {sr(s_col)}, 1")
    a(f"s_add_u32 s3, s3, {sr(s_wn)}")
    a("s_lshl_b32 s3, s3, 19")
    a(f"s_lshl_b32 s4, {sr(s_tm)}, 16")
    a("s_add_u32 s3, s3, s4")
    a(f"s_lshl_b32 s4, {sr(s_wt)}, 15")
    a("s_add_u32 s3, s3, s4")
    a(f"v_add_u32 {vr(vout)}, s3, {vr(vout)}")
    cnt = 0
    for uu in range(4):
        for i in range(8):
            if i % 4 == 0: a(f"s_mov_b32 s3, {uu*8192 + i*1024}")
            b = T + (cnt % 4) * 12; cnt += 1
            for e in range(8):
                a(f"v_accvgpr_read_b32 {vr(b+4+e)}, {core.accreg(i, 2*uu + e//4, e%4)}")
            for p in range(4):
                a(f"v_cvt_pk_bf16_f32 {vr(b+p)}, {vr(b+4+2*p)}, {vr(b+5+2*p)}")
            a(f"buffer_store_dwordx4 {vr(b,4)}, {vr(vout)}, {sr(sO,4)}, s3 offen offset:{(i%4)*1024}")
    a("s_endpgm")
    a.label(f"{name}_g")
    a("s_and_b32 s3, s2, 7")
    a("s_lshl_b32 s3, s3, 3")
    a(f"s_add_u32 s3, s3, {sr(s_tm)}")
    a("s_lshl_b32 s3, s3, 6")
    a(f"s_lshl_b32 s4, {sr(s_wave)}, 4")
    a("s_add_u32 s3, s3, s4")
    a("s_waitcnt lgkmcnt(0)")
    srd(a, core.sA, 8, 9, 2048 * 1024 * 2)
    srd(a, core.sB, 28, 29, 2048)
    srd(a, sO, 34, 35, 8192, WS_G)
    G = 8
    a(f"v_lshlrev_b32 v2, 5, {vr(vlane)}")
    a(f"buffer_load_dwordx4 v[{G}:{G+3}], v2, {sr(core.sB,4)}, 0 offen")
    a(f"buffer_load_dwordx4 v[{G+4}:{G+7}], v2, {sr(core.sB,4)}, 0 offen offset:16")
    a("s_lshl_b32 s4, s3, 11")
    a("v_add_u32 v3, s4, v2")
    XB = 32
    for t in range(16):
        a(f"s_mov_b32 s5, {t*2048}")
        a(f"buffer_load_dwordx4 v[{XB+8*t}:{XB+8*t+3}], v3, {sr(core.sA,4)}, s5 offen")
        a(f"buffer_load_dwordx4 v[{XB+8*t+4}:{XB+8*t+7}], v3, {sr(core.sA,4)}, s5 offen offset:16")
    a("s_waitcnt vmcnt(32)")
    for r in range(8):
        a(f"v_lshlrev_b32 v{16+2*r}, 16, v{G+r}")
        a(f"v_and_b32 v{17+2*r}, 0xffff0000, v{G+r}")
    a("v_mov_b32 v6, 0")
    for t in range(16):
        a(f"s_waitcnt vmcnt({2*(15-t)})")
        acc = 4
        for r in range(8):
            x = XB + 8 * t + r
            a(f"v_lshlrev_b32 v5, 16, v{x}")
            if r == 0: a(f"v_mul_f32 v{acc}, v5, v{16+2*r}")
            else: a(f"v_fmac_f32 v{acc}, v5, v{16+2*r}")
            a(f"v_and_b32 v5, 0xffff0000, v{x}")
            a(f"v_fmac_f32 v{acc}, v5, v{17+2*r}")
        a("s_nop 1")
        a(f"v_add_f32_dpp v{acc}, v{acc}, v{acc} quad_perm:[1,0,3,2] row_mask:0xf bank_mask:0xf")
        a("s_nop 1")
        a(f"v_add_f32_dpp v{acc}, v{acc}, v{acc} quad_perm:[2,3,0,1] row_mask:0xf bank_mask:0xf")
        a("s_nop 1")
        a(f"v_add_f32_dpp v{acc}, v{acc}, v{acc} row_half_mirror row_mask:0xf bank_mask:0xf")
        a("s_nop 1")
        a(f"v_add_f32_dpp v{acc}, v{acc}, v{acc} row_mirror row_mask:0xf bank_mask:0xf")
        a("s_nop 1")
        a(f"v_readlane_b32 s4, v{acc}, 0")
        a(f"v_readlane_b32 s5, v{acc}, 16")
        a(f"v_readlane_b32 s6, v{acc}, 32")
        a(f"v_readlane_b32 s7, v{acc}, 48")
        a("s_nop 1")
        a("v_mov_b32 v5, s4")
        a("v_add_f32 v5, s5, v5")
        a("v_add_f32 v5, s6, v5")
        a("v_add_f32 v5, s7, v5")
        a(f"v_cmp_eq_u32 vcc, {t}, {vr(vlane)}")
        a("s_nop 1")
        a("v_cndmask_b32 v6, v6, v5, vcc")
    a(f"v_mul_f32 v6, {f32(-math.log2(math.e))}, v6")
    a("v_exp_f32 v6, v6")
    a("s_nop 0")
    a("v_add_f32 v6, 1.0, v6")
    a("v_rcp_f32 v6, v6")
    a(f"v_add_u32 v7, s3, {vr(vlane)}")
    a("v_lshlrev_b32 v7, 2, v7")
    a(f"v_cmp_gt_u32 vcc, 16, {vr(vlane)}")
    a("s_and_saveexec_b64 s[4:5], vcc")
    a(f"buffer_store_dword v6, v7, {sr(sO,4)}, 0 offen")
    a.label(f"{name}_end")
    a("s_endpgm")
    assert V.next <= 192 + 8
    acc_off = (V.next + 3) // 4 * 4
    return dict(name=name, nv=acc_off + 256, acc_off=acc_off, grid=640, block=256, lds=cfgN.LDS)
```

```python
from asmb import *
from k1_gen import srd, f32, WS_Q, WS_K, WS_V, WS_Z, Z_KB

MF = "v_mfma_f32_16x16x32_bf16"
BIAS = 7.0
NEG = -1.0e30

class RD:
    def __init__(self, tag, text): self.tag, self.text = tag, text
class WAIT:
    def __init__(self, *tags): self.tags = tags

def resolve(seq):
    out = []; issued = 0; pos = {}; done = 0
    for it in seq:
        if isinstance(it, RD):
            pos[it.tag] = issued; issued += 1; out.append(it.text)
        elif isinstance(it, WAIT):
            need = max(pos[t] for t in it.tags if t in pos) + 1 if any(t in pos for t in it.tags) else 0
            if need > done:
                n = issued - need
                out.append(f"s_waitcnt lgkmcnt({min(n, 15)})")
                done = max(done, issued - min(n, 15))
        else:
            out.append(it)
    return out

def flat(items):
    o = []
    for x in items:
        if isinstance(x, (list, tuple)): o.extend(flat(x))
        else: o.append(x)
    return o

def gen_k2(a, name="k2_kernel"):
    kernel_header(a, name)
    V = RegAlloc(1, 256, "v"); S = RegAlloc(12, 100, "s")
    def O(db, qb): return (db * 4 + qb) * 4
    def L(qb): return 128 + qb * 4
    def Q(qb, ks): return 144 + (qb * 4 + ks) * 4
    ONES = 208
    def VF(set_, u): return 212 + (set_ * 2 + u) * 4
    NA = 244
    vS = V.alloc("S", 128, 4)
    def Sb(buf, kvb, qb): return vS + ((buf * 4 + kvb) * 4 + qb) * 4
    vP = V.alloc("P", 32, 4)
    def P(u, qb): return vP + (u * 4 + qb) * 4
    vK = V.alloc("K", 32, 4)
    def KF(set_, ks): return vK + (set_ * 4 + ks) * 4
    vNM = V.alloc("negm", 16, 4)
    vT = V.alloc("T", 16, 4)
    vM = V.alloc("moff", 4, 4)
    vD = V.alloc("delta", 4, 4)
    vlane = V.alloc("lane"); vKrd = V.alloc("Krd"); vVrd = V.alloc("Vrd"); vsrc = V.alloc("src"); vsrcV = V.alloc("srcV")
    vx16 = V.alloc("x16"); vx32 = V.alloc("x32"); vneg = V.alloc("neg"); vor = V.alloc("or"); vq = V.alloc("q"); vmrg = V.alloc("mrg"); vmrgR = V.alloc("mrgR")
    sQ = S.alloc("srdQ", 4, 4); sK = S.alloc("srdK", 4, 4); sV = S.alloc("srdV", 4, 4); sZ = S.alloc("srdZ", 4, 4)
    sMD = [S.alloc(f"maskD{r}", 2, 2) for r in range(4)]; sMB = S.alloc("maskB", 2, 2)
    sTri = [S.alloc(f"tri{r}", 2, 2) for r in range(4)]
    s_wave = S.alloc("wave"); s_qh = S.alloc("qh"); s_par = S.alloc("par"); s_head = S.alloc("head"); s_p = S.alloc("p")
    s_i = S.alloc("i"); s_n = S.alloc("n"); s_pass = S.alloc("pass"); s_m0 = S.alloc("m0w"); s_4k = S.alloc("c4k"); s_hb = S.alloc("headbase")
    s_var = S.alloc("variant"); s_32k = S.alloc("c32k"); s_nrK = S.alloc("nrK"); s_nrV = S.alloc("nrV")

    a("s_cmp_ge_u32 s2, 256")
    a(f"s_cbranch_scc1 {name}_end")
    a("s_load_dwordx2 s[4:5], s[0:1], 104")
    a(f"v_and_b32 {vr(vlane)}, 63, v0")
    a(f"v_lshrrev_b32 {vr(vT)}, 6, v0")
    a("s_nop 0")
    a(f"v_readfirstlane_b32 {sr(s_wave)}, {vr(vT)}")
    a("s_nop 3")
    a(f"s_and_b32 {sr(s_qh)}, {sr(s_wave)}, 1")
    a(f"s_lshr_b32 {sr(s_par)}, {sr(s_wave)}, 1")
    a("s_and_b32 s3, s2, 7")
    a("s_lshr_b32 s6, s2, 3")
    a(f"s_and_b32 {sr(s_p)}, s6, 7")
    a("s_lshr_b32 s6, s6, 3")
    a("s_lshl_b32 s3, s3, 2")
    a(f"s_add_u32 {sr(s_head)}, s3, s6")
    a(f"s_lshl_b32 {sr(s_hb)}, {sr(s_head)}, 19")
    a(f"s_mov_b32 {sr(s_4k)}, 4096")
    a(f"s_mov_b32 {sr(s_32k)}, 32768")
    a(f"s_lshl_b32 {sr(s_m0)}, {sr(s_wave)}, 13")
    a("s_waitcnt lgkmcnt(0)")
    srd(a, sQ, 4, 5, 16 << 20, WS_Q)
    srd(a, sK, 4, 5, 16 << 20, WS_K)
    srd(a, sV, 4, 5, 16 << 20, WS_V)
    srd(a, sZ, 4, 5, 128 * Z_KB * 1024, WS_Z)
    a(f"v_lshlrev_b32 {vr(vT)}, 4, {vr(vlane)}")
    a(f"s_lshl_b32 s3, {sr(s_par)}, 14")
    a(f"v_add_u32 {vr(vKrd)}, s3, {vr(vT)}")
    a(f"v_add_u32 {vr(vVrd)}, 0x10000, {vr(vKrd)}")
    a(f"v_xor_b32 {vr(vx16)}, 16, {vr(vlane)}"); a(f"v_lshlrev_b32 {vr(vx16)}, 2, {vr(vx16)}")
    a(f"v_xor_b32 {vr(vx32)}, 32, {vr(vlane)}"); a(f"v_lshlrev_b32 {vr(vx32)}, 2, {vr(vx32)}")
    a(f"v_mov_b32 {vr(vneg)}, {f32(NEG)}")
    a(f"s_mul_i32 s3, {sr(s_wave)}, 18432")
    a(f"v_add_u32 {vr(vmrg)}, s3, {vr(vT)}")
    a(f"s_xor_b32 s3, {sr(s_wave)}, 2")
    a("s_mul_i32 s3, s3, 18432")
    a(f"v_add_u32 {vr(vmrgR)}, s3, {vr(vT)}")
    a(f"v_lshrrev_b32 {vr(vT+1)}, 4, {vr(vlane)}")
    a(f"v_lshlrev_b32 {vr(vT+1)}, 2, {vr(vT+1)}")
    a(f"v_and_b32 {vr(vT+2)}, 15, {vr(vlane)}")
    for r in range(4):
        a(f"v_add_u32 {vr(vT+3)}, {r}, {vr(vT+1)}")
        a(f"v_cmp_gt_u32 {sr(sTri[r],2)}, {vr(vT+3)}, {vr(vT+2)}")
    a(f"v_mov_b32 {vr(vT)}, 0x3f803f80")
    for r in range(4): a(f"v_accvgpr_write_b32 {ar(ONES+r)}, {vr(vT)}")
    a(f"s_cmp_eq_u32 {sr(s_qh)}, {sr(s_par)}")
    for r in range(4):
        a(f"s_cselect_b64 {sr(sMD[r],2)}, {sr(sTri[r],2)}, 0")
    a(f"s_cselect_b64 {sr(sMB,2)}, -1, 0")
    a(f"s_mov_b32 {sr(s_pass)}, 0")
    a(f"s_sub_u32 {sr(s_i)}, 15, {sr(s_p)}")

    def dma(kind, stage):
        base = stage * 32768 + (65536 if kind == "V" else 0)
        s_, v_ = (sV, vsrcV) if kind == "V" else (sK, vsrc)
        out = []
        for q in range(8):
            g = []
            if q % 4 == 0:
                g.append(f"s_add_u32 m0, {sr(s_m0)}, {base + (q//4)*4096}")
                g.append("s_nop 0")
            so = "0" if q < 4 else sr(s_4k)
            g.append(f"buffer_load_dwordx4 {vr(v_)}, {sr(s_,4)}, {so} offen offset:{(q%4)*1024} lds")
            out.append(g)
        out.append([f"v_add_u32 {vr(v_)}, {sr(s_32k)}, {vr(v_)}"])
        return out
    def kread(stage, kvb):
        return [RD(("K", kvb, ks), f"ds_read_b128 {vr(KF(kvb%2, ks),4)}, {vr(vKrd)} offset:{stage*32768 + (kvb*4+ks)*1024}") for ks in range(4)]
    def vread(stage, db):
        return [RD(("V", db, u), f"ds_read_b128 {ar(VF(db%4, u),4)}, {vr(vVrd)} offset:{stage*32768 + (u*8+db)*1024}") for u in range(2)]
    def qk_group(buf, kvb, czero=False):
        out = []
        for qb in range(4):
            for ks in range(4):
                d = vr(Sb(buf, kvb, qb), 4)
                c = ("0" if czero else vr(vNM + qb * 4, 4)) if ks == 0 else d
                out.append(f"{MF} {d}, {vr(KF(kvb%2, ks),4)}, {ar(Q(qb,ks),4)}, {c}")
        return out
    def pv_group(db):
        out = []
        for qb in range(4):
            for u in range(2):
                d = ar(O(db, qb), 4)
                out.append(f"{MF} {d}, {ar(VF(db%4,u),4)}, {vr(P(u,qb),4)}, {d}")
        return out
    def l_group():
        out = []
        for qb in range(4):
            for u in range(2):
                d = ar(L(qb), 4)
                out.append(f"{MF} {d}, {ar(ONES,4)}, {vr(P(u,qb),4)}, {d}")
        return out
    def softmax_ops(buf):
        out = []
        cnt = 0
        nor = 0
        for kvb in range(4):
            for qb in range(4):
                t = vT + (cnt % 2) * 4; cnt += 1
                s = Sb(buf, kvb, qb)
                p = P(kvb // 2, qb) + (kvb % 2) * 2
                for r in range(4): out.append(f"v_exp_f32 {vr(t+r)}, {vr(s+r)}")
                out.append(f"v_cvt_pk_bf16_f32 {vr(p)}, {vr(t)}, {vr(t+1)}")
                out.append(f"v_cvt_pk_bf16_f32 {vr(p+1)}, {vr(t+2)}, {vr(t+3)}")
                if nor == 0: out.append(f"v_or_b32 {vr(vor)}, {vr(p)}, {vr(p+1)}")
                else: out.append(f"v_or3_b32 {vr(vor)}, {vr(vor)}, {vr(p)}, {vr(p+1)}")
                nor += 1
        return out
    def check(label):
        return [f"v_and_b32 {vr(vor)}, 0x40004000, {vr(vor)}",
                f"v_cmp_ne_u32 vcc, 0, {vr(vor)}",
                f"s_cbranch_vccnz {label}"]
    def fixmax(buf, has_next, first):
        o = ["s_nop 7", "s_waitcnt lgkmcnt(0)"]
        for qb in range(4):
            d = vD + qb
            regs = [Sb(buf, kvb, qb) + r for kvb in range(4) for r in range(4)]
            o.append(f"v_max3_f32 {vr(d)}, {vr(regs[0])}, {vr(regs[1])}, {vr(regs[2])}")
            for k in range(3, 15, 2):
                o.append(f"v_max3_f32 {vr(d)}, {vr(d)}, {vr(regs[k])}, {vr(regs[k+1])}")
            o.append(f"v_max_f32 {vr(d)}, {vr(d)}, {vr(regs[15])}")
        for vx in (vx16, vx32):
            for qb in range(4): o.append(f"ds_bpermute_b32 {vr(vT+qb)}, {vr(vx)}, {vr(vD+qb)}")
            o.append("s_waitcnt lgkmcnt(0)")
            for qb in range(4): o.append(f"v_max_f32 {vr(vD+qb)}, {vr(vD+qb)}, {vr(vT+qb)}")
        for qb in range(4):
            o.append(f"v_add_f32 {vr(vD+qb)}, {f32(BIAS)}, {vr(vD+qb)}")
            if first:
                o.append(f"v_mov_b32 {vr(vM+qb)}, {vr(vD+qb)}")
            else:
                o.append(f"v_max_f32 {vr(vD+qb)}, 0, {vr(vD+qb)}")
                o.append(f"v_add_f32 {vr(vM+qb)}, {vr(vM+qb)}, {vr(vD+qb)}")
            for r in range(4): o.append(f"v_sub_f32 {vr(vNM+qb*4+r)}, 0, {vr(vM+qb)}")
        for b in ([buf, 1 - buf] if has_next else [buf]):
            for kvb in range(4):
                for qb in range(4):
                    for r in range(4):
                        s = Sb(b, kvb, qb) + r
                        o.append(f"v_sub_f32 {vr(s)}, {vr(s)}, {vr(vD+qb)}")
        if not first:
            for qb in range(4):
                o.append(f"v_sub_f32 {vr(vT+8+qb)}, 0, {vr(vD+qb)}")
                o.append(f"v_exp_f32 {vr(vT+8+qb)}, {vr(vT+8+qb)}")
            o.append("s_nop 0")
            for qb in range(4):
                regs = [O(db, qb) + r for db in range(8) for r in range(4)] + [L(qb) + r for r in range(4)]
                for k in range(0, len(regs), 4):
                    for e in range(4): o.append(f"v_accvgpr_read_b32 {vr(vT+e)}, {ar(regs[k+e])}")
                    for e in range(4): o.append(f"v_mul_f32 {vr(vT+e)}, {vr(vT+e)}, {vr(vT+8+qb)}")
                    for e in range(4): o.append(f"v_accvgpr_write_b32 {ar(regs[k+e])}, {vr(vT+e)}")
        o.append("s_nop 1")
        return o

    rare_blocks = []
    def phaseB(stage, pre_issued):
        seq = []
        if not pre_issued: seq += vread(stage, 0) + vread(stage, 1)
        seq += l_group()[:]
        for db in range(8):
            seq.append(WAIT(("V", db, 0), ("V", db, 1)))
            fill = vread(stage, db + 2) if db + 2 < 8 else []
            seq += merge(pv_group(db), fill, 0, 4)
        return seq

    def iteration(par):
        lab = f"{name}_rare{par}"
        kst = 1 - par
        vst = par
        seq = ["s_waitcnt vmcnt(0) lgkmcnt(0)", "s_barrier"]
        seq += [f"s_add_u32 s3, {sr(s_n)}, 2", f"s_cmp_le_u32 s3, {sr(s_i)}", f"s_cselect_b32 {sr(sK+2)}, {sr(s_nrK)}, 0"]
        seq += kread(kst, 0) + kread(kst, 1)
        sm = softmax_ops(par)
        d = dma("K", par) + dma("V", 1 - par)
        npre = 21
        pre = sm[:npre]; sm = sm[npre:]
        seq += flat(merge(pre, d[:6], 0, npre))
        d = d[6:]
        per = (len(sm) + 3) // 4
        for kvb in range(4):
            seq.append(WAIT(*[("K", kvb, ks) for ks in range(4)]))
            fill = []
            if 1 <= kvb <= 2: fill += kread(kst, kvb + 1)
            if kvb == 3: fill += vread(vst, 0) + vread(vst, 1)
            dd = d[:6]; d = d[6:]
            sms = sm[kvb * per:(kvb + 1) * per]
            mixed = flat(merge(sms, fill + dd, 0, len(sms))) if sms else flat(fill + dd)
            seq += merge_keep(qk_group(1 - par, kvb), mixed)
        assert not d
        seq += check(lab)
        seq.append(f"{lab}_ret:")
        seq += phaseB(vst, True)
        rare_blocks.append((lab, par, True))
        return seq

    def merge_keep(main, fill):
        n = len(main); out = []; m = len(fill); k = 0
        for i in range(n):
            out.append(main[i])
            upto = (i + 1) * m // n
            while k < upto: out.append(fill[k]); k += 1
        return out

    def last(par):
        lab = f"{name}_rareL{par}"
        seq = ["s_waitcnt vmcnt(0) lgkmcnt(0)", "s_barrier"]
        seq += [f"s_cmp_eq_u32 {sr(s_wave)}, 2", f"s_cbranch_scc1 {name}_merge"]
        seq += vread(par, 0) + vread(par, 1)
        for kvb in range(4):
            for qb in range(4):
                if kvb < qb: continue
                for r in range(4):
                    s = Sb(par, kvb, qb) + r
                    m = sMD[r] if kvb == qb else sMB
                    seq.append(f"v_cndmask_b32 {vr(s)}, {vr(s)}, {vr(vneg)}, {sr(m,2)}")
        if par == 0:
            seq += [f"s_cmp_lg_u32 {sr(s_i)}, 0", f"s_cbranch_scc1 {name}_nofirst"]
            seq += fixmax(0, False, True)
            seq.append(f"{name}_nofirst:")
        seq += softmax_ops(par)
        seq += check(lab)
        seq.append(f"{lab}_ret:")
        seq += phaseB(par, True)
        rare_blocks.append((lab, par, False))
        return seq

    def emit(seq):
        for x in resolve(flat(seq)):
            if x.endswith(":"): a.label(x[:-1])
            else: a(x)

    a.label(f"{name}_tile")
    a(f"s_lshl_b32 s3, {sr(s_i)}, 15")
    a(f"s_lshl_b32 s6, {sr(s_qh)}, 14")
    a("s_add_u32 s3, s3, s6")
    a(f"s_add_u32 s3, s3, {sr(s_hb)}")
    a(f"v_lshlrev_b32 {vr(vT)}, 4, {vr(vlane)}")
    a(f"v_add_u32 {vr(vq)}, s3, {vr(vT)}")
    a(f"s_add_u32 s3, {sr(s_hb)}, {sr(s_m0)}")
    a(f"v_add_u32 {vr(vsrc)}, s3, {vr(vT)}")
    a(f"v_mov_b32 {vr(vsrcV)}, {vr(vsrc)}")
    a(f"s_mov_b32 {sr(s_nrK)}, {16<<20}")
    a(f"s_mov_b32 {sr(sK+2)}, {16<<20}")
    for g in dma("K", 0): a(g)
    for qb in range(4):
        a(f"s_mov_b32 s3, {qb*4096}")
        for ks in range(4):
            a(f"buffer_load_dwordx4 {ar(Q(qb,ks),4)}, {vr(vq)}, {sr(sQ,4)}, s3 offen offset:{ks*1024}")
    for g in dma("V", 0): a(g)
    a(f"s_cmp_ge_u32 {sr(s_i)}, 1")
    a(f"s_cselect_b32 {sr(sK+2)}, {sr(s_nrK)}, 0")
    for g in dma("K", 1): a(g)
    for r in range(144): a(f"v_accvgpr_write_b32 {ar(r)}, 0")
    for qb in range(4): a(f"v_mov_b32 {vr(vM+qb)}, {vr(vneg)}")
    a(f"s_mov_b32 {sr(s_n)}, 0")
    a("s_waitcnt vmcnt(16)")
    a("s_barrier")
    seq = kread(0, 0) + kread(0, 1)
    for kvb in range(4):
        seq.append(WAIT(*[("K", kvb, ks) for ks in range(4)]))
        fill = kread(0, kvb + 1) if 1 <= kvb <= 2 else []
        seq += merge(qk_group(0, kvb, czero=True), fill, 0, 8)
    emit(seq)
    a(f"s_cmp_eq_u32 {sr(s_i)}, 0")
    a(f"s_cbranch_scc1 {name}_last0")
    emit(fixmax(0, False, True))
    a.label(f"{name}_loop")
    emit(iteration(0))
    a(f"s_add_u32 {sr(s_n)}, {sr(s_n)}, 1")
    a(f"s_cmp_eq_u32 {sr(s_n)}, {sr(s_i)}")
    a(f"s_cbranch_scc1 {name}_last1")
    emit(iteration(1))
    a(f"s_add_u32 {sr(s_n)}, {sr(s_n)}, 1")
    a(f"s_cmp_lg_u32 {sr(s_n)}, {sr(s_i)}")
    a(f"s_cbranch_scc1 {name}_loop")
    a.label(f"{name}_last0")
    a("s_nop 7")
    emit(last(0))
    a(f"s_branch {name}_merge")
    a.label(f"{name}_last1")
    emit(last(1))
    a.label(f"{name}_merge")
    a("s_waitcnt lgkmcnt(0)")
    a("s_barrier")
    a("s_nop 7")
    a(f"s_cmp_eq_u32 {sr(s_par)}, 0")
    a(f"s_cbranch_scc0 {name}_send1")
    def send(dbs):
        k = 0
        for db in dbs:
            for qb in range(4):
                a(f"ds_write_b128 {vr(vmrg)}, {ar(O(db,qb),4)} offset:{k*1024}"); k += 1
    send(range(4, 8))
    a(f"s_branch {name}_sent")
    a.label(f"{name}_send1")
    send(range(0, 4))
    a.label(f"{name}_sent")
    for qb in range(4): a(f"v_accvgpr_read_b32 {vr(vD+qb)}, {ar(L(qb))}")
    a(f"ds_write_b128 {vr(vmrg)}, {vr(vM,4)} offset:{16*1024}")
    a(f"ds_write_b128 {vr(vmrg)}, {vr(vD,4)} offset:{17*1024}")
    a("s_waitcnt lgkmcnt(0)")
    a("s_barrier")
    R = vS
    a(f"ds_read_b128 {vr(vT,4)}, {vr(vmrgR)} offset:{16*1024}")
    a(f"ds_read_b128 {vr(vT+4,4)}, {vr(vmrgR)} offset:{17*1024}")
    for k in range(16): a(f"ds_read_b128 {vr(R+4*k,4)}, {vr(vmrgR)} offset:{k*1024}")
    a("s_waitcnt lgkmcnt(15)")
    a("s_waitcnt lgkmcnt(14)") if False else None
    a("s_waitcnt lgkmcnt(0)")
    CA, CB = vNM, vNM + 4
    for qb in range(4):
        mm = vT + 8 + qb
        a(f"v_max_f32 {vr(mm)}, {vr(vM+qb)}, {vr(vT+qb)}")
        a(f"v_sub_f32 {vr(CA+qb)}, {vr(vM+qb)}, {vr(mm)}")
        a(f"v_sub_f32 {vr(CB+qb)}, {vr(vT+qb)}, {vr(mm)}")
        a(f"v_exp_f32 {vr(CA+qb)}, {vr(CA+qb)}")
        a(f"v_exp_f32 {vr(CB+qb)}, {vr(CB+qb)}")
        a("s_nop 0")
        a(f"v_mul_f32 {vr(mm)}, {vr(vD+qb)}, {vr(CA+qb)}")
        a(f"v_fmac_f32 {vr(mm)}, {vr(vT+4+qb)}, {vr(CB+qb)}")
        a(f"v_rcp_f32 {vr(mm)}, {vr(mm)}")
        a("s_nop 0")
        a(f"v_mul_f32 {vr(CA+qb)}, {vr(CA+qb)}, {vr(mm)}")
        a(f"v_mul_f32 {vr(CB+qb)}, {vr(CB+qb)}, {vr(mm)}")
    a(f"s_lshl_b32 s3, {sr(s_i)}, 3")
    a(f"s_lshl_b32 s6, {sr(s_qh)}, 2")
    a("s_add_u32 s3, s3, s6")
    a(f"s_mul_i32 s3, s3, {Z_KB*1024}")
    a(f"s_lshl_b32 s6, {sr(s_head)}, 12")
    a("s_add_u32 s3, s3, s6")
    a(f"s_lshl_b32 s6, {sr(s_par)}, 11")
    a("s_add_u32 s3, s3, s6")
    a(f"s_add_u32 s3, s3, {112*1024}")
    a(f"v_lshlrev_b32 {vr(vq)}, 4, {vr(vlane)}")
    a(f"v_add_u32 {vr(vq)}, s3, {vr(vq)}")
    a(f"s_cmp_eq_u32 {sr(s_par)}, 0")
    a(f"s_cbranch_scc0 {name}_fin1")
    def fin(db0):
        W = vS + 64
        cnt = 0
        for qb in range(4):
            a(f"s_mov_b32 s3, {qb*Z_KB*1024}")
            for uu in range(2):
                b = W + (cnt % 4) * 12; cnt += 1
                for e in range(8):
                    a(f"v_accvgpr_read_b32 {vr(b+4+e)}, {ar(O(db0 + 2*uu + e//4, qb) + e%4)}")
                for e in range(8):
                    a(f"v_mul_f32 {vr(b+4+e)}, {vr(b+4+e)}, {vr(CA+qb)}")
                for e in range(8):
                    k = (2 * uu + e // 4) * 4 + qb
                    a(f"v_fmac_f32 {vr(b+4+e)}, {vr(R+4*k+e%4)}, {vr(CB+qb)}")
                for p in range(4):
                    a(f"v_cvt_pk_bf16_f32 {vr(b+p)}, {vr(b+4+2*p)}, {vr(b+5+2*p)}")
                a(f"buffer_store_dwordx4 {vr(b,4)}, {vr(vq)}, {sr(sZ,4)}, s3 offen offset:{uu*1024}")
    fin(0)
    a(f"s_branch {name}_fin")
    a.label(f"{name}_fin1")
    fin(4)
    a.label(f"{name}_fin")
    a(f"s_cmp_lg_u32 {sr(s_pass)}, 0")
    a(f"s_cbranch_scc1 {name}_end")
    a(f"s_mov_b32 {sr(s_pass)}, 1")
    a(f"s_mov_b32 {sr(s_i)}, {sr(s_p)}")
    a("s_barrier")
    a(f"s_branch {name}_tile")
    a.label(f"{name}_end")
    a("s_endpgm")
    for lab, par, has_next in rare_blocks:
        a.label(lab)
        emit(fixmax(par, has_next, False))
        emit(softmax_ops(par))
        a("s_nop 1")
        a(f"s_branch {lab}_ret")
    acc_off = (V.next + 3) // 4 * 4
    return dict(name=name, nv=acc_off + NA, acc_off=acc_off, grid=256, block=256, lds=131072)
```

```python
from asmb import *
from gemm_gen import GemmCfg
from gemm2 import GemmCore2
from k1_gen import srd, f32, WS_Z, WS_G, Z_KB

def gen_k3(a, name="k3_kernel"):
    cfg = GemmCfg(128, 128, 2, 2, native_a=True, swap=False, stages=2, ms=16)
    kernel_header(a, name)
    V = RegAlloc(1, 256, "v"); S = RegAlloc(36, 100, "s")
    core = GemmCore2(a, cfg, V, S, False)
    acc1 = core.accbase
    acc2 = V.alloc("acc2", 64, 4)
    vlane = V.alloc("lane"); vt = [V.alloc(f"t{i}") for i in range(4)]
    vout = V.alloc("vout"); vg = V.alloc("g", 4)
    s_wave = S.alloc("wave"); s_wt = S.alloc("wt"); s_wn = S.alloc("wn")
    s_tm = S.alloc("tm"); s_tn = S.alloc("tn")
    s_ab = S.alloc("ab"); s_lda = S.alloc("lda"); s_bb = S.alloc("bb"); s_ldw = S.alloc("ldw")
    sO = S.alloc("srdO", 4, 4); sG = S.alloc("srdG", 4, 4)
    a("s_cmp_ge_u32 s2, 128")
    a(f"s_cbranch_scc1 {name}_end")
    a("s_load_dwordx16 s[8:23], s[0:1], 0")
    a("s_load_dwordx8 s[24:31], s[0:1], 64")
    a("s_load_dwordx4 s[32:35], s[0:1], 96")
    a(f"v_and_b32 {vr(vlane)}, 63, v0")
    a(f"v_lshrrev_b32 {vr(vt[0])}, 6, v0")
    a("s_nop 0")
    a(f"v_readfirstlane_b32 {sr(s_wave)}, {vr(vt[0])}")
    a("s_nop 3")
    a(f"s_lshr_b32 {sr(s_wt)}, {sr(s_wave)}, 1")
    a(f"s_and_b32 {sr(s_wn)}, {sr(s_wave)}, 1")
    a("s_and_b32 s3, s2, 7")
    a("s_lshr_b32 s4, s2, 3")
    a("s_lshr_b32 s5, s3, 1"); a("s_lshl_b32 s5, s5, 2")
    a("s_and_b32 s6, s4, 3"); a(f"s_add_u32 {sr(s_tm)}, s5, s6")
    a("s_and_b32 s5, s3, 1"); a("s_lshl_b32 s5, s5, 2")
    a("s_lshr_b32 s6, s4, 2"); a(f"s_add_u32 {sr(s_tn)}, s5, s6")
    a("s_waitcnt lgkmcnt(0)")
    srd(a, core.sA, 34, 35, 128 * Z_KB * 1024, WS_Z)
    srd(a, core.sB, 26, 27, 3584 * 1024 * 2)
    srd(a, sO, 30, 31, 2048 * 1024 * 2)
    srd(a, sG, 34, 35, 8192, WS_G)
    a(f"s_mov_b32 {sr(s_lda)}, {Z_KB*1024}")
    a(f"s_mul_i32 {sr(s_ab)}, {sr(s_tm)}, {8*Z_KB*1024}")
    a(f"s_mov_b32 {sr(s_ldw)}, 2048")
    a(f"s_lshl_b32 {sr(s_bb)}, {sr(s_tn)}, 8")
    a(f"s_lshr_b32 s3, {sr(s_wave)}, 1")
    a("s_lshl_b32 s3, s3, 7")
    a(f"s_add_u32 {sr(s_bb)}, {sr(s_bb)}, s3")
    core.setup_src(vlane, s_wave, s_ab, s_lda, s_bb, s_ldw, vt)
    core.setup_lane_consts(vlane, s_wave, s_wt, s_wn, vt)
    a(f"v_mov_b32 {vr(vout)}, {vr(core.vBsrc[0])}")
    core.prologue_dma()
    a(f"s_mov_b32 {sr(core.sLoop)}, {(56-4)//2}")
    core.mainloop(core.sLoop, f"{name}_loop1")
    a("s_waitcnt lgkmcnt(0)")
    a("s_barrier")
    srd(a, core.sB, 18, 19, 4096 * 1024 * 2)
    a(f"v_mov_b32 {vr(core.vBsrc[0])}, {vr(vout)}")
    core.prologue_dma()
    a(f"s_lshl_b32 s3, {sr(s_tm)}, 7")
    a(f"s_lshl_b32 s4, {sr(s_wt)}, 6")
    a("s_add_u32 s3, s3, s4")
    a(f"v_and_b32 {vr(vt[0])}, 15, {vr(vlane)}")
    a(f"v_add_u32 {vr(vt[0])}, s3, {vr(vt[0])}")
    a(f"v_lshlrev_b32 {vr(vt[1])}, 2, {vr(vt[0])}")
    a(f"v_lshlrev_b32 {vr(vout)}, 11, {vr(vt[0])}")
    a(f"v_lshrrev_b32 {vr(vt[2])}, 4, {vr(vlane)}")
    a(f"v_lshl_add_u32 {vr(vout)}, {vr(vt[2])}, 3, {vr(vout)}")
    a(f"s_lshl_b32 s3, {sr(s_tn)}, 8")
    a(f"s_lshl_b32 s4, {sr(s_wn)}, 7")
    a("s_add_u32 s3, s3, s4")
    a(f"v_add_u32 {vr(vout)}, s3, {vr(vout)}")
    core.accbase = acc2
    a(f"s_mov_b32 {sr(core.sLoop)}, {(64-4)//2}")
    core.mainloop(core.sLoop, f"{name}_loop2")
    for j in range(4):
        a(f"buffer_load_dword {vr(vg+j)}, {vr(vt[1])}, {sr(sG,4)}, 0 offen offset:{j*64}")
    a("s_nop 7")
    a("s_waitcnt vmcnt(0)")
    T = core.xf[0][0][0]
    cnt = 0
    for j in range(4):
        a(f"s_mov_b32 s3, {j*16*2048}")
        for i in range(4):
            b = T + (cnt % 4) * 8; cnt += 1
            o = (i * 4 + j) * 4
            for r in range(4):
                a(f"v_sub_f32 {vr(b+2+r)}, {vr(acc2+o+r)}, {vr(acc1+o+r)}")
            for r in range(4):
                a(f"v_fma_f32 {vr(b+2+r)}, {vr(b+2+r)}, {vr(vg+j)}, {vr(acc1+o+r)}")
            a(f"v_cvt_pk_bf16_f32 {vr(b)}, {vr(b+2)}, {vr(b+3)}")
            a(f"v_cvt_pk_bf16_f32 {vr(b+1)}, {vr(b+4)}, {vr(b+5)}")
            a(f"buffer_store_dwordx2 {vr(b,2)}, {vr(vout)}, {sr(sO,4)}, s3 offen offset:{i*32}")
    a.label(f"{name}_end")
    a("s_endpgm")
    acc_off = (V.next + 3) // 4 * 4
    return dict(name=name, nv=acc_off, acc_off=acc_off, grid=128, block=256, lds=cfg.LDS)
```

```python
import sys
from asmb import *
from k1v2_gen import gen_k1
HEADER = open("gated_mix__compressed_kv_cla__geglu_ffn__prompt.s.ref").read().split("; Override launch geometry")[0]
def build(which=("k1", "k2", "k3")):
    body = Asm()
    infos = []
    if "k1" in which: infos.append(gen_k1(body, NEXT="k2" in which))
    if "k2" in which:
        from k2_gen import gen_k2
        infos.append(gen_k2(body, NEXT="k3" in which))
    if "k3" in which:
        from k3_gen import gen_k3
        infos.append(gen_k3(body))
    out = HEADER
    for i in infos:
        out += f"; @launch kernel={i['name']} grid=({i['grid']},1,1) block=({i['block']},1,1) lds={i['lds']}\n"
    out += '.amdgcn_target "amdgcn-amd-amdhsa--gfx950"\n'
    out += body.text()
    d = Asm()
    for i in infos: kernel_desc(d, i["name"], i["nv"], i["acc_off"])
    out += d.text()
    return out
if __name__ == "__main__":
    import stamps, os
    stamps.ENABLE = bool(os.environ.get("STAMPS"))
    which = sys.argv[2].split(",") if len(sys.argv) > 2 else ("k1", "k2", "k3")
    open(sys.argv[1], "w").write(build(which))
```

```python
from asmb import *
from gemm_gen import GemmCfg, GemmCore
from gemm2 import GemmCore2

class GemmCore3(GemmCore2):
    def __init__(self, a, cfg, V, S, acc_in_agpr):
        s_saved = cfg.S
        cfg.S = 2
        super().__init__(a, cfg, V, S, acc_in_agpr)
        cfg.S = s_saved
        self.U = cfg.S if cfg.S % 2 == 0 else 2 * cfg.S

    def xreads(self, t):
        c = self.c
        out = []
        st = t % c.S
        for j in range(c.TJ):
            for k in range(2):
                if c.native_a:
                    off = c.A_BASE + st * c.A_STAGE + (j * 2 + k) * 1024
                    v = self.vXrd[0]
                else:
                    off = c.A_BASE + st * c.A_STAGE + j * 16 * 128
                    v = self.vXrd[k]
                assert off < 65536
                out.append(f"ds_read_b128 {vr(self.xf[t%2][j][k],4)}, {vr(v)} offset:{off}")
        return out
    def wreads(self, t, i):
        c = self.c
        out = []
        for k in range(2):
            for half in range(2):
                hoff = half * (16 * 128 if c.native_a else 512)
                off = (t % c.S) * c.B_STAGE + (i // c.BPP) * 8192 + k * 32 * 128 + hoff
                assert off < 65536
                out.append(f"ds_read_b64_tr_b16 {vr(self.wf[i%self.NWB][k]+2*half,2)}, {vr(self.vWrd[i%c.BPP])} offset:{off}")
        return out

    def zero_acc(self):
        c = self.c
        for i in range(c.TI):
            for j in range(c.TJ):
                for r in range(c.AR):
                    if self.acc_in_agpr: self.a(f"v_accvgpr_write_b32 {self.accreg(i,j,r)}, 0")
                    else: self.a(f"v_mov_b32 {self.accreg(i,j,r)}, 0")

    def step3(self, t, dX, dW, rdX, rdW, vm, barrier=True, extra=None):
        a, c = self.a, self.c
        TI, S = c.TI, c.S
        nm = 2 * c.TJ
        xr = self.xreads(t + 1) if rdX else []
        nrx = TI - 2
        xper = [len(xr) * (r + 1) // nrx - len(xr) * r // nrx for r in range(nrx)]
        dx = self.dmaA(t % S) if dX else []
        dxper = [len(dx) * (r + 1) // nrx - len(dx) * r // nrx for r in range(nrx)] if c.TI <= 4 else \
                [min(5, max(0, len(dx) - 5 * r)) for r in range(nrx)]
        dw = self.dmaB(t % S) if dW else []
        hist = self._hist
        for i in range(TI):
            w2, x2 = hist[-2]; w1, x1 = hist[-1]
            if i == TI - 2:
                if barrier:
                    a(f"s_waitcnt vmcnt({vm}) lgkmcnt(0)")
                    a("s_barrier")
                else:
                    a("s_waitcnt lgkmcnt(0)")
            elif i == TI - 1:
                pass
            else:
                a(f"s_waitcnt lgkmcnt({min(15, x2 + w1 + x1)})")
            if i + 2 < TI: wr = self.wreads(t, i + 2)
            elif rdW: wr = self.wreads(t + 1, i + 2 - TI)
            else: wr = []
            xs = []; ds = []
            if i < nrx:
                xs = xr[:xper[i]]; xr = xr[xper[i]:]
                ds = dx[:dxper[i]]; dx = dx[dxper[i]:]
            else:
                h = (len(dw) + 1) // 2 if i == TI - 2 else len(dw)
                ds = dw[:h]; dw = dw[h:]
            fill = self._mix1(wr + xs, ds)
            a(merge(self.row_mfmas(t, i), fill, 0, nm - 1))
            hist = [hist[-1], (len(wr), len(xs))]
        assert not dx and not dw and not xr
        self._hist = hist

    def prologue_dma(self):
        a, c = self.a, self.c
        for st in range(c.S):
            for g in self.dmaA(st): a(g)
            for g in self.dmaB(st): a(g)

    def tail_len(self, n=None):
        c = self.c
        T = c.S + 1
        while T % self.U: T += 1
        return T

    def mainloop(self, s_loopcount, label, st=None, sidx=1):
        a, c = self.a, self.c
        S, PA, PB, U = c.S, c.PA, c.PB, self.U
        a(f"s_waitcnt vmcnt({(S-2)*(PA+PB) + PB})")
        a("s_barrier")
        a(self.xreads(0)); a(self.wreads(0, 0)); a(self.wreads(0, 1))
        a("s_waitcnt lgkmcnt(0)")
        a("s_barrier")
        if st: st.stamp(sidx); a("s_waitcnt lgkmcnt(0)")
        self._hist = [(4, 0), (4, 0)]
        a.label(label)
        for t in range(U):
            self.step3(t, True, True, True, True, (S - 2) * (PA + PB))
        assert self._hist == [(4, 0), (4, 0)]
        a(f"s_sub_u32 {sr(s_loopcount)}, {sr(s_loopcount)}, 1")
        a(f"s_cmp_lg_u32 {sr(s_loopcount)}, 0")
        a(f"s_cbranch_scc1 {label}")
        T = self.tail_len()
        for k in range(T):
            r = k - T
            dX = r + S <= -1
            dW = r + S <= -1
            seq = []
            for u in range(r - 2, r + S + 1):
                if u <= -1: seq.append(("X", u))
                if u <= -1 and u <= r + S - 1: seq.append(("W", u))
            need = [x for x in (("W", r + 1), ("X", r + 2)) if x[1] <= -1]
            if need:
                last = max(seq.index(x) for x in need)
                vm = sum(PA if x[0] == "X" else PB for x in seq[last + 1:])
            else:
                vm = 0
            self.step3(k, dX, dW, r + 1 <= -1, r + 1 <= -1, vm, barrier=(r + 1 <= -1))
```

```python
from asmb import *
from gemm_gen import GemmCfg
from gemm2 import GemmCore2
import math, struct
from stamps import Stamper

def f32(x): return "0x%08x" % struct.unpack("<I", struct.pack("<f", x))[0]

WS_Q, WS_K, WS_V, WS_Z, WS_G = 0, 16 << 20, 32 << 20, 48 << 20, 80 << 20
WS_CNT, WS_PART = 81 << 20, 82 << 20
Z_KB = 240
QSCALE = math.log2(math.e) / math.sqrt(128.0)

def srd(a, s, lo, hi, nbytes, off=0):
    if off:
        a(f"s_add_u32 {sr(s)}, {sr(lo)}, {off}")
        a(f"s_addc_u32 {sr(s+1)}, {sr(hi)}, 0")
    else:
        a(f"s_mov_b32 {sr(s)}, {sr(lo)}")
        a(f"s_mov_b32 {sr(s+1)}, {sr(hi)}")
    a(f"s_mov_b32 {sr(s+2)}, {nbytes}")
    a(f"s_mov_b32 {sr(s+3)}, 0x20000")

def gen_k1(a, name="k1_kernel"):
    cfgN = GemmCfg(256, 256, 2, 2, native_a=False, swap=False, stages=2, ms=16)
    cfgS = GemmCfg(256, 256, 2, 2, native_a=False, swap=True, stages=2, ms=16)
    kernel_header(a, name)
    V = RegAlloc(1, 256, "v"); S = RegAlloc(36, 87, "s"); st = Stamper(a, 0)
    core = GemmCore2(a, cfgN, V, S, True)
    vlane = V.alloc("lane"); vt = [V.alloc(f"t{i}") for i in range(4)]
    vout = V.alloc("vout")
    s_wave = S.alloc("wave"); s_wt = S.alloc("wt"); s_wn = S.alloc("wn")
    s_tm = S.alloc("tm"); s_col = S.alloc("col"); s_type = S.alloc("type")
    s_ab = S.alloc("ab"); s_lda = S.alloc("lda"); s_bb = S.alloc("bb"); s_ldw = S.alloc("ldw")
    s_scale = S.alloc("scale")
    sO = S.alloc("srdO", 4, 4)
    a("s_cmp_ge_u32 s2, 640")
    a(f"s_cbranch_scc1 {name}_end")
    st.stamp(0)
    a("s_mov_b32 s87, s2")
    a("s_load_dwordx16 s[8:23], s[0:1], 0")
    a("s_load_dwordx8 s[24:31], s[0:1], 64")
    a("s_load_dwordx4 s[32:35], s[0:1], 96")
    a(f"v_and_b32 {vr(vlane)}, 63, v0")
    a(f"v_lshrrev_b32 {vr(vt[0])}, 6, v0")
    a("s_nop 0")
    a(f"v_readfirstlane_b32 {sr(s_wave)}, {vr(vt[0])}")
    a("s_nop 3")
    a(f"s_lshr_b32 {sr(s_wt)}, {sr(s_wave)}, 1")
    a(f"s_and_b32 {sr(s_wn)}, {sr(s_wave)}, 1")
    a("s_and_b32 s3, s2, 7")
    a("s_lshr_b32 s4, s2, 3")
    a(f"s_and_b32 {sr(s_tm)}, s4, 7")
    a("s_lshr_b32 s4, s4, 3")
    a("s_mul_i32 s5, s3, 6")
    a("s_mul_i32 s6, s3, 5")
    a("s_add_u32 s6, s6, 4")
    a("s_cmp_lt_u32 s3, 4")
    a("s_cselect_b32 s5, s5, s6")
    a("s_cselect_b32 s7, 6, 5")
    a(f"s_mul_i32 {sr(s_col)}, s3, 3")
    a("s_mul_i32 s6, s3, 5")
    a("s_sub_u32 s6, s6, 8")
    a("s_cmp_lt_u32 s3, 4")
    a(f"s_cselect_b32 s6, {sr(s_col)}, s6")
    a("s_cmp_lt_u32 s4, s7")
    a(f"s_cbranch_scc1 {name}_big")
    a("s_sub_u32 s4, s4, s7")
    a("s_cmp_lt_u32 s3, 4")
    a("s_cselect_b32 s7, 3, 5")
    a("s_cmp_ge_u32 s4, s7")
    a(f"s_cbranch_scc1 {name}_g")
    a("s_add_u32 s4, s4, s6")
    a(f"s_lshr_b32 {sr(s_col)}, s4, 1")
    a(f"s_and_b32 {sr(s_type)}, s4, 1")
    a(f"s_add_u32 {sr(s_type)}, {sr(s_type)}, 1")
    a("s_waitcnt lgkmcnt(0)")
    srd(a, core.sA, 10, 11, 2048 * 512 * 2)
    a(f"s_cmp_eq_u32 {sr(s_type)}, 1")
    a("s_cselect_b32 s4, s14, s16")
    a("s_cselect_b32 s5, s15, s17")
    srd(a, core.sB, 4, 5, 512 * 4096 * 2)
    a(f"s_lshl_b32 s4, {sr(s_type)}, 24")
    a(f"s_add_u32 {sr(sO)}, s34, s4"); a(f"s_addc_u32 {sr(sO+1)}, s35, 0")
    a(f"s_mov_b32 {sr(sO+2)}, {16<<20}"); a(f"s_mov_b32 {sr(sO+3)}, 0x20000")
    a(f"s_mov_b32 {sr(s_lda)}, 1024")
    a(f"s_mov_b32 {sr(s_ldw)}, 8192")
    a(f"s_mov_b32 {sr(core.sLoop)}, {(8-4)//2}")
    a(f"s_mov_b32 {sr(s_scale)}, 1.0")
    a(f"s_lshl_b32 {sr(s_bb)}, {sr(s_col)}, 9")
    a(f"s_lshl_b32 s3, {sr(s_wave)}, 7")
    a(f"s_add_u32 {sr(s_bb)}, {sr(s_bb)}, s3")
    a(f"s_branch {name}_common")
    a.label(f"{name}_big")
    a("s_add_u32 s4, s4, s5")
    a("s_mul_i32 s5, s4, 373")
    a("s_lshr_b32 s5, s5, 12")
    a("s_mul_i32 s6, s5, 11")
    a("s_sub_u32 s6, s4, s6")
    a("s_waitcnt lgkmcnt(0)")
    srd(a, core.sA, 8, 9, 2048 * 1024 * 2)
    a(f"s_mov_b32 {sr(s_lda)}, 2048")
    a(f"s_mov_b32 {sr(core.sLoop)}, {(16-4)//2}")
    a("s_cmp_lt_u32 s6, 4")
    a(f"s_cbranch_scc0 {name}_gu")
    a(f"s_lshl_b32 {sr(s_col)}, s5, 2")
    a(f"s_add_u32 {sr(s_col)}, {sr(s_col)}, s6")
    a(f"s_mov_b32 {sr(s_type)}, 0")
    srd(a, core.sB, 12, 13, 1024 * 4096 * 2)
    srd(a, sO, 34, 35, 16 << 20, WS_Q)
    a(f"s_mov_b32 {sr(s_ldw)}, 8192")
    a(f"s_mov_b32 {sr(s_scale)}, {f32(QSCALE)}")
    a(f"s_lshl_b32 {sr(s_bb)}, {sr(s_col)}, 9")
    a(f"s_lshl_b32 s3, {sr(s_wave)}, 7")
    a(f"s_add_u32 {sr(s_bb)}, {sr(s_bb)}, s3")
    a(f"s_branch {name}_common")
    a.label(f"{name}_gu")
    a(f"s_mul_i32 {sr(s_col)}, s5, 7")
    a(f"s_add_u32 {sr(s_col)}, {sr(s_col)}, s6")
    a(f"s_sub_u32 {sr(s_col)}, {sr(s_col)}, 4")
    a(f"s_mov_b32 {sr(s_type)}, 3")
    a(f"s_and_b32 s3, {sr(s_wave)}, 1")
    a("s_cmp_eq_u32 s3, 0")
    a("s_cselect_b32 s4, s22, s24")
    a("s_cselect_b32 s5, s23, s25")
    srd(a, core.sB, 4, 5, 1024 * 3584 * 2)
    srd(a, sO, 34, 35, 128 * Z_KB * 1024, WS_Z)
    a(f"s_mov_b32 {sr(s_ldw)}, 7168")
    a(f"s_mov_b32 {sr(s_scale)}, 1.0")
    a(f"s_lshl_b32 {sr(s_bb)}, {sr(s_col)}, 8")
    a(f"s_lshr_b32 s3, {sr(s_wave)}, 1")
    a("s_lshl_b32 s3, s3, 7")
    a(f"s_add_u32 {sr(s_bb)}, {sr(s_bb)}, s3")
    a.label(f"{name}_common")
    a(f"s_lshl_b32 s3, {sr(s_tm)}, 8")
    a(f"s_mul_i32 {sr(s_ab)}, s3, {sr(s_lda)}")
    core.setup_src(vlane, s_wave, s_ab, s_lda, s_bb, s_ldw, vt)
    core.setup_lane_consts(vlane, s_wave, s_wt, s_wn, vt)
    core.prologue_dma()
    a(f"v_lshlrev_b32 {vr(vout)}, 4, {vr(vlane)}")
    a(f"s_cmp_eq_u32 {sr(s_type)}, 2")
    a(f"s_cbranch_scc1 {name}_vpath")
    core.mainloop(core.sLoop, f"{name}_loopN", st)
    st.stamp(2)
    T = core.xf[0][0][0]
    a("s_nop 7")
    a(f"s_cmp_eq_u32 {sr(s_type)}, 3")
    a(f"s_cbranch_scc1 {name}_epi_gu")
    a(f"s_lshl_b32 s3, {sr(s_col)}, 1")
    a(f"s_add_u32 s3, s3, {sr(s_wn)}")
    a("s_lshl_b32 s3, s3, 19")
    a(f"s_lshl_b32 s4, {sr(s_tm)}, 16")
    a("s_add_u32 s3, s3, s4")
    a(f"s_lshl_b32 s4, {sr(s_wt)}, 15")
    a("s_add_u32 s3, s3, s4")
    a(f"v_add_u32 {vr(vout)}, s3, {vr(vout)}")
    cnt = 0
    for j in range(8):
        a(f"s_mov_b32 s3, {j*4096}")
        for u in range(4):
            b = T + (cnt % 4) * 12; cnt += 1
            for e in range(8):
                a(f"v_accvgpr_read_b32 {vr(b+4+e)}, {core.accreg(2*u + e//4, j, e%4)}")
            for p in range(4):
                a(f"v_pk_mul_f32 {vr(b+4+2*p,2)}, {vr(b+4+2*p,2)}, {sr(s_scale)} op_sel_hi:[1,0]" if False else
                  f"v_mul_f32 {vr(b+4+2*p)}, {sr(s_scale)}, {vr(b+4+2*p)}")
                a(f"v_mul_f32 {vr(b+5+2*p)}, {sr(s_scale)}, {vr(b+5+2*p)}")
            for p in range(4):
                a(f"v_cvt_pk_bf16_f32 {vr(b+p)}, {vr(b+4+2*p)}, {vr(b+5+2*p)}")
            a(f"buffer_store_dwordx4 {vr(b,4)}, {vr(vout)}, {sr(sO,4)}, s3 offen offset:{u*1024}")
    st.flush("s87", 4)
    a("s_endpgm")
    a.label(f"{name}_epi_gu")
    a(f"s_lshl_b32 s3, {sr(s_tm)}, 4")
    a(f"s_lshl_b32 s4, {sr(s_wt)}, 3")
    a("s_add_u32 s3, s3, s4")
    a(f"s_mul_i32 s3, s3, {Z_KB*1024}")
    a(f"s_lshl_b32 s4, {sr(s_col)}, 12")
    a("s_add_u32 s3, s3, s4")
    a(f"s_lshl_b32 s4, {sr(s_wn)}, 11")
    a("s_add_u32 s3, s3, s4")
    a(f"v_add_u32 {vr(vout)}, s3, {vr(vout)}")
    c1 = -2.0 * math.sqrt(2.0 / math.pi) * math.log2(math.e)
    c2 = c1 * 0.044715
    a(f"s_mov_b32 s4, {f32(c1)}"); a(f"s_mov_b32 s5, {f32(c2)}")
    a(f"v_mov_b32 {vr(vt[0])}, s4")
    cnt = 0
    for j in range(8):
        a(f"s_mov_b32 s3, {j*Z_KB*1024}")
        for u in range(2):
            b = T + (cnt % 4) * 28; cnt += 1
            X, U, E = b + 4, b + 12, b + 20
            for e in range(8):
                a(f"v_accvgpr_read_b32 {vr(X+e)}, {core.accreg(2*u + e//4, j, e%4)}")
            for e in range(8):
                a(f"v_mul_f32 {vr(E+e)}, {vr(X+e)}, {vr(X+e)}")
            for e in range(8):
                a(f"v_fma_f32 {vr(E+e)}, {vr(E+e)}, s5, {vr(vt[0])}")
            for e in range(8):
                a(f"v_mul_f32 {vr(E+e)}, {vr(E+e)}, {vr(X+e)}")
            for e in range(8):
                a(f"v_exp_f32 {vr(E+e)}, {vr(E+e)}")
            for e in range(8):
                a(f"v_accvgpr_read_b32 {vr(U+e)}, {core.accreg(4 + 2*u + e//4, j, e%4)}")
            for e in range(8):
                a(f"v_add_f32 {vr(E+e)}, 1.0, {vr(E+e)}")
            for e in range(8):
                a(f"v_rcp_f32 {vr(E+e)}, {vr(E+e)}")
            for e in range(8):
                a(f"v_mul_f32 {vr(X+e)}, {vr(X+e)}, {vr(U+e)}")
            for e in range(8):
                a(f"v_mul_f32 {vr(X+e)}, {vr(X+e)}, {vr(E+e)}")
            for p in range(4):
                a(f"v_cvt_pk_bf16_f32 {vr(b+p)}, {vr(X+2*p)}, {vr(X+2*p+1)}")
            a(f"buffer_store_dwordx4 {vr(b,4)}, {vr(vout)}, {sr(sO,4)}, s3 offen offset:{u*1024}")
    st.flush("s87", 4)
    a("s_endpgm")
    a.label(f"{name}_vpath")
    core.c = cfgS
    core.mainloop(core.sLoop, f"{name}_loopS", st)
    st.stamp(2)
    core.c = cfgN
    a("s_nop 7")
    a(f"s_lshl_b32 s3, {sr(s_col)}, 1")
    a(f"s_add_u32 s3, s3, {sr(s_wn)}")
    a("s_lshl_b32 s3, s3, 19")
    a(f"s_lshl_b32 s4, {sr(s_tm)}, 16")
    a("s_add_u32 s3, s3, s4")
    a(f"s_lshl_b32 s4, {sr(s_wt)}, 15")
    a("s_add_u32 s3, s3, s4")
    a(f"v_add_u32 {vr(vout)}, s3, {vr(vout)}")
    cnt = 0
    for uu in range(4):
        for i in range(8):
            if i % 4 == 0: a(f"s_mov_b32 s3, {uu*8192 + i*1024}")
            b = T + (cnt % 4) * 12; cnt += 1
            for e in range(8):
                a(f"v_accvgpr_read_b32 {vr(b+4+e)}, {core.accreg(i, 2*uu + e//4, e%4)}")
            for p in range(4):
                a(f"v_cvt_pk_bf16_f32 {vr(b+p)}, {vr(b+4+2*p)}, {vr(b+5+2*p)}")
            a(f"buffer_store_dwordx4 {vr(b,4)}, {vr(vout)}, {sr(sO,4)}, s3 offen offset:{(i%4)*1024}")
    st.flush("s87", 4)
    a("s_endpgm")
    a.label(f"{name}_g")
    a("s_and_b32 s3, s2, 7")
    a("s_lshl_b32 s3, s3, 3")
    a(f"s_add_u32 s3, s3, {sr(s_tm)}")
    a("s_lshl_b32 s3, s3, 6")
    a(f"s_lshl_b32 s4, {sr(s_wave)}, 4")
    a("s_add_u32 s3, s3, s4")
    a("s_waitcnt lgkmcnt(0)")
    srd(a, core.sA, 8, 9, 2048 * 1024 * 2)
    srd(a, core.sB, 28, 29, 2048)
    srd(a, sO, 34, 35, 8192, WS_G)
    a("s_add_u32 s4, s34, %d" % WS_CNT); a("s_addc_u32 s5, s35, 0"); a("s_mov_b32 s6, 65536"); a("s_mov_b32 s7, 0x20000")
    a("v_lshlrev_b32 v2, 3, v0")
    a("s_lshr_b32 s8, s3, 6"); a("s_lshl_b32 s8, s8, 11")
    a("v_add_u32 v2, s8, v2")
    a("v_mov_b32 v4, 0"); a("v_mov_b32 v5, 0")
    a("buffer_store_dwordx2 v[4:5], v2, s[4:7], 0 offen")
    G = 8
    a(f"v_lshlrev_b32 v2, 5, {vr(vlane)}")
    a(f"buffer_load_dwordx4 v[{G}:{G+3}], v2, {sr(core.sB,4)}, 0 offen")
    a(f"buffer_load_dwordx4 v[{G+4}:{G+7}], v2, {sr(core.sB,4)}, 0 offen offset:16")
    a("s_lshl_b32 s4, s3, 11")
    a("v_add_u32 v3, s4, v2")
    XB = 32
    for t in range(16):
        a(f"s_mov_b32 s5, {t*2048}")
        a(f"buffer_load_dwordx4 v[{XB+8*t}:{XB+8*t+3}], v3, {sr(core.sA,4)}, s5 offen")
        a(f"buffer_load_dwordx4 v[{XB+8*t+4}:{XB+8*t+7}], v3, {sr(core.sA,4)}, s5 offen offset:16")
    a("s_waitcnt vmcnt(32)")
    for r in range(8):
        a(f"v_lshlrev_b32 v{16+2*r}, 16, v{G+r}")
        a(f"v_and_b32 v{17+2*r}, 0xffff0000, v{G+r}")
    a("v_mov_b32 v6, 0")
    for t in range(16):
        a(f"s_waitcnt vmcnt({2*(15-t)})")
        acc = 4
        for r in range(8):
            x = XB + 8 * t + r
            a(f"v_lshlrev_b32 v5, 16, v{x}")
            if r == 0: a(f"v_mul_f32 v{acc}, v5, v{16+2*r}")
            else: a(f"v_fmac_f32 v{acc}, v5, v{16+2*r}")
            a(f"v_and_b32 v5, 0xffff0000, v{x}")
            a(f"v_fmac_f32 v{acc}, v5, v{17+2*r}")
        a("s_nop 1")
        a(f"v_add_f32_dpp v{acc}, v{acc}, v{acc} quad_perm:[1,0,3,2] row_mask:0xf bank_mask:0xf")
        a("s_nop 1")
        a(f"v_add_f32_dpp v{acc}, v{acc}, v{acc} quad_perm:[2,3,0,1] row_mask:0xf bank_mask:0xf")
        a("s_nop 1")
        a(f"v_add_f32_dpp v{acc}, v{acc}, v{acc} row_half_mirror row_mask:0xf bank_mask:0xf")
        a("s_nop 1")
        a(f"v_add_f32_dpp v{acc}, v{acc}, v{acc} row_mirror row_mask:0xf bank_mask:0xf")
        a("s_nop 1")
        a(f"v_readlane_b32 s4, v{acc}, 0")
        a(f"v_readlane_b32 s5, v{acc}, 16")
        a(f"v_readlane_b32 s6, v{acc}, 32")
        a(f"v_readlane_b32 s7, v{acc}, 48")
        a("s_nop 1")
        a("v_mov_b32 v5, s4")
        a("v_add_f32 v5, s5, v5")
        a("v_add_f32 v5, s6, v5")
        a("v_add_f32 v5, s7, v5")
        a(f"v_cmp_eq_u32 vcc, {t}, {vr(vlane)}")
        a("s_nop 1")
        a("v_cndmask_b32 v6, v6, v5, vcc")
    a(f"v_mul_f32 v6, {f32(-math.log2(math.e))}, v6")
    a("v_exp_f32 v6, v6")
    a("s_nop 0")
    a("v_add_f32 v6, 1.0, v6")
    a("v_rcp_f32 v6, v6")
    a(f"v_add_u32 v7, s3, {vr(vlane)}")
    a("v_lshlrev_b32 v7, 2, v7")
    a(f"v_cmp_gt_u32 vcc, 16, {vr(vlane)}")
    a("s_and_saveexec_b64 s[4:5], vcc")
    a(f"buffer_store_dword v6, v7, {sr(sO,4)}, 0 offen")
    a.label(f"{name}_end")
    a("s_endpgm")
    assert V.next <= 192 + 8
    acc_off = (V.next + 3) // 4 * 4
    return dict(name=name, nv=acc_off + 256, acc_off=acc_off, grid=640, block=256, lds=cfgN.LDS)
```

```python
from asmb import *
from stamps import Stamper
import stamps
from k1_gen import srd, f32, WS_Q, WS_K, WS_V, WS_Z, Z_KB

MF = "v_mfma_f32_16x16x32_bf16"
PREFETCH_W = True
BIAS = 7.0
NEG = -1.0e30

class RD:
    def __init__(self, tag, text): self.tag, self.text = tag, text
class WAIT:
    def __init__(self, *tags): self.tags = tags

def resolve(seq):
    out = []; issued = 0; pos = {}; done = 0
    for it in seq:
        if isinstance(it, RD):
            pos[it.tag] = issued; issued += 1; out.append(it.text)
        elif isinstance(it, WAIT):
            need = max(pos[t] for t in it.tags if t in pos) + 1 if any(t in pos for t in it.tags) else 0
            if need > done:
                n = issued - need
                out.append(f"s_waitcnt lgkmcnt({min(n, 15)})")
                done = max(done, issued - min(n, 15))
        else:
            out.append(it)
    return out

def flat(items):
    o = []
    for x in items:
        if isinstance(x, (list, tuple)): o.extend(flat(x))
        else: o.append(x)
    return o

def gen_k2(a, name="k2_kernel"):
    kernel_header(a, name)
    V = RegAlloc(1, 256, "v"); S = RegAlloc(12, 87, "s"); st = Stamper(a, 1)
    def O(db, qb): return (db * 4 + qb) * 4
    def L(qb): return 128 + qb * 4
    def Q(qb, ks): return 144 + (qb * 4 + ks) * 4
    ONES = 208
    def VF(set_, u): return 212 + (set_ * 2 + u) * 4
    NA = 244
    vS = V.alloc("S", 128, 4)
    def Sb(buf, kvb, qb): return vS + ((buf * 4 + kvb) * 4 + qb) * 4
    vP = V.alloc("P", 32, 4)
    def P(u, qb): return vP + (u * 4 + qb) * 4
    vK = V.alloc("K", 32, 4)
    def KF(set_, ks): return vK + (set_ * 4 + ks) * 4
    vNM = V.alloc("negm", 16, 4)
    vT = V.alloc("T", 16, 4)
    vM = V.alloc("moff", 4, 4)
    vD = V.alloc("delta", 4, 4)
    vlane = V.alloc("lane"); vKrd = V.alloc("Krd"); vVrd = V.alloc("Vrd"); vsrc = V.alloc("src"); vsrcV = V.alloc("srcV")
    vx16 = V.alloc("x16"); vx32 = V.alloc("x32"); vneg = V.alloc("neg"); vor = V.alloc("or"); vq = V.alloc("q"); vmrg = V.alloc("mrg"); vmrgR = V.alloc("mrgR")
    sQ = S.alloc("srdQ", 4, 4); sK = S.alloc("srdK", 4, 4); sV = S.alloc("srdV", 4, 4); sZ = S.alloc("srdZ", 4, 4)
    sMD = [S.alloc(f"maskD{r}", 2, 2) for r in range(4)]; sMB = S.alloc("maskB", 2, 2)
    sTri = [S.alloc(f"tri{r}", 2, 2) for r in range(4)]
    s_wave = S.alloc("wave"); s_qh = S.alloc("qh"); s_par = S.alloc("par"); s_head = S.alloc("head"); s_p = S.alloc("p")
    s_i = S.alloc("i"); s_n = S.alloc("n"); s_pass = S.alloc("pass"); s_m0 = S.alloc("m0w"); s_4k = S.alloc("c4k"); s_hb = S.alloc("headbase")
    sPF = S.alloc("srdPF", 4, 4)
    sPQ = [S.alloc(f"pfq{k}", 3) for k in range(4)]
    s_tog = S.alloc("pftog")
    vpf = V.alloc("vpf"); vdum = V.alloc("vdum")
    s_var = S.alloc("variant"); s_32k = S.alloc("c32k"); s_nrK = S.alloc("nrK"); s_nrV = S.alloc("nrV")

    a("s_cmp_ge_u32 s2, 256")
    a(f"s_cbranch_scc1 {name}_end")
    st.stamp(0)
    a("s_mov_b32 s87, s2")
    a("s_load_dwordx2 s[4:5], s[0:1], 104")
    a("s_load_dwordx2 s[8:9], s[0:1], 40")
    a("s_load_dwordx2 s[10:11], s[0:1], 72")
    a(f"v_and_b32 {vr(vlane)}, 63, v0")
    a(f"v_lshrrev_b32 {vr(vT)}, 6, v0")
    a("s_nop 0")
    a(f"v_readfirstlane_b32 {sr(s_wave)}, {vr(vT)}")
    a("s_nop 3")
    a(f"s_and_b32 {sr(s_qh)}, {sr(s_wave)}, 1")
    a(f"s_lshr_b32 {sr(s_par)}, {sr(s_wave)}, 1")
    a("s_and_b32 s3, s2, 7")
    a("s_lshr_b32 s6, s2, 3")
    a(f"s_and_b32 {sr(s_p)}, s6, 7")
    a("s_lshr_b32 s6, s6, 3")
    a("s_lshl_b32 s3, s3, 2")
    a(f"s_add_u32 {sr(s_head)}, s3, s6")
    a(f"s_lshl_b32 {sr(s_hb)}, {sr(s_head)}, 19")
    a(f"s_mov_b32 {sr(s_4k)}, 4096")
    a(f"s_mov_b32 {sr(s_32k)}, 32768")
    a(f"s_lshl_b32 {sr(s_m0)}, {sr(s_wave)}, 13")
    a("s_waitcnt lgkmcnt(0)")
    srd(a, sQ, 4, 5, 16 << 20, WS_Q)
    srd(a, sK, 4, 5, 16 << 20, WS_K)
    srd(a, sV, 4, 5, 16 << 20, WS_V)
    srd(a, sZ, 4, 5, 128 * Z_KB * 1024, WS_Z)
    a(f"s_lshl_b32 s3, s2, 2"); a(f"s_add_u32 s3, s3, {sr(s_wave)}")
    a("s_lshl_b32 s6, s3, 13")
    a(f"s_add_u32 {sr(sPQ[0])}, s8, s6"); a(f"s_addc_u32 {sr(sPQ[0]+1)}, s9, 0"); a(f"s_mov_b32 {sr(sPQ[0]+2)}, 8192")
    a("s_mul_i32 s6, s3, 7168")
    a(f"s_add_u32 {sr(sPQ[1])}, s10, s6"); a(f"s_addc_u32 {sr(sPQ[1]+1)}, s11, 0"); a(f"s_mov_b32 {sr(sPQ[1]+2)}, 7168")
    a("s_lshr_b32 s6, s3, 3"); a(f"s_mul_i32 s6, s6, {Z_KB*1024}")
    a("s_and_b32 s7, s3, 7"); a("s_mul_i32 s7, s7, 14336"); a("s_add_u32 s6, s6, s7")
    a(f"s_add_u32 {sr(sPQ[2])}, {sr(sZ)}, s6"); a(f"s_addc_u32 {sr(sPQ[2]+1)}, {sr(sZ+1)}, 0"); a(f"s_mov_b32 {sr(sPQ[2]+2)}, 8192")
    a(f"s_add_u32 {sr(sPQ[3])}, {sr(sPQ[2])}, 8192"); a(f"s_addc_u32 {sr(sPQ[3]+1)}, {sr(sPQ[2]+1)}, 0"); a(f"s_mov_b32 {sr(sPQ[3]+2)}, 6144")
    a(f"s_mov_b32 {sr(sPF+3)}, 0x20000")
    a(f"s_and_b32 {sr(s_tog)}, {sr(s_wave)}, 1")
    a(f"v_lshlrev_b32 {vr(vpf)}, 7, {vr(vlane)}")
    a(f"v_lshlrev_b32 {vr(vT)}, 4, {vr(vlane)}")
    a(f"s_lshl_b32 s3, {sr(s_par)}, 14")
    a(f"v_add_u32 {vr(vKrd)}, s3, {vr(vT)}")
    a(f"v_add_u32 {vr(vVrd)}, 0x10000, {vr(vKrd)}")
    a(f"v_xor_b32 {vr(vx16)}, 16, {vr(vlane)}"); a(f"v_lshlrev_b32 {vr(vx16)}, 2, {vr(vx16)}")
    a(f"v_xor_b32 {vr(vx32)}, 32, {vr(vlane)}"); a(f"v_lshlrev_b32 {vr(vx32)}, 2, {vr(vx32)}")
    a(f"v_mov_b32 {vr(vneg)}, {f32(NEG)}")
    a(f"s_mul_i32 s3, {sr(s_wave)}, 18432")
    a(f"v_add_u32 {vr(vmrg)}, s3, {vr(vT)}")
    a(f"s_xor_b32 s3, {sr(s_wave)}, 2")
    a("s_mul_i32 s3, s3, 18432")
    a(f"v_add_u32 {vr(vmrgR)}, s3, {vr(vT)}")
    a(f"v_lshrrev_b32 {vr(vT+1)}, 4, {vr(vlane)}")
    a(f"v_lshlrev_b32 {vr(vT+1)}, 2, {vr(vT+1)}")
    a(f"v_and_b32 {vr(vT+2)}, 15, {vr(vlane)}")
    for r in range(4):
        a(f"v_add_u32 {vr(vT+3)}, {r}, {vr(vT+1)}")
        a(f"v_cmp_gt_u32 {sr(sTri[r],2)}, {vr(vT+3)}, {vr(vT+2)}")
    a(f"v_mov_b32 {vr(vT)}, 0x3f803f80")
    for r in range(4): a(f"v_accvgpr_write_b32 {ar(ONES+r)}, {vr(vT)}")
    a(f"s_cmp_eq_u32 {sr(s_qh)}, {sr(s_par)}")
    for r in range(4):
        a(f"s_cselect_b64 {sr(sMD[r],2)}, {sr(sTri[r],2)}, 0")
    a(f"s_cselect_b64 {sr(sMB,2)}, -1, 0")
    a(f"s_mov_b32 {sr(s_pass)}, 0")
    a(f"s_sub_u32 {sr(s_i)}, 15, {sr(s_p)}")

    def dma(kind, stage):
        base = stage * 32768 + (65536 if kind == "V" else 0)
        s_, v_ = (sV, vsrcV) if kind == "V" else (sK, vsrc)
        out = []
        for q in range(8):
            g = []
            if q % 4 == 0:
                g.append(f"s_add_u32 m0, {sr(s_m0)}, {base + (q//4)*4096}")
                g.append("s_nop 0")
            so = "0" if q < 4 else sr(s_4k)
            g.append(f"buffer_load_dwordx4 {vr(v_)}, {sr(s_,4)}, {so} offen offset:{(q%4)*1024} lds")
            out.append(g)
        out.append([f"v_add_u32 {vr(v_)}, {sr(s_32k)}, {vr(v_)}"])
        return out
    def kread(stage, kvb):
        return [RD(("K", kvb, ks), f"ds_read_b128 {vr(KF(kvb%2, ks),4)}, {vr(vKrd)} offset:{stage*32768 + (kvb*4+ks)*1024}") for ks in range(4)]
    def vread(stage, db):
        return [RD(("V", db, u), f"ds_read_b128 {ar(VF(db%4, u),4)}, {vr(vVrd)} offset:{stage*32768 + (u*8+db)*1024}") for u in range(2)]
    def qk_group(buf, kvb, czero=False):
        out = []
        for qb in range(4):
            for ks in range(4):
                d = vr(Sb(buf, kvb, qb), 4)
                c = ("0" if czero else vr(vNM + qb * 4, 4)) if ks == 0 else d
                out.append(f"{MF} {d}, {vr(KF(kvb%2, ks),4)}, {ar(Q(qb,ks),4)}, {c}")
        return out
    def pv_group(db):
        out = []
        for qb in range(4):
            for u in range(2):
                d = ar(O(db, qb), 4)
                out.append(f"{MF} {d}, {ar(VF(db%4,u),4)}, {vr(P(u,qb),4)}, {d}")
        return out
    def l_group():
        out = []
        for qb in range(4):
            for u in range(2):
                d = ar(L(qb), 4)
                out.append(f"{MF} {d}, {ar(ONES,4)}, {vr(P(u,qb),4)}, {d}")
        return out
    def softmax_ops(buf):
        out = []
        cnt = 0
        nor = 0
        for kvb in range(4):
            for qb in range(4):
                t = vT + (cnt % 2) * 4; cnt += 1
                s = Sb(buf, kvb, qb)
                p = P(kvb // 2, qb) + (kvb % 2) * 2
                for r in range(4): out.append(f"v_exp_f32 {vr(t+r)}, {vr(s+r)}")
                out.append(f"v_cvt_pk_bf16_f32 {vr(p)}, {vr(t)}, {vr(t+1)}")
                out.append(f"v_cvt_pk_bf16_f32 {vr(p+1)}, {vr(t+2)}, {vr(t+3)}")
                if nor == 0: out.append(f"v_or_b32 {vr(vor)}, {vr(p)}, {vr(p+1)}")
                else: out.append(f"v_or3_b32 {vr(vor)}, {vr(vor)}, {vr(p)}, {vr(p+1)}")
                nor += 1
        return out
    def check(label):
        return [f"v_and_b32 {vr(vor)}, 0x40004000, {vr(vor)}",
                f"v_cmp_ne_u32 vcc, 0, {vr(vor)}",
                f"s_cbranch_vccnz {label}"]
    def fixmax(buf, has_next, first):
        o = ["s_nop 7", "s_waitcnt lgkmcnt(0)"]
        for qb in range(4):
            d = vD + qb
            regs = [Sb(buf, kvb, qb) + r for kvb in range(4) for r in range(4)]
            o.append(f"v_max3_f32 {vr(d)}, {vr(regs[0])}, {vr(regs[1])}, {vr(regs[2])}")
            for k in range(3, 15, 2):
                o.append(f"v_max3_f32 {vr(d)}, {vr(d)}, {vr(regs[k])}, {vr(regs[k+1])}")
            o.append(f"v_max_f32 {vr(d)}, {vr(d)}, {vr(regs[15])}")
        for vx in (vx16, vx32):
            for qb in range(4): o.append(f"ds_bpermute_b32 {vr(vT+qb)}, {vr(vx)}, {vr(vD+qb)}")
            o.append("s_waitcnt lgkmcnt(0)")
            for qb in range(4): o.append(f"v_max_f32 {vr(vD+qb)}, {vr(vD+qb)}, {vr(vT+qb)}")
        for qb in range(4):
            o.append(f"v_add_f32 {vr(vD+qb)}, {f32(BIAS)}, {vr(vD+qb)}")
            if first:
                o.append(f"v_mov_b32 {vr(vM+qb)}, {vr(vD+qb)}")
            else:
                o.append(f"v_max_f32 {vr(vD+qb)}, 0, {vr(vD+qb)}")
                o.append(f"v_add_f32 {vr(vM+qb)}, {vr(vM+qb)}, {vr(vD+qb)}")
            for r in range(4): o.append(f"v_sub_f32 {vr(vNM+qb*4+r)}, 0, {vr(vM+qb)}")
        for b in ([buf, 1 - buf] if has_next else [buf]):
            for kvb in range(4):
                for qb in range(4):
                    for r in range(4):
                        s = Sb(b, kvb, qb) + r
                        o.append(f"v_sub_f32 {vr(s)}, {vr(s)}, {vr(vD+qb)}")
        if not first:
            for qb in range(4):
                o.append(f"v_sub_f32 {vr(vT+8+qb)}, 0, {vr(vD+qb)}")
                o.append(f"v_exp_f32 {vr(vT+8+qb)}, {vr(vT+8+qb)}")
            o.append("s_nop 0")
            for qb in range(4):
                regs = [O(db, qb) + r for db in range(8) for r in range(4)] + [L(qb) + r for r in range(4)]
                for k in range(0, len(regs), 4):
                    for e in range(4): o.append(f"v_accvgpr_read_b32 {vr(vT+e)}, {ar(regs[k+e])}")
                    for e in range(4): o.append(f"v_mul_f32 {vr(vT+e)}, {vr(vT+e)}, {vr(vT+8+qb)}")
                    for e in range(4): o.append(f"v_accvgpr_write_b32 {ar(regs[k+e])}, {vr(vT+e)}")
        o.append("s_nop 1")
        return o

    rare_blocks = []
    def phaseB(stage, pre_issued):
        seq = []
        if not pre_issued: seq += vread(stage, 0) + vread(stage, 1)
        seq += l_group()[:]
        for db in range(8):
            seq.append(WAIT(("V", db, 0), ("V", db, 1)))
            fill = vread(stage, db + 2) if db + 2 < 8 else []
            seq += merge(pv_group(db), fill, 0, 4)
        return seq

    def iteration(par):
        lab = f"{name}_rare{par}"
        kst = 1 - par
        vst = par
        seq = [f"s_waitcnt vmcnt({1 if (par == 1 and PREFETCH_W) else 0}) lgkmcnt(0)", "s_barrier"]
        seq += [f"s_add_u32 s3, {sr(s_n)}, 2", f"s_cmp_le_u32 s3, {sr(s_i)}", f"s_cselect_b32 {sr(sK+2)}, {sr(s_nrK)}, 0"]
        seq += kread(kst, 0) + kread(kst, 1)
        sm = softmax_ops(par)
        d = dma("K", par) + dma("V", 1 - par)
        if par == 0 and PREFETCH_W:
            pf = [f"s_xor_b32 {sr(s_tog)}, {sr(s_tog)}, 1",
                  f"s_mov_b32 {sr(sPF)}, {sr(sPQ[0])}", f"s_mov_b32 {sr(sPF+1)}, {sr(sPQ[0]+1)}",
                  f"s_cselect_b32 {sr(sPF+2)}, {sr(sPQ[0]+2)}, 0"]
            for k in range(3):
                for e in range(3):
                    pf.append(f"s_cselect_b32 {sr(sPQ[k]+e)}, {sr(sPQ[k+1]+e)}, {sr(sPQ[k]+e)}")
            pf.append(f"s_cselect_b32 {sr(sPQ[3]+2)}, 0, {sr(sPQ[3]+2)}")
            pf.append(f"buffer_load_dword {vr(vdum)}, {vr(vpf)}, {sr(sPF,4)}, 0 offen")
            pfg = [("ATOMIC", pf)]
        else:
            pfg = []
        npre = 21
        pre = sm[:npre]; sm = sm[npre:]
        seq += flat(merge(pre, d[:6], 0, npre))
        d = d[6:]
        per = (len(sm) + 3) // 4
        for kvb in range(4):
            seq.append(WAIT(*[("K", kvb, ks) for ks in range(4)]))
            fill = []
            if 1 <= kvb <= 2: fill += kread(kst, kvb + 1)
            if kvb == 3: fill += vread(vst, 0) + vread(vst, 1)
            dd = d[:6]; d = d[6:]
            sms = sm[kvb * per:(kvb + 1) * per]
            mixed = flat(merge(sms, fill + dd, 0, len(sms))) if sms else flat(fill + dd)
            seq += merge_keep(qk_group(1 - par, kvb), mixed)
        assert not d
        for g in pfg: seq += g[1]
        seq += check(lab)
        seq.append(f"{lab}_ret:")
        seq += phaseB(vst, True)
        rare_blocks.append((lab, par, True))
        return seq

    def merge_keep(main, fill):
        n = len(main); out = []; m = len(fill); k = 0
        for i in range(n):
            out.append(main[i])
            upto = (i + 1) * m // n
            while k < upto: out.append(fill[k]); k += 1
        return out

    def last(par):
        lab = f"{name}_rareL{par}"
        seq = [f"s_waitcnt vmcnt({1 if (par == 1 and PREFETCH_W) else 0}) lgkmcnt(0)", "s_barrier"]
        seq += [f"s_cmp_eq_u32 {sr(s_wave)}, 2", f"s_cbranch_scc1 {name}_merge"]
        seq += vread(par, 0) + vread(par, 1)
        for kvb in range(4):
            for qb in range(4):
                if kvb < qb: continue
                for r in range(4):
                    s = Sb(par, kvb, qb) + r
                    m = sMD[r] if kvb == qb else sMB
                    seq.append(f"v_cndmask_b32 {vr(s)}, {vr(s)}, {vr(vneg)}, {sr(m,2)}")
        if par == 0:
            seq += [f"s_cmp_lg_u32 {sr(s_i)}, 0", f"s_cbranch_scc1 {name}_nofirst"]
            seq += fixmax(0, False, True)
            seq.append(f"{name}_nofirst:")
        seq += softmax_ops(par)
        seq += check(lab)
        seq.append(f"{lab}_ret:")
        seq += phaseB(par, True)
        rare_blocks.append((lab, par, False))
        return seq

    def emit(seq):
        for x in resolve(flat(seq)):
            if x.endswith(":"): a.label(x[:-1])
            else: a(x)

    a.label(f"{name}_tile")
    a(f"s_lshl_b32 s3, {sr(s_i)}, 15")
    a(f"s_lshl_b32 s6, {sr(s_qh)}, 14")
    a("s_add_u32 s3, s3, s6")
    a(f"s_add_u32 s3, s3, {sr(s_hb)}")
    a(f"v_lshlrev_b32 {vr(vT)}, 4, {vr(vlane)}")
    a(f"v_add_u32 {vr(vq)}, s3, {vr(vT)}")
    a(f"s_add_u32 s3, {sr(s_hb)}, {sr(s_m0)}")
    a(f"v_add_u32 {vr(vsrc)}, s3, {vr(vT)}")
    a(f"v_mov_b32 {vr(vsrcV)}, {vr(vsrc)}")
    a(f"s_mov_b32 {sr(s_nrK)}, {16<<20}")
    a(f"s_mov_b32 {sr(sK+2)}, {16<<20}")
    for g in dma("K", 0): a(g)
    for qb in range(4):
        a(f"s_mov_b32 s3, {qb*4096}")
        for ks in range(4):
            a(f"buffer_load_dwordx4 {ar(Q(qb,ks),4)}, {vr(vq)}, {sr(sQ,4)}, s3 offen offset:{ks*1024}")
    for g in dma("V", 0): a(g)
    a(f"s_cmp_ge_u32 {sr(s_i)}, 1")
    a(f"s_cselect_b32 {sr(sK+2)}, {sr(s_nrK)}, 0")
    for g in dma("K", 1): a(g)
    for r in range(144): a(f"v_accvgpr_write_b32 {ar(r)}, 0")
    for qb in range(4): a(f"v_mov_b32 {vr(vM+qb)}, {vr(vneg)}")
    a(f"s_mov_b32 {sr(s_n)}, 0")
    a("s_waitcnt vmcnt(16)")
    a("s_barrier")
    if stamps.ENABLE:
        a(f"s_cmp_lg_u32 {sr(s_pass)}, 0"); a(f"s_cbranch_scc1 {name}_st1"); st.stamp(1); a("s_waitcnt lgkmcnt(0)"); a.label(f"{name}_st1")
    seq = kread(0, 0) + kread(0, 1)
    for kvb in range(4):
        seq.append(WAIT(*[("K", kvb, ks) for ks in range(4)]))
        fill = kread(0, kvb + 1) if 1 <= kvb <= 2 else []
        seq += merge(qk_group(0, kvb, czero=True), fill, 0, 8)
    emit(seq)
    a(f"s_cmp_eq_u32 {sr(s_i)}, 0")
    a(f"s_cbranch_scc1 {name}_last0")
    emit(fixmax(0, False, True))
    a.label(f"{name}_loop")
    emit(iteration(0))
    a(f"s_add_u32 {sr(s_n)}, {sr(s_n)}, 1")
    a(f"s_cmp_eq_u32 {sr(s_n)}, {sr(s_i)}")
    a(f"s_cbranch_scc1 {name}_last1")
    emit(iteration(1))
    a(f"s_add_u32 {sr(s_n)}, {sr(s_n)}, 1")
    a(f"s_cmp_lg_u32 {sr(s_n)}, {sr(s_i)}")
    a(f"s_cbranch_scc1 {name}_loop")
    a.label(f"{name}_last0")
    a("s_nop 7")
    emit(last(0))
    a(f"s_branch {name}_merge")
    a.label(f"{name}_last1")
    emit(last(1))
    a.label(f"{name}_merge")
    a("s_waitcnt lgkmcnt(0)")
    a("s_barrier")
    if stamps.ENABLE:
        st.stamp(4)
        a(f"s_cmp_lg_u32 {sr(s_pass)}, 0"); a(f"s_cbranch_scc1 {name}_st2"); st.stamp(2); a.label(f"{name}_st2"); a("s_waitcnt lgkmcnt(0)")
    a("s_nop 7")
    a(f"s_cmp_eq_u32 {sr(s_par)}, 0")
    a(f"s_cbranch_scc0 {name}_send1")
    def send(dbs):
        k = 0
        for db in dbs:
            for qb in range(4):
                a(f"ds_write_b128 {vr(vmrg)}, {ar(O(db,qb),4)} offset:{k*1024}"); k += 1
    send(range(4, 8))
    a(f"s_branch {name}_sent")
    a.label(f"{name}_send1")
    send(range(0, 4))
    a.label(f"{name}_sent")
    for qb in range(4): a(f"v_accvgpr_read_b32 {vr(vD+qb)}, {ar(L(qb))}")
    a(f"ds_write_b128 {vr(vmrg)}, {vr(vM,4)} offset:{16*1024}")
    a(f"ds_write_b128 {vr(vmrg)}, {vr(vD,4)} offset:{17*1024}")
    a("s_waitcnt lgkmcnt(0)")
    a("s_barrier")
    R = vS
    a(f"ds_read_b128 {vr(vT,4)}, {vr(vmrgR)} offset:{16*1024}")
    a(f"ds_read_b128 {vr(vT+4,4)}, {vr(vmrgR)} offset:{17*1024}")
    for k in range(16): a(f"ds_read_b128 {vr(R+4*k,4)}, {vr(vmrgR)} offset:{k*1024}")
    a("s_waitcnt lgkmcnt(15)")
    a("s_waitcnt lgkmcnt(14)") if False else None
    a("s_waitcnt lgkmcnt(0)")
    CA, CB = vNM, vNM + 4
    for qb in range(4):
        mm = vT + 8 + qb
        a(f"v_max_f32 {vr(mm)}, {vr(vM+qb)}, {vr(vT+qb)}")
        a(f"v_sub_f32 {vr(CA+qb)}, {vr(vM+qb)}, {vr(mm)}")
        a(f"v_sub_f32 {vr(CB+qb)}, {vr(vT+qb)}, {vr(mm)}")
        a(f"v_exp_f32 {vr(CA+qb)}, {vr(CA+qb)}")
        a(f"v_exp_f32 {vr(CB+qb)}, {vr(CB+qb)}")
        a("s_nop 0")
        a(f"v_mul_f32 {vr(mm)}, {vr(vD+qb)}, {vr(CA+qb)}")
        a(f"v_fmac_f32 {vr(mm)}, {vr(vT+4+qb)}, {vr(CB+qb)}")
        a(f"v_rcp_f32 {vr(mm)}, {vr(mm)}")
        a("s_nop 0")
        a(f"v_mul_f32 {vr(CA+qb)}, {vr(CA+qb)}, {vr(mm)}")
        a(f"v_mul_f32 {vr(CB+qb)}, {vr(CB+qb)}, {vr(mm)}")
    a(f"s_lshl_b32 s3, {sr(s_i)}, 3")
    a(f"s_lshl_b32 s6, {sr(s_qh)}, 2")
    a("s_add_u32 s3, s3, s6")
    a(f"s_mul_i32 s3, s3, {Z_KB*1024}")
    a(f"s_lshl_b32 s6, {sr(s_head)}, 12")
    a("s_add_u32 s3, s3, s6")
    a(f"s_lshl_b32 s6, {sr(s_par)}, 11")
    a("s_add_u32 s3, s3, s6")
    a(f"s_add_u32 s3, s3, {112*1024}")
    a(f"v_lshlrev_b32 {vr(vq)}, 4, {vr(vlane)}")
    a(f"v_add_u32 {vr(vq)}, s3, {vr(vq)}")
    a(f"s_cmp_eq_u32 {sr(s_par)}, 0")
    a(f"s_cbranch_scc0 {name}_fin1")
    def fin(db0):
        W = vS + 64
        cnt = 0
        for qb in range(4):
            a(f"s_mov_b32 s3, {qb*Z_KB*1024}")
            for uu in range(2):
                b = W + (cnt % 4) * 12; cnt += 1
                for e in range(8):
                    a(f"v_accvgpr_read_b32 {vr(b+4+e)}, {ar(O(db0 + 2*uu + e//4, qb) + e%4)}")
                for e in range(8):
                    a(f"v_mul_f32 {vr(b+4+e)}, {vr(b+4+e)}, {vr(CA+qb)}")
                for e in range(8):
                    k = (2 * uu + e // 4) * 4 + qb
                    a(f"v_fmac_f32 {vr(b+4+e)}, {vr(R+4*k+e%4)}, {vr(CB+qb)}")
                for p in range(4):
                    a(f"v_cvt_pk_bf16_f32 {vr(b+p)}, {vr(b+4+2*p)}, {vr(b+5+2*p)}")
                a(f"buffer_store_dwordx4 {vr(b,4)}, {vr(vq)}, {sr(sZ,4)}, s3 offen offset:{uu*1024}")
    fin(0)
    a(f"s_branch {name}_fin")
    a.label(f"{name}_fin1")
    fin(4)
    a.label(f"{name}_fin")
    a(f"s_cmp_lg_u32 {sr(s_pass)}, 0")
    a(f"s_cbranch_scc1 {name}_done")
    st.stamp(3)
    a(f"s_mov_b32 {sr(s_pass)}, 1")
    a(f"s_mov_b32 {sr(s_i)}, {sr(s_p)}")
    a("s_barrier")
    a(f"s_branch {name}_tile")
    a.label(f"{name}_done")
    st.flush("s87", 6)
    a.label(f"{name}_end")
    a("s_endpgm")
    for lab, par, has_next in rare_blocks:
        a.label(lab)
        emit(fixmax(par, has_next, False))
        emit(softmax_ops(par))
        a("s_nop 1")
        a(f"s_branch {lab}_ret")
    acc_off = (V.next + 3) // 4 * 4
    return dict(name=name, nv=acc_off + NA, acc_off=acc_off, grid=256, block=256, lds=131072)
```

```python
from asmb import *
from gemm_gen import GemmCfg
from gemm3 import GemmCore3
from stamps import Stamper
from k1_gen import srd, f32, WS_Z, WS_G, Z_KB, WS_CNT, WS_PART

def gen_k3(a, name="k3_kernel", stages=4, D=16, helper=False):
    cfg = GemmCfg(128, 128, 2, 2, native_a=True, swap=False, stages=stages, ms=16)
    kernel_header(a, name)
    V = RegAlloc(1, 256, "v"); S = RegAlloc(36, 87, "s"); st = Stamper(a, 2)
    core = GemmCore3(a, cfg, V, S, False)
    acc = core.accbase
    vlane = V.alloc("lane"); vt = [V.alloc(f"t{i}") for i in range(4)]
    vout = V.alloc("vout"); vg = V.alloc("g", 4); vpart = V.alloc("vpart"); vcnt = V.alloc("vcnt"); vone = V.alloc("one")
    s_wave = S.alloc("wave"); s_wt = S.alloc("wt"); s_wn = S.alloc("wn")
    s_tm = S.alloc("tm"); s_tn = S.alloc("tn"); s_half = S.alloc("half")
    s_ab = S.alloc("ab"); s_lda = S.alloc("lda"); s_bb = S.alloc("bb"); s_ldw = S.alloc("ldw")
    sO = S.alloc("srdO", 4, 4); sG = S.alloc("srdG", 4, 4); sP = S.alloc("srdP", 4, 4); sC = S.alloc("srdC", 4, 4)
    a("s_cmp_ge_u32 s2, 256")
    a(f"s_cbranch_scc1 {name}_end")
    st.stamp(0)
    a("s_mov_b32 s87, s2")
    a("s_load_dwordx16 s[8:23], s[0:1], 0")
    a("s_load_dwordx8 s[24:31], s[0:1], 64")
    a("s_load_dwordx4 s[32:35], s[0:1], 96")
    a(f"v_and_b32 {vr(vlane)}, 63, v0")
    a(f"v_lshrrev_b32 {vr(vt[0])}, 6, v0")
    a("s_nop 0")
    a(f"v_readfirstlane_b32 {sr(s_wave)}, {vr(vt[0])}")
    a("s_nop 3")
    a(f"s_lshr_b32 {sr(s_wt)}, {sr(s_wave)}, 1")
    a(f"s_and_b32 {sr(s_wn)}, {sr(s_wave)}, 1")
    a(f"s_and_b32 {sr(s_half)}, s2, 1")
    a("s_lshr_b32 s4, s2, 3")
    a("s_bfe_u32 s5, s2, 0x10002"); a("s_lshl_b32 s5, s5, 3")
    a("s_and_b32 s6, s4, 7"); a(f"s_add_u32 {sr(s_tm)}, s5, s6")
    a("s_bfe_u32 s5, s2, 0x10001"); a("s_lshl_b32 s5, s5, 2")
    a("s_lshr_b32 s6, s4, 3"); a(f"s_add_u32 {sr(s_tn)}, s5, s6")
    a("s_waitcnt lgkmcnt(0)")
    srd(a, core.sA, 34, 35, 128 * Z_KB * 1024, WS_Z)
    a(f"s_cmp_eq_u32 {sr(s_half)}, 0")
    a("s_cselect_b32 s4, s26, s18")
    a("s_cselect_b32 s5, s27, s19")
    srd(a, core.sB, 4, 5, 0)
    a(f"s_mov_b32 s6, {3584*2048}")
    a(f"s_cselect_b32 {sr(core.sB+2)}, s6, {4096*2048}")
    T = core.tail_len(); U = core.U
    assert (56 - T) % U == 0 and (64 - T) % U == 0
    a(f"s_cselect_b32 {sr(core.sLoop)}, {(56-T)//U}, {(64-T)//U}")
    a(f"s_cselect_b32 s6, 0, {112*1024}")
    srd(a, sO, 30, 31, 2048 * 1024 * 2)
    srd(a, sG, 34, 35, 8192, WS_G)
    srd(a, sP, 34, 35, 128 * 65536, WS_PART)
    srd(a, sC, 34, 35, 512 * 128, WS_CNT)
    a(f"s_mov_b32 {sr(s_lda)}, {Z_KB*1024}")
    a(f"s_mul_i32 {sr(s_ab)}, {sr(s_tm)}, {8*Z_KB*1024}")
    a(f"s_add_u32 {sr(s_ab)}, {sr(s_ab)}, s6")
    a(f"s_mov_b32 {sr(s_ldw)}, 2048")
    a(f"s_lshl_b32 {sr(s_bb)}, {sr(s_tn)}, 8")
    a(f"s_lshr_b32 s3, {sr(s_wave)}, 1")
    a("s_lshl_b32 s3, s3, 7")
    a(f"s_add_u32 {sr(s_bb)}, {sr(s_bb)}, s3")
    if helper:
        a(f"s_cmp_eq_u32 {sr(s_wave)}, 4")
        a(f"s_cbranch_scc1 {name}_helper")
    core.setup_src(vlane, s_wave, s_ab, s_lda, s_bb, s_ldw, vt)
    core.setup_lane_consts(vlane, s_wave, s_wt, s_wn, vt)
    a(f"s_lshl_b32 s3, {sr(s_tm)}, 7")
    a(f"s_lshl_b32 s4, {sr(s_wt)}, 6")
    a("s_add_u32 s3, s3, s4")
    a(f"v_and_b32 {vr(vt[0])}, 15, {vr(vlane)}")
    a(f"v_add_u32 {vr(vt[0])}, s3, {vr(vt[0])}")
    a(f"v_lshlrev_b32 {vr(vt[1])}, 2, {vr(vt[0])}")
    for j in range(4):
        a(f"buffer_load_dword {vr(vg+j)}, {vr(vt[1])}, {sr(sG,4)}, 0 offen offset:{j*64}")
    core.prologue_dma()
    core.zero_acc()
    a(f"v_lshlrev_b32 {vr(vout)}, 11, {vr(vt[0])}")
    a(f"v_lshrrev_b32 {vr(vt[2])}, 4, {vr(vlane)}")
    a(f"v_lshl_add_u32 {vr(vout)}, {vr(vt[2])}, 3, {vr(vout)}")
    a(f"s_lshl_b32 s3, {sr(s_tn)}, 8")
    a(f"s_lshl_b32 s4, {sr(s_wn)}, 7")
    a("s_add_u32 s3, s3, s4")
    a(f"v_add_u32 {vr(vout)}, s3, {vr(vout)}")
    a(f"s_lshl_b32 s3, {sr(s_tm)}, 3")
    a(f"s_add_u32 s3, s3, {sr(s_tn)}")
    a("s_lshl_b32 s3, s3, 2")
    a(f"s_add_u32 s3, s3, {sr(s_wave)}")
    a("s_lshl_b32 s4, s3, 14")
    a(f"v_lshlrev_b32 {vr(vpart)}, 4, {vr(vlane)}")
    a(f"v_add_u32 {vr(vpart)}, s4, {vr(vpart)}")
    a("s_lshl_b32 s4, s3, 7")
    a(f"v_mov_b32 {vr(vcnt)}, s4")
    core.mainloop(core.sLoop, f"{name}_loop", st, 1)
    st.stamp(2)
    a(f"v_mov_b32 {vr(vone)}, 1")
    a("s_mov_b64 s[6:7], exec")
    a("s_mov_b64 exec, 1")
    a(f"buffer_atomic_add {vr(vone)}, {vr(vcnt)}, {sr(sC,4)}, 0 offen sc0")
    a("s_waitcnt vmcnt(0)")
    a(f"v_readfirstlane_b32 s3, {vr(vone)}")
    a("s_mov_b64 exec, s[6:7]")
    a("s_nop 3")
    a("s_cmp_lg_u32 s3, 0")
    a(f"s_cbranch_scc1 {name}_second")
    for k in range(16):
        so = "0" if k < 4 else f"s{4}"
        if k % 4 == 0 and k: a(f"s_mov_b32 s4, {(k//4)*4096}")
        a(f"buffer_store_dwordx4 {vr(acc+4*k,4)}, {vr(vpart)}, {sr(sP,4)}, {so} offen offset:{(k%4)*1024} sc1")
    a("s_waitcnt vmcnt(0)")
    a(f"v_mov_b32 {vr(vone)}, 1")
    a("s_mov_b64 exec, 1")
    a(f"buffer_atomic_add {vr(vone)}, {vr(vcnt)}, {sr(sC,4)}, 0 offen offset:64")
    a("s_mov_b64 exec, s[6:7]")
    st.stamp(3); st.stamp(4)
    st.flush("s87", 6)
    a("s_endpgm")
    a.label(f"{name}_second")
    a("s_mov_b64 exec, 1")
    a.label(f"{name}_poll")
    a(f"buffer_load_dword {vr(vone)}, {vr(vcnt)}, {sr(sC,4)}, 0 offen offset:64 sc1")
    a("s_waitcnt vmcnt(0)")
    a(f"v_readfirstlane_b32 s3, {vr(vone)}")
    a("s_nop 3")
    a("s_cmp_lg_u32 s3, 0")
    a(f"s_cbranch_scc1 {name}_ready")
    a("s_sleep 4")
    a(f"s_branch {name}_poll")
    a.label(f"{name}_ready")
    a("s_mov_b64 exec, s[6:7]")
    st.stamp(3)
    R = core.xf[0][0][0]
    for k in range(16):
        so = "0" if k < 4 else f"s{4}"
        if k % 4 == 0 and k: a(f"s_mov_b32 s4, {(k//4)*4096}")
        a(f"buffer_load_dwordx4 {vr(R+4*k,4)}, {vr(vpart)}, {sr(sP,4)}, {so} offen offset:{(k%4)*1024} sc1")
    a(f"s_cmp_lg_u32 {sr(s_half)}, 0")
    a(f"s_cbranch_scc1 {name}_cg")
    for j in range(4): a(f"v_sub_f32 {vr(vg+j)}, 1.0, {vr(vg+j)}")
    a.label(f"{name}_cg")
    W = core.wf[0][0]
    cnt = 0
    for i in range(4):
        for j in range(4):
            k = i * 4 + j
            a(f"s_waitcnt vmcnt({15 - k + cnt})")
            b = W + (cnt % 4) * 8; cnt += 1
            o = k * 4
            for r in range(4):
                a(f"v_sub_f32 {vr(b+2+r)}, {vr(acc+o+r)}, {vr(R+o+r)}")
            for r in range(4):
                a(f"v_fma_f32 {vr(b+2+r)}, {vr(b+2+r)}, {vr(vg+j)}, {vr(R+o+r)}")
            a(f"v_cvt_pk_bf16_f32 {vr(b)}, {vr(b+2)}, {vr(b+3)}")
            a(f"v_cvt_pk_bf16_f32 {vr(b+1)}, {vr(b+4)}, {vr(b+5)}")
            a(f"s_mov_b32 s3, {j*16*2048}")
            a(f"buffer_store_dwordx2 {vr(b,2)}, {vr(vout)}, {sr(sO,4)}, s3 offen offset:{i*32}")
    st.stamp(4)
    st.flush("s87", 6)
    a.label(f"{name}_end")
    a("s_endpgm")
    acc_off = (V.next + 3) // 4 * 4
    return dict(name=name, nv=acc_off, acc_off=acc_off, grid=256, block=256, lds=cfg.LDS)
```

```python
from asmb import *
ENABLE = False
WS_STAMP = 96 << 20
class Stamper:
    def __init__(self, a, kidx, ws_lo=None, ws_hi=None):
        self.a, self.k, self.n = a, kidx, 0
    def stamp(self, idx):
        if not ENABLE: return
        self.a(f"s_memrealtime s[{88+2*idx}:{89+2*idx}]")
    def flush(self, wg_sgpr, nst):
        if not ENABLE: return
        a = self.a
        a(f"s_memrealtime s[{88+2*(nst-1)}:{89+2*(nst-1)}]")
        a("s_load_dwordx2 s[12:13], s[0:1], 104")
        a("s_waitcnt lgkmcnt(0)")
        a(f"s_add_u32 s8, s12, {WS_STAMP + self.k*65536*4}")
        a("s_addc_u32 s9, s13, 0")
        a(f"s_mov_b32 s10, {65536*4}"); a("s_mov_b32 s11, 0x20000")
        for i in range(nst): a(f"v_mov_b32 v{2+i}, s{88+2*i}")
        a("s_getreg_b32 s12, hwreg(HW_REG_XCC_ID)")
        a("s_getreg_b32 s13, hwreg(HW_REG_HW_ID)")
        a("v_mov_b32 v8, s12"); a("v_mov_b32 v9, s13")
        a(f"s_lshl_b32 s12, {wg_sgpr}, 6")
        a("v_mov_b32 v1, s12")
        a("v_cmp_eq_u32 vcc, 0, v0")
        a("s_and_saveexec_b64 s[14:15], vcc")
        a("buffer_store_dwordx4 v[2:5], v1, s[8:11], 0 offen")
        a("buffer_store_dwordx4 v[6:9], v1, s[8:11], 0 offen offset:16")
```

```python
from asmb import *
from gemm_gen import GemmCfg, GemmCore
from gemm2 import GemmCore2

class GemmCore3(GemmCore2):
    def __init__(self, a, cfg, V, S, acc_in_agpr):
        s_saved = cfg.S
        cfg.S = 2
        super().__init__(a, cfg, V, S, acc_in_agpr)
        cfg.S = s_saved
        self.U = cfg.S if cfg.S % 2 == 0 else 2 * cfg.S

    def xreads(self, t):
        c = self.c
        out = []
        st = t % c.S
        for j in range(c.TJ):
            for k in range(2):
                if c.native_a:
                    off = c.A_BASE + st * c.A_STAGE + (j * 2 + k) * 1024
                    v = self.vXrd[0]
                else:
                    off = c.A_BASE + st * c.A_STAGE + j * 16 * 128
                    v = self.vXrd[k]
                assert off < 65536
                out.append(f"ds_read_b128 {vr(self.xf[t%2][j][k],4)}, {vr(v)} offset:{off}")
        return out
    def wreads(self, t, i):
        c = self.c
        out = []
        for k in range(2):
            for half in range(2):
                hoff = half * (16 * 128 if c.native_a else 512)
                off = (t % c.S) * c.B_STAGE + (i // c.BPP) * 8192 + k * 32 * 128 + hoff
                assert off < 65536
                out.append(f"ds_read_b64_tr_b16 {vr(self.wf[i%self.NWB][k]+2*half,2)}, {vr(self.vWrd[i%c.BPP])} offset:{off}")
        return out

    def zero_acc(self):
        c = self.c
        for i in range(c.TI):
            for j in range(c.TJ):
                for r in range(c.AR):
                    if self.acc_in_agpr: self.a(f"v_accvgpr_write_b32 {self.accreg(i,j,r)}, 0")
                    else: self.a(f"v_mov_b32 {self.accreg(i,j,r)}, 0")

    def step3(self, t, dX, dW, rdX, rdW, vm, barrier=True, extra=None):
        a, c = self.a, self.c
        TI, S = c.TI, c.S
        nm = 2 * c.TJ
        xr = self.xreads(t + 1) if rdX else []
        nrx = TI - 2
        xper = [len(xr) * (r + 1) // nrx - len(xr) * r // nrx for r in range(nrx)]
        dx = self.dmaA(t % S) if dX else []
        if extra: dx = dx + [list(extra)]
        dxper = [len(dx) * (r + 1) // nrx - len(dx) * r // nrx for r in range(nrx)] if c.TI <= 4 else \
                [min(5, max(0, len(dx) - 5 * r)) for r in range(nrx)]
        dw = self.dmaB(t % S) if dW else []
        hist = self._hist
        for i in range(TI):
            w2, x2 = hist[-2]; w1, x1 = hist[-1]
            if i == TI - 2:
                if barrier:
                    a(f"s_waitcnt vmcnt({vm}) lgkmcnt(0)")
                    a("s_barrier")
                else:
                    a("s_waitcnt lgkmcnt(0)")
            elif i == TI - 1:
                pass
            else:
                a(f"s_waitcnt lgkmcnt({min(15, x2 + w1 + x1)})")
            if i + 2 < TI: wr = self.wreads(t, i + 2)
            elif rdW: wr = self.wreads(t + 1, i + 2 - TI)
            else: wr = []
            xs = []; ds = []
            if i < nrx:
                xs = xr[:xper[i]]; xr = xr[xper[i]:]
                ds = dx[:dxper[i]]; dx = dx[dxper[i]:]
            else:
                h = (len(dw) + 1) // 2 if i == TI - 2 else len(dw)
                ds = dw[:h]; dw = dw[h:]
            fill = self._mix1(wr + xs, ds)
            a(merge(self.row_mfmas(t, i), fill, 0, nm - 1))
            hist = [hist[-1], (len(wr), len(xs))]
        assert not dx and not dw and not xr
        self._hist = hist

    def prologue_dma(self):
        a, c = self.a, self.c
        for st in range(c.S):
            for g in self.dmaA(st): a(g)
            for g in self.dmaB(st): a(g)

    def tail_len(self, n=None):
        c = self.c
        T = c.S + 1
        while T % self.U: T += 1
        return T

    def mainloop(self, s_loopcount, label, st=None, sidx=1, extras=None, pro_extra=0):
        a, c = self.a, self.c
        S, PA, PB, U = c.S, c.PA, c.PB, self.U
        extras = extras or {}
        a(f"s_waitcnt vmcnt({(S-2)*(PA+PB) + PB + pro_extra})")
        a("s_barrier")
        a(self.xreads(0)); a(self.wreads(0, 0)); a(self.wreads(0, 1))
        a("s_waitcnt lgkmcnt(0)")
        a("s_barrier")
        if st: st.stamp(sidx); a("s_waitcnt lgkmcnt(0)")
        self._hist = [(4, 0), (4, 0)]
        a.label(label)
        for t in range(U):
            nx = sum(1 for u in range(t + 2 - S, t + 1) if (u % U) in extras)
            self.step3(t, True, True, True, True, (S - 2) * (PA + PB) + nx, extra=extras.get(t))
        assert self._hist == [(4, 0), (4, 0)]
        a(f"s_sub_u32 {sr(s_loopcount)}, {sr(s_loopcount)}, 1")
        a(f"s_cmp_lg_u32 {sr(s_loopcount)}, 0")
        a(f"s_cbranch_scc1 {label}")
        T = self.tail_len()
        for k in range(T):
            r = k - T
            dX = r + S <= -1
            dW = r + S <= -1
            seq = []
            for u in range(r - 2, r + S + 1):
                if u <= -1: seq.append(("X", u))
                if u <= -1 and u <= r + S - 1: seq.append(("W", u))
            need = [x for x in (("W", r + 1), ("X", r + 2)) if x[1] <= -1]
            if need:
                last = max(seq.index(x) for x in need)
                vm = sum(PA if x[0] == "X" else PB for x in seq[last + 1:])
            else:
                vm = 0
            self.step3(k, dX, dW, r + 1 <= -1, r + 1 <= -1, vm, barrier=(r + 1 <= -1))
```

```python
from asmb import *
from gemm_gen import GemmCfg
from gemm3 import GemmCore3
from stamps import Stamper
import stamps
from k1_gen import srd, f32, WS_Q, WS_K, WS_V, WS_Z, WS_G, WS_CNT, Z_KB, QSCALE
import math, os
PF = not os.environ.get('K1_NOPF')
NOSTORE = bool(os.environ.get('K1_NOSTORE'))

class Core4(GemmCore3):
    def __init__(self, a, cfg, V, S):
        self.a, self.c, self.V, self.S = a, cfg, V, S
        c = cfg
        self.U = 2
        self.accv = V.alloc("acc", 224, 4)
        A = RegAlloc(0, 256, "a")
        self.xf = [[[A.alloc(f"xf{b}{j}{k}", 4, 4) for k in range(2)] for j in range(c.TJ)] for b in range(2)]
        self.wf = [[A.alloc(f"wf{b}{k}", 4, 4) for k in range(2)] for b in range(self.NWB)]
        self.acca = A.alloc("acc7", 32, 4)
        self.NA = A.next
        self.vXrd = [V.alloc(f"vXrd{s}") for s in range(2)]
        self.vWrd = [V.alloc(f"vWrd{p}") for p in range(4)]
        self.vAsrc = [V.alloc(f"vAsrc{p}") for p in range(2)]
        self.nB = 2
        self.vBsrc = [V.alloc(f"vBsrc{p}") for p in range(2)]
        self.sA = S.alloc("srdA", 4, 4); self.sB = S.alloc("srdB", 4, 4)
        self.soffA = [S.alloc(f"soffA{q}") for q in range(c.PA)]
        self.soffB = [S.alloc(f"soffB{q}") for q in range(c.PB)]
        self.sM0A = S.alloc("m0A"); self.sM0B = S.alloc("m0B")
        self.sKA = S.alloc("kstepA"); self.sKB = S.alloc("kstepB")
        self.sLoop = S.alloc("loop")
        self.zero_first = False
    def in_v(self, i): return i < 7
    def acc(self, i, j):
        return vr(self.accv + (i * 8 + j) * 4, 4) if i < 7 else ar(self.acca + j * 4, 4)
    def accidx(self, i, j, r):
        return self.accv + (i * 8 + j) * 4 + r if i < 7 else self.acca + j * 4 + r
    def row_mfmas(self, t, i, zero=False):
        c = self.c
        out = []
        for j in range(c.TJ):
            for k in range(2):
                w, x = ar(self.wf[i % self.NWB][k], 4), ar(self.xf[t % 2][j][k], 4)
                A, B = (x, w) if c.swap else (w, x)
                C = "0" if (self.zero_first and t == 0 and k == 0) else self.acc(i, j)
                out.append(f"v_mfma_f32_16x16x32_bf16 {self.acc(i,j)}, {A}, {B}, {C}")
        return out
    def xreads(self, t):
        return [x.replace("ds_read_b128 v[", "ds_read_b128 a[") for x in super().xreads(t)]
    def wreads(self, t, i):
        return [x.replace("ds_read_b64_tr_b16 v[", "ds_read_b64_tr_b16 a[") for x in super().wreads(t, i)]

def schedule():
    big = []
    for b in range(44):
        q, r = divmod(b, 11)
        big.append((0, q * 4 + r) if r < 4 else (3, q * 7 + r - 4))
    small = [(1 + (s & 1), s >> 1) for s in range(32)]
    tab = []
    bi = si = 0
    for x in range(8):
        def B():
            nonlocal bi; bi += 1; return big[bi - 1]
        def Sm():
            nonlocal si; si += 1; return small[si - 1]
        if x < 4: g = [[B(), B()], [B(), B()], [Sm(), B(), Sm()], [Sm(), B()]]
        else: g = [[B(), B()], [B(), Sm(), Sm()], [Sm(), B(), Sm()], [Sm(), B()]]
        tab.append(g)
    assert bi == 44 and si == 32
    return tab

def gen_k1(a, name="k1_kernel"):
    cfgN = GemmCfg(256, 256, 2, 2, native_a=False, swap=False, stages=2, ms=16)
    cfgS = GemmCfg(256, 256, 2, 2, native_a=False, swap=True, stages=2, ms=16)
    kernel_header(a, name)
    V = RegAlloc(0, 256, "v"); S = RegAlloc(36, 87, "s"); st = Stamper(a, 0)
    vT = V.alloc("T", 16, 4)
    core = Core4(a, cfgN, V, S)
    vlane = V.alloc("lane"); vout = V.alloc("vout"); vc1 = V.alloc("c1", 2, 2)
    vt = [vT + 4, vT + 5, vT + 6, vT + 7]
    s_wave = S.alloc("wave"); s_wt = S.alloc("wt"); s_wn = S.alloc("wn"); s_tm = S.alloc("tm")
    s_list = S.alloc("list"); s_cur = S.alloc("cur"); s_nxt = S.alloc("nxt")
    s_ab, s_lda, s_bb, s_ldw = 21, 26, 27, 30
    sO = S.alloc("srdO", 4, 4)
    sPF = S.alloc("srdPF", 4, 4); s_pf2 = 20
    vpf = V.alloc("vpf"); vdum = V.alloc("vdum")
    s_c = 18
    a("s_cmp_ge_u32 s2, 256")
    a(f"s_cbranch_scc1 {name}_end")
    st.stamp(0)
    a("s_mov_b32 s87, s2")
    a("s_load_dwordx16 s[8:23], s[0:1], 0")
    a("s_load_dwordx8 s[24:31], s[0:1], 64")
    a("s_load_dwordx4 s[32:35], s[0:1], 96")
    a(f"v_and_b32 {vr(vlane)}, 63, v0")
    a(f"v_lshrrev_b32 {vr(vt[0])}, 6, v0")
    a("s_nop 0")
    a(f"v_readfirstlane_b32 {sr(s_wave)}, {vr(vt[0])}")
    a("s_nop 3")
    a(f"s_lshr_b32 {sr(s_wt)}, {sr(s_wave)}, 1")
    a(f"s_and_b32 {sr(s_wn)}, {sr(s_wave)}, 1")
    a(f"s_bfe_u32 {sr(s_tm)}, s2, 0x30003")
    a("s_and_b32 s3, s2, 7"); a("s_lshl_b32 s3, s3, 2")
    a("s_lshr_b32 s4, s2, 6"); a("s_add_u32 s3, s3, s4")
    tab = schedule()
    a(f"s_mov_b32 {sr(s_list)}, 0")
    for x in range(8):
        for g in range(4):
            val = 0
            for k, (ty, col) in enumerate(tab[x][g]): val |= (0x80 | (ty << 5) | col) << (8 * k)
            a(f"s_cmp_eq_u32 s3, {x*4+g}")
            a(f"s_cselect_b32 {sr(s_list)}, {val}, {sr(s_list)}")
    c1 = -2.0 * math.sqrt(2.0 / math.pi) * math.log2(math.e)
    c2 = c1 * 0.044715

    uid = [0]
    def decodeB(sB):
        uid[0] += 1; L = f"{name}_db{uid[0]}"
        a("s_cmp_eq_u32 s5, 3")
        a(f"s_cbranch_scc1 {L}_gu")
        a(f"s_mov_b32 {sr(sB)}, s12"); a(f"s_mov_b32 {sr(sB+1)}, s13"); a(f"s_mov_b32 {sr(sB+2)}, {1024*8192}")
        a("s_cmp_eq_u32 s5, 1")
        a(f"s_cselect_b32 {sr(sB)}, s14, {sr(sB)}"); a(f"s_cselect_b32 {sr(sB+1)}, s15, {sr(sB+1)}")
        a(f"s_cselect_b32 {sr(sB+2)}, {512*8192}, {sr(sB+2)}")
        a("s_cmp_eq_u32 s5, 2")
        a(f"s_cselect_b32 {sr(sB)}, s16, {sr(sB)}"); a(f"s_cselect_b32 {sr(sB+1)}, s17, {sr(sB+1)}")
        a(f"s_cselect_b32 {sr(sB+2)}, {512*8192}, {sr(sB+2)}")
        a(f"s_mov_b32 {sr(s_ldw)}, 8192")
        a(f"s_lshl_b32 {sr(s_bb)}, s6, 9")
        a(f"s_lshl_b32 s3, {sr(s_wave)}, 7")
        a(f"s_add_u32 {sr(s_bb)}, {sr(s_bb)}, s3")
        a(f"s_branch {L}_src")
        a.label(f"{L}_gu")
        a(f"s_cmp_eq_u32 {sr(s_wn)}, 0")
        a(f"s_cselect_b32 {sr(sB)}, s22, s24"); a(f"s_cselect_b32 {sr(sB+1)}, s23, s25")
        a(f"s_mov_b32 {sr(sB+2)}, {1024*7168}")
        a(f"s_mov_b32 {sr(s_ldw)}, 7168")
        a(f"s_lshl_b32 {sr(s_bb)}, s6, 8")
        a(f"s_lshl_b32 s3, {sr(s_wt)}, 7")
        a(f"s_add_u32 {sr(s_bb)}, {sr(s_bb)}, s3")
        a.label(f"{L}_src")
        a(f"s_mov_b32 {sr(sB+3)}, 0x20000")
    def set_pf(code):
        a(f"s_bfe_u32 s5, {sr(code)}, 0x20005"); a(f"s_and_b32 s6, {sr(code)}, 31")
        decodeB(sPF)
        a(f"s_cmp_eq_u32 {sr(code)}, 0")
        a(f"s_cselect_b32 {sr(sPF+2)}, 0, {sr(sPF+2)}")
        a(f"v_lshrrev_b32 {vr(vpf)}, 3, {vr(vlane)}")
        a(f"v_lshlrev_b32 {vr(vpf)}, 6, {vr(vpf)}")
        a(f"v_and_b32 {vr(vt[3])}, 7, {vr(vlane)}")
        a(f"s_lshl_b32 s3, {sr(s_tm)}, 3")
        a(f"v_add3_u32 {vr(vpf)}, {vr(vpf)}, {vr(vt[3])}, s3")
        a(f"v_mul_lo_u32 {vr(vpf)}, {vr(vpf)}, {sr(s_ldw)}")
        a(f"v_add_u32 {vr(vpf)}, {sr(s_bb)}, {vr(vpf)}")
        a(f"v_bfrev_b32 {vr(vt[3])}, 1")
        a(f"v_cmp_gt_u32 vcc, 16, {vr(vlane)}")
        a(f"s_lshl_b32 {sr(s_pf2)}, {sr(s_ldw)}, 7")
        a("s_nop 0")
        a(f"v_cndmask_b32 {vr(vpf)}, {vr(vt[3])}, {vr(vpf)}, vcc")
    def touchW():
        return [f"buffer_load_dword {vr(vdum)}, {vr(vpf)}, {sr(sPF,4)}, 0 offen",
                f"v_add_u32 {vr(vpf)}, {sr(s_pf2)}, {vr(vpf)}"]
    def set_dma_params(code, always=False):
        uid[0] += 1; L = f"{name}_sp{uid[0]}"
        if not always:
            a(f"s_cmp_eq_u32 {sr(code)}, 0")
            a(f"s_cbranch_scc0 {L}_valid")
            a(f"s_mov_b32 {sr(core.sA+2)}, 0"); a(f"s_mov_b32 {sr(core.sB+2)}, 0")
            a(f"s_branch {L}_done")
            a.label(f"{L}_valid")
        a(f"s_bfe_u32 s5, {sr(code)}, 0x20005")
        a(f"s_and_b32 s6, {sr(code)}, 31")
        a("s_sub_u32 s7, s5, 1"); a("s_cmp_lt_u32 s7, 2")
        a(f"s_cselect_b32 {sr(core.sA)}, s10, s8"); a(f"s_cselect_b32 {sr(core.sA+1)}, s11, s9")
        a(f"s_mov_b32 s7, {2048*512*2}")
        a(f"s_cselect_b32 {sr(core.sA+2)}, s7, {2048*1024*2}")
        a(f"s_mov_b32 {sr(core.sA+3)}, 0x20000")
        a(f"s_mov_b32 s7, 1024")
        a(f"s_cselect_b32 {sr(s_lda)}, s7, 2048")
        decodeB(core.sB)
        a(f"s_lshl_b32 s3, {sr(s_tm)}, 8")
        a(f"s_mul_i32 {sr(s_ab)}, s3, {sr(s_lda)}")
        core.setup_src(vlane, s_wave, s_ab, s_lda, s_bb, s_ldw, vt)
        a.label(f"{L}_done")

    a(f"s_and_b32 {sr(s_cur)}, {sr(s_list)}, 0xff")
    a(f"s_lshr_b32 {sr(s_list)}, {sr(s_list)}, 8")
    a("s_waitcnt lgkmcnt(0)")
    set_dma_params(s_cur, True)
    core.setup_lane_consts(vlane, s_wave, s_wt, s_wn, vt)
    core.prologue_dma()
    a(f"v_mov_b32 {vr(vc1)}, {f32(c1)}"); a(f"v_mov_b32 {vr(vc1+1)}, {f32(c1)}")
    ntouch = 0
    if PF:
        set_pf(s_cur)
        a(f"v_add_u32 {vr(vpf)}, {sr(s_pf2)}, {vr(vpf)}")
        a(touchW())
        a("s_and_b32 s3, s2, 7"); a("s_lshl_b32 s3, s3, 2"); a("s_lshr_b32 s4, s2, 6"); a("s_add_u32 s3, s3, s4")
        a("s_lshl_b32 s3, s3, 2"); a(f"s_add_u32 s3, s3, {sr(s_wave)}"); a("s_lshl_b32 s3, s3, 1")
        a(f"s_lshl_b32 s4, {sr(s_tm)}, 8"); a("s_add_u32 s3, s3, s4")
        a(f"v_lshlrev_b32 {vr(vt[0])}, 7, {vr(vlane)}")
        a("s_lshl_b32 s4, s3, 11")
        a(f"s_add_u32 {sr(sO)}, s8, s4"); a(f"s_addc_u32 {sr(sO+1)}, s9, 0"); a(f"s_mov_b32 {sr(sO+2)}, 4096"); a(f"s_mov_b32 {sr(sO+3)}, 0x20000")
        a(f"buffer_load_dword {vr(vdum)}, {vr(vt[0])}, {sr(sO,4)}, 0 offen")
        a("s_lshl_b32 s4, s3, 10")
        a(f"s_add_u32 {sr(sO)}, s10, s4"); a(f"s_addc_u32 {sr(sO+1)}, s11, 0"); a(f"s_mov_b32 {sr(sO+2)}, 2048")
        a(f"buffer_load_dword {vr(vdum)}, {vr(vt[0])}, {sr(sO,4)}, 0 offen")
        a(touchW())
        ntouch = 4
    a(f"s_waitcnt vmcnt({cfgN.PB + ntouch})")
    a("s_barrier")
    a(core.xreads(0)); a(core.wreads(0, 0)); a(core.wreads(0, 1))
    a("s_waitcnt lgkmcnt(0)")
    a("s_barrier")
    st.stamp(1); st.cyc(4)
    if stamps.ENABLE: a("s_waitcnt lgkmcnt(0)")

    a.label(f"{name}_tile")
    a(f"s_and_b32 {sr(s_nxt)}, {sr(s_list)}, 0xff")
    a(f"s_lshr_b32 {sr(s_list)}, {sr(s_list)}, 8")
    a(f"s_bfe_u32 s5, {sr(s_cur)}, 0x20005")
    a("s_sub_u32 s7, s5, 1"); a("s_cmp_lt_u32 s7, 2")
    a(f"s_cselect_b32 {sr(core.sLoop)}, 3, 7")
    a("s_cmp_eq_u32 s5, 2")
    a(f"s_cbranch_scc1 {name}_S_first")
    def body(var, cfg):
        core.c = cfg
        def trip():
            core.step3(0, True, True, True, True, 1 if PF else 0, extra=touchW() if PF else None)
            core.step3(1, True, True, True, True, 0)
        a.label(f"{name}_{var}_first")
        core.zero_first = True
        core._hist = [(4, 0), (4, 0)]
        trip()
        core.zero_first = False
        a(f"s_branch {name}_{var}_ctl")
        a.label(f"{name}_{var}_loop")
        trip()
        a(f"s_sub_u32 {sr(core.sLoop)}, {sr(core.sLoop)}, 1")
        a.label(f"{name}_{var}_ctl")
        a(f"s_cmp_gt_u32 {sr(core.sLoop)}, 3")
        a(f"s_cbranch_scc1 {name}_{var}_loop")
        a(f"s_cmp_eq_u32 {sr(core.sLoop)}, 2")
        a(f"s_cbranch_scc1 {name}_{var}_loop")
        a(f"s_cmp_eq_u32 {sr(core.sLoop)}, 0")
        a(f"s_cbranch_scc1 {name}_{var}_epi")
        a(f"s_cmp_eq_u32 {sr(core.sLoop)}, 1")
        a(f"s_cbranch_scc1 {name}_{var}_sw")
        if PF: set_pf(s_nxt)
        a(f"s_branch {name}_{var}_loop")
        a.label(f"{name}_{var}_sw")
        set_dma_params(s_nxt)
        a(f"s_branch {name}_{var}_loop")
        a.label(f"{name}_{var}_epi")
        core.c = cfgN
    def src_regs(blocks, tmp):
        regs = []
        for n_, (i, j) in enumerate(blocks):
            for r in range(4):
                if core.in_v(i): regs.append(core.accidx(i, j, r))
                else:
                    a(f"v_accvgpr_read_b32 {vr(tmp + n_*4 + r)}, {ar(core.accidx(i, j, r))}")
                    regs.append(tmp + n_ * 4 + r)
        return regs
    def head_base(ws_off_sgpr_or_const):
        a(f"s_and_b32 s3, {sr(s_cur)}, 31")
        a("s_lshl_b32 s3, s3, 1"); a(f"s_add_u32 s3, s3, {sr(s_wn)}"); a("s_lshl_b32 s3, s3, 19")
        a(f"s_lshl_b32 s4, {sr(s_tm)}, 16"); a("s_add_u32 s3, s3, s4")
        a(f"s_lshl_b32 s4, {sr(s_wt)}, 15"); a("s_add_u32 s3, s3, s4")
        a(f"v_lshlrev_b32 {vr(vout)}, 4, {vr(vlane)}")
        a(f"v_add_u32 {vr(vout)}, s3, {vr(vout)}")
        a(f"s_bfe_u32 s5, {sr(s_cur)}, 0x20005")
        a("s_lshl_b32 s4, s5, 24")
        a(f"s_add_u32 {sr(sO)}, s34, s4"); a(f"s_addc_u32 {sr(sO+1)}, s35, 0")
        a(f"s_mov_b32 {sr(sO+2)}, {0 if NOSTORE else 16<<20}"); a(f"s_mov_b32 {sr(sO+3)}, 0x20000")

    body("N", cfgN)
    st.stamp(2); st.cyc(5)
    a(f"s_bfe_u32 s5, {sr(s_cur)}, 0x20005")
    a("s_cmp_eq_u32 s5, 3")
    a(f"s_cbranch_scc1 {name}_epi_gu")
    head_base(None)
    a("s_cmp_eq_u32 s5, 1")
    a(f"s_cbranch_scc1 {name}_epi_k")
    def epi_qk(scale):
        cnt = 0
        if scale:
            a(f"s_mov_b32 {sr(s_c)}, {f32(QSCALE)}"); a(f"s_mov_b32 {sr(s_c+1)}, {f32(QSCALE)}")
        for u in range(4):
            for j in range(8):
                b = vT + (cnt % 2) * 4; cnt += 1
                R = src_regs([(2 * u, j), (2 * u + 1, j)], vT + 8)
                if scale:
                    for p in range(4):
                        a(f"v_pk_mul_f32 {vr(R[2*p],2)}, {vr(R[2*p],2)}, {sr(s_c,2)}")
                for p in range(4):
                    a(f"v_cvt_pk_bf16_f32 {vr(b+p)}, {vr(R[2*p])}, {vr(R[2*p+1])}")
                a(f"s_mov_b32 s3, {j*4096}")
                a(f"buffer_store_dwordx4 {vr(b,4)}, {vr(vout)}, {sr(sO,4)}, s3 offen offset:{u*1024}")
    epi_qk(True)
    a(f"s_branch {name}_next")
    a.label(f"{name}_epi_k")
    epi_qk(False)
    a(f"s_branch {name}_next")
    a.label(f"{name}_epi_gu")
    a(f"s_lshl_b32 s3, {sr(s_tm)}, 4"); a(f"s_lshl_b32 s4, {sr(s_wt)}, 3"); a("s_add_u32 s3, s3, s4")
    a(f"s_mul_i32 s3, s3, {Z_KB*1024}")
    a(f"s_and_b32 s4, {sr(s_cur)}, 31"); a("s_lshl_b32 s4, s4, 12"); a("s_add_u32 s3, s3, s4")
    a(f"s_lshl_b32 s4, {sr(s_wn)}, 11"); a("s_add_u32 s3, s3, s4")
    a(f"v_lshlrev_b32 {vr(vout)}, 4, {vr(vlane)}")
    a(f"v_add_u32 {vr(vout)}, s3, {vr(vout)}")
    srd(a, sO, 34, 35, 0 if NOSTORE else 128 * Z_KB * 1024, WS_Z)
    a(f"s_mov_b32 {sr(s_c)}, {f32(c2)}"); a(f"s_mov_b32 {sr(s_c+1)}, {f32(c2)}")
    cnt = 0
    for u in range(2):
        for j in range(8):
            b = vT + (cnt % 2) * 4; cnt += 1
            X = src_regs([(2 * u, j), (2 * u + 1, j)], None)
            E = vT + 8
            for p in range(4): a(f"v_pk_mul_f32 {vr(E+2*p,2)}, {vr(X[2*p],2)}, {vr(X[2*p],2)}")
            for p in range(4): a(f"v_pk_fma_f32 {vr(E+2*p,2)}, {vr(E+2*p,2)}, {sr(s_c,2)}, {vr(vc1,2)}")
            for p in range(4): a(f"v_pk_mul_f32 {vr(E+2*p,2)}, {vr(E+2*p,2)}, {vr(X[2*p],2)}")
            for e in range(8): a(f"v_exp_f32 {vr(E+e)}, {vr(E+e)}")
            for n_, ib in enumerate((4 + 2 * u, 5 + 2 * u)):
                if core.in_v(ib):
                    for p in range(2):
                        a(f"v_pk_mul_f32 {vr(X[n_*4+2*p],2)}, {vr(X[n_*4+2*p],2)}, {vr(core.accidx(ib,j,2*p),2)}")
                else:
                    tmp = core.accidx(4 + 2 * u, j, 0)
                    for r in range(4): a(f"v_accvgpr_read_b32 {vr(tmp+r)}, {ar(core.accidx(ib,j,r))}")
                    for p in range(2):
                        a(f"v_pk_mul_f32 {vr(X[n_*4+2*p],2)}, {vr(X[n_*4+2*p],2)}, {vr(tmp+2*p,2)}")
            for p in range(4): a(f"v_pk_add_f32 {vr(E+2*p,2)}, {vr(E+2*p,2)}, 1.0 op_sel_hi:[1,0]")
            for e in range(8): a(f"v_rcp_f32 {vr(E+e)}, {vr(E+e)}")
            a(f"s_mov_b32 s3, {j*Z_KB*1024}")
            for p in range(4): a(f"v_pk_mul_f32 {vr(X[2*p],2)}, {vr(X[2*p],2)}, {vr(E+2*p,2)}")
            for p in range(4): a(f"v_cvt_pk_bf16_f32 {vr(b+p)}, {vr(X[2*p])}, {vr(X[2*p+1])}")
            a(f"buffer_store_dwordx4 {vr(b,4)}, {vr(vout)}, {sr(sO,4)}, s3 offen offset:{u*1024}")
    a(f"s_branch {name}_next")
    body("S", cfgS)
    st.stamp(2); st.cyc(5)
    head_base(None)
    cnt = 0
    for i in range(8):
        for uu in range(4):
            b = vT + (cnt % 2) * 4; cnt += 1
            R = src_regs([(i, 2 * uu), (i, 2 * uu + 1)], vT + 8)
            for p in range(4): a(f"v_cvt_pk_bf16_f32 {vr(b+p)}, {vr(R[2*p])}, {vr(R[2*p+1])}")
            a(f"s_mov_b32 s3, {uu*8192 + (i//4)*4096}")
            a(f"buffer_store_dwordx4 {vr(b,4)}, {vr(vout)}, {sr(sO,4)}, s3 offen offset:{(i%4)*1024}")
    a.label(f"{name}_next")
    a(f"s_mov_b32 {sr(s_cur)}, {sr(s_nxt)}")
    a(f"s_cmp_lg_u32 {sr(s_cur)}, 0")
    a(f"s_cbranch_scc1 {name}_tile")
    a("s_lshr_b32 s3, s2, 6"); a("s_cmp_eq_u32 s3, 3")
    a(f"s_cbranch_scc0 {name}_fin")
    a("s_and_b32 s3, s2, 7"); a("s_cmp_lt_u32 s3, 4")
    a(f"s_cbranch_scc0 {name}_fin")
    a("s_lshl_b32 s3, s3, 3"); a(f"s_add_u32 s3, s3, {sr(s_tm)}")
    a("s_waitcnt vmcnt(0) lgkmcnt(0)")
    a("s_add_u32 s4, s34, %d" % WS_CNT); a("s_addc_u32 s5, s35, 0"); a("s_mov_b32 s6, 65536"); a("s_mov_b32 s7, 0x20000")
    a(f"v_lshlrev_b32 v2, 3, {vr(vlane)}")
    a("s_lshl_b32 s18, s3, 11"); a(f"s_lshl_b32 s19, {sr(s_wave)}, 9"); a("s_add_u32 s18, s18, s19")
    a("v_add_u32 v2, s18, v2")
    a("v_mov_b32 v4, 0"); a("v_mov_b32 v5, 0")
    a("buffer_store_dwordx2 v[4:5], v2, s[4:7], 0 offen")
    a("s_lshl_b32 s3, s3, 6"); a(f"s_lshl_b32 s4, {sr(s_wave)}, 4"); a("s_add_u32 s3, s3, s4")
    srd(a, core.sA, 8, 9, 2048 * 1024 * 2)
    srd(a, core.sB, 28, 29, 2048)
    srd(a, sO, 34, 35, 8192, WS_G)
    G = 8
    a(f"v_lshlrev_b32 v2, 5, {vr(vlane)}")
    a(f"buffer_load_dwordx4 v[{G}:{G+3}], v2, {sr(core.sB,4)}, 0 offen")
    a(f"buffer_load_dwordx4 v[{G+4}:{G+7}], v2, {sr(core.sB,4)}, 0 offen offset:16")
    a("s_lshl_b32 s4, s3, 11")
    a("v_add_u32 v3, s4, v2")
    XB = 32
    for t in range(16):
        a(f"s_mov_b32 s5, {t*2048}")
        a(f"buffer_load_dwordx4 v[{XB+8*t}:{XB+8*t+3}], v3, {sr(core.sA,4)}, s5 offen")
        a(f"buffer_load_dwordx4 v[{XB+8*t+4}:{XB+8*t+7}], v3, {sr(core.sA,4)}, s5 offen offset:16")
    a("s_waitcnt vmcnt(32)")
    for r in range(8):
        a(f"v_lshlrev_b32 v{16+2*r}, 16, v{G+r}")
        a(f"v_and_b32 v{17+2*r}, 0xffff0000, v{G+r}")
    a("v_mov_b32 v6, 0")
    for t in range(16):
        a(f"s_waitcnt vmcnt({2*(15-t)})")
        acc = 4
        for r in range(8):
            x = XB + 8 * t + r
            a(f"v_lshlrev_b32 v5, 16, v{x}")
            if r == 0: a(f"v_mul_f32 v{acc}, v5, v{16+2*r}")
            else: a(f"v_fmac_f32 v{acc}, v5, v{16+2*r}")
            a(f"v_and_b32 v5, 0xffff0000, v{x}")
            a(f"v_fmac_f32 v{acc}, v5, v{17+2*r}")
        for m in ("quad_perm:[1,0,3,2]", "quad_perm:[2,3,0,1]", "row_half_mirror", "row_mirror"):
            a("s_nop 1")
            a(f"v_add_f32_dpp v{acc}, v{acc}, v{acc} {m} row_mask:0xf bank_mask:0xf")
        a("s_nop 1")
        for q in range(4): a(f"v_readlane_b32 s{4+q}, v{acc}, {16*q}")
        a("s_nop 1")
        a("v_mov_b32 v5, s4"); a("v_add_f32 v5, s5, v5"); a("v_add_f32 v5, s6, v5"); a("v_add_f32 v5, s7, v5")
        a(f"v_cmp_eq_u32 vcc, {t}, {vr(vlane)}")
        a("s_nop 1")
        a("v_cndmask_b32 v6, v6, v5, vcc")
    a(f"v_mul_f32 v6, {f32(-math.log2(math.e))}, v6")
    a("v_exp_f32 v6, v6"); a("s_nop 0"); a("v_add_f32 v6, 1.0, v6"); a("v_rcp_f32 v6, v6")
    a(f"v_add_u32 v7, s3, {vr(vlane)}")
    a("v_lshlrev_b32 v7, 2, v7")
    a(f"v_cmp_gt_u32 vcc, 16, {vr(vlane)}")
    a("s_and_saveexec_b64 s[4:5], vcc")
    a(f"buffer_store_dword v6, v7, {sr(sO,4)}, 0 offen")
    a("s_mov_b64 exec, s[4:5]")
    a.label(f"{name}_fin")
    if stamps.ENABLE:
        a(f"v_lshl_add_u32 v0, {sr(s_wave)}, 6, {vr(vlane)}")
    st.flush("s87", 4, 2)
    a.label(f"{name}_end")
    a("s_endpgm")
    assert V.next <= 256
    return dict(name=name, nv=256 + core.NA, acc_off=256, grid=256, block=256, lds=cfgN.LDS)
```

```python
from asmb import *
from stamps import Stamper
import stamps
from k1_gen import srd, f32, WS_Q, WS_K, WS_V, WS_Z, Z_KB

MF = "v_mfma_f32_16x16x32_bf16"
PREFETCH_W = True
BIAS = 7.0
NEG = -1.0e30

class RD:
    def __init__(self, tag, text): self.tag, self.text = tag, text
class WAIT:
    def __init__(self, *tags): self.tags = tags

def resolve(seq):
    out = []; issued = 0; pos = {}; done = 0
    for it in seq:
        if isinstance(it, RD):
            pos[it.tag] = issued; issued += 1; out.append(it.text)
        elif isinstance(it, WAIT):
            need = max(pos[t] for t in it.tags if t in pos) + 1 if any(t in pos for t in it.tags) else 0
            if need > done:
                n = issued - need
                out.append(f"s_waitcnt lgkmcnt({min(n, 15)})")
                done = max(done, issued - min(n, 15))
        else:
            out.append(it)
    return out

def flat(items):
    o = []
    for x in items:
        if isinstance(x, (list, tuple)): o.extend(flat(x))
        else: o.append(x)
    return o

def gen_k2(a, name="k2_kernel"):
    kernel_header(a, name)
    V = RegAlloc(1, 256, "v"); S = RegAlloc(12, 87, "s"); st = Stamper(a, 1)
    def O(db, qb): return (db * 4 + qb) * 4
    def L(qb): return 128 + qb * 4
    def Q(qb, ks): return 144 + (qb * 4 + ks) * 4
    ONES = 208
    def VF(set_, u): return 212 + (set_ * 2 + u) * 4
    NA = 244
    vS = V.alloc("S", 128, 4)
    def Sb(buf, kvb, qb): return vS + ((buf * 4 + kvb) * 4 + qb) * 4
    vP = V.alloc("P", 32, 4)
    def P(u, qb): return vP + (u * 4 + qb) * 4
    vK = V.alloc("K", 32, 4)
    def KF(set_, ks): return vK + (set_ * 4 + ks) * 4
    vNM = V.alloc("negm", 16, 4)
    vT = V.alloc("T", 16, 4)
    vM = V.alloc("moff", 4, 4)
    vD = V.alloc("delta", 4, 4)
    vlane = V.alloc("lane"); vKrd = V.alloc("Krd"); vVrd = V.alloc("Vrd"); vsrc = V.alloc("src"); vsrcV = V.alloc("srcV")
    vx16 = V.alloc("x16"); vx32 = V.alloc("x32"); vneg = V.alloc("neg"); vor = V.alloc("or"); vq = V.alloc("q"); vmrg = V.alloc("mrg"); vmrgR = V.alloc("mrgR")
    sQ = S.alloc("srdQ", 4, 4); sK = S.alloc("srdK", 4, 4); sV = S.alloc("srdV", 4, 4); sZ = S.alloc("srdZ", 4, 4)
    sMD = [S.alloc(f"maskD{r}", 2, 2) for r in range(4)]; sMB = S.alloc("maskB", 2, 2)
    sTri = sMD
    s_wave = S.alloc("wave"); s_qh = S.alloc("qh"); s_par = S.alloc("par"); s_head = S.alloc("head"); s_p = S.alloc("p")
    s_i = S.alloc("i"); s_n = S.alloc("n"); s_pass = S.alloc("pass"); s_m0 = S.alloc("m0w"); s_4k = S.alloc("c4k"); s_hb = S.alloc("headbase")
    sPF = S.alloc("srdPF", 4, 4)
    sPQ = [S.alloc(f"pfq{k}", 3) for k in range(4)]
    s_tog = S.alloc("pftog")
    vpf = V.alloc("vpf"); vdum = V.alloc("vdum"); vkv = V.alloc("vkv")
    sKV = S.alloc("srdKV", 4, 4); s_64k = S.alloc("c64k")
    s_32k = S.alloc("c32k"); s_nrK = S.alloc("nrK"); s_nrV = S.alloc("nrV")

    a("s_cmp_ge_u32 s2, 256")
    a(f"s_cbranch_scc1 {name}_end")
    st.stamp(0)
    a("s_mov_b32 s87, s2")
    a("s_load_dwordx2 s[4:5], s[0:1], 104")
    a("s_load_dwordx2 s[8:9], s[0:1], 40")
    a("s_load_dwordx2 s[10:11], s[0:1], 72")
    a(f"v_and_b32 {vr(vlane)}, 63, v0")
    a(f"v_lshrrev_b32 {vr(vT)}, 6, v0")
    a("s_nop 0")
    a(f"v_readfirstlane_b32 {sr(s_wave)}, {vr(vT)}")
    a("s_nop 3")
    a(f"s_and_b32 {sr(s_qh)}, {sr(s_wave)}, 1")
    a(f"s_lshr_b32 {sr(s_par)}, {sr(s_wave)}, 1")
    a("s_and_b32 s3, s2, 7")
    a("s_lshr_b32 s6, s2, 3")
    a(f"s_and_b32 {sr(s_p)}, s6, 7")
    a("s_lshr_b32 s6, s6, 3")
    a("s_lshl_b32 s3, s3, 2")
    a(f"s_add_u32 {sr(s_head)}, s3, s6")
    a(f"s_lshl_b32 {sr(s_hb)}, {sr(s_head)}, 19")
    a(f"s_mov_b32 {sr(s_4k)}, 4096")
    a(f"s_mov_b32 {sr(s_32k)}, 32768")
    a(f"s_lshl_b32 {sr(s_m0)}, {sr(s_wave)}, 13")
    a("s_waitcnt lgkmcnt(0)")
    srd(a, sQ, 4, 5, 16 << 20, WS_Q)
    srd(a, sK, 4, 5, 16 << 20, WS_K)
    srd(a, sV, 4, 5, 16 << 20, WS_V)
    srd(a, sZ, 4, 5, 128 * Z_KB * 1024, WS_Z)
    a(f"s_lshl_b32 s3, s2, 2"); a(f"s_add_u32 s3, s3, {sr(s_wave)}")
    a("s_lshl_b32 s6, s3, 13")
    a(f"s_add_u32 {sr(sPQ[0])}, s8, s6"); a(f"s_addc_u32 {sr(sPQ[0]+1)}, s9, 0"); a(f"s_mov_b32 {sr(sPQ[0]+2)}, 8192")
    a("s_mul_i32 s6, s3, 7168")
    a(f"s_add_u32 {sr(sPQ[1])}, s10, s6"); a(f"s_addc_u32 {sr(sPQ[1]+1)}, s11, 0"); a(f"s_mov_b32 {sr(sPQ[1]+2)}, 7168")
    a("s_lshr_b32 s6, s3, 3"); a(f"s_mul_i32 s6, s6, {Z_KB*1024}")
    a("s_and_b32 s7, s3, 7"); a("s_mul_i32 s7, s7, 14336"); a("s_add_u32 s6, s6, s7")
    a(f"s_add_u32 {sr(sPQ[2])}, {sr(sZ)}, s6"); a(f"s_addc_u32 {sr(sPQ[2]+1)}, {sr(sZ+1)}, 0"); a(f"s_mov_b32 {sr(sPQ[2]+2)}, 8192")
    a(f"s_add_u32 {sr(sPQ[3])}, {sr(sPQ[2])}, 8192"); a(f"s_addc_u32 {sr(sPQ[3]+1)}, {sr(sPQ[2]+1)}, 0"); a(f"s_mov_b32 {sr(sPQ[3]+2)}, 6144")
    a(f"s_mov_b32 {sr(sPF+3)}, 0x20000")
    a(f"s_and_b32 {sr(s_tog)}, {sr(s_wave)}, 1")
    a(f"v_lshlrev_b32 {vr(vpf)}, 7, {vr(vlane)}")
    srd(a, sKV, 4, 5, 48 << 20, WS_Q)
    a(f"s_mov_b32 {sr(s_64k)}, 65536")
    a(f"s_lshl_b32 s3, {sr(s_p)}, 2"); a(f"s_add_u32 s3, s3, {sr(s_wave)}"); a("s_lshl_b32 s3, s3, 11")
    a(f"s_add_u32 s3, s3, {sr(s_hb)}")
    a(f"s_add_u32 s3, s3, {WS_K}")
    a(f"v_and_b32 {vr(vkv)}, 15, {vr(vlane)}")
    a(f"v_lshlrev_b32 {vr(vkv)}, 7, {vr(vkv)}")
    a(f"v_bfe_u32 {vr(vT+1)}, {vr(vlane)}, 4, 1")
    a(f"v_lshlrev_b32 {vr(vT+1)}, 24, {vr(vT+1)}")
    a(f"v_add3_u32 {vr(vkv)}, {vr(vkv)}, {vr(vT+1)}, s3")
    a(f"v_bfrev_b32 {vr(vT+1)}, 1")
    a(f"v_cmp_gt_u32 vcc, 32, {vr(vlane)}")
    a("s_nop 1")
    a(f"v_cndmask_b32 {vr(vkv)}, {vr(vT+1)}, {vr(vkv)}, vcc")
    a(f"v_lshlrev_b32 {vr(vT)}, 4, {vr(vlane)}")
    a(f"s_lshl_b32 s3, {sr(s_par)}, 14")
    a(f"v_add_u32 {vr(vKrd)}, s3, {vr(vT)}")
    a(f"v_add_u32 {vr(vVrd)}, 0x10000, {vr(vKrd)}")
    a(f"v_xor_b32 {vr(vx16)}, 16, {vr(vlane)}"); a(f"v_lshlrev_b32 {vr(vx16)}, 2, {vr(vx16)}")
    a(f"v_xor_b32 {vr(vx32)}, 32, {vr(vlane)}"); a(f"v_lshlrev_b32 {vr(vx32)}, 2, {vr(vx32)}")
    a(f"v_mov_b32 {vr(vneg)}, {f32(NEG)}")
    a(f"s_mul_i32 s3, {sr(s_wave)}, 18432")
    a(f"v_add_u32 {vr(vmrg)}, s3, {vr(vT)}")
    a(f"s_xor_b32 s3, {sr(s_wave)}, 2")
    a("s_mul_i32 s3, s3, 18432")
    a(f"v_add_u32 {vr(vmrgR)}, s3, {vr(vT)}")
    a(f"v_lshrrev_b32 {vr(vT+1)}, 4, {vr(vlane)}")
    a(f"v_lshlrev_b32 {vr(vT+1)}, 2, {vr(vT+1)}")
    a(f"v_and_b32 {vr(vT+2)}, 15, {vr(vlane)}")
    for r in range(4):
        a(f"v_add_u32 {vr(vT+3)}, {r}, {vr(vT+1)}")
        a(f"v_cmp_gt_u32 {sr(sTri[r],2)}, {vr(vT+3)}, {vr(vT+2)}")
    a(f"v_mov_b32 {vr(vT)}, 0x3f803f80")
    for r in range(4): a(f"v_accvgpr_write_b32 {ar(ONES+r)}, {vr(vT)}")
    a(f"s_cmp_eq_u32 {sr(s_qh)}, {sr(s_par)}")
    for r in range(4):
        a(f"s_cselect_b64 {sr(sMD[r],2)}, {sr(sTri[r],2)}, 0")
    a(f"s_cselect_b64 {sr(sMB,2)}, -1, 0")
    a(f"s_mov_b32 {sr(s_pass)}, 0")
    a(f"s_sub_u32 {sr(s_i)}, 15, {sr(s_p)}")

    def dma(kind, stage):
        base = stage * 32768 + (65536 if kind == "V" else 0)
        s_, v_ = (sV, vsrcV) if kind == "V" else (sK, vsrc)
        out = []
        for q in range(8):
            g = []
            if q % 4 == 0:
                g.append(f"s_add_u32 m0, {sr(s_m0)}, {base + (q//4)*4096}")
                g.append("s_nop 0")
            so = "0" if q < 4 else sr(s_4k)
            g.append(f"buffer_load_dwordx4 {vr(v_)}, {sr(s_,4)}, {so} offen offset:{(q%4)*1024} lds")
            out.append(g)
        out.append([f"v_add_u32 {vr(v_)}, {sr(s_32k)}, {vr(v_)}"])
        return out
    def kvtouch():
        return [f"buffer_load_dword {vr(vdum)}, {vr(vkv)}, {sr(sKV,4)}, 0 offen",
                f"v_add_u32 {vr(vkv)}, {sr(s_64k)}, {vr(vkv)}"]
    def kread(stage, kvb):
        return [RD(("K", kvb, ks), f"ds_read_b128 {vr(KF(kvb%2, ks),4)}, {vr(vKrd)} offset:{stage*32768 + (kvb*4+ks)*1024}") for ks in range(4)]
    def vread(stage, db):
        return [RD(("V", db, u), f"ds_read_b128 {ar(VF(db%4, u),4)}, {vr(vVrd)} offset:{stage*32768 + (u*8+db)*1024}") for u in range(2)]
    def qk_group(buf, kvb, czero=False):
        out = []
        for qb in range(4):
            for ks in range(4):
                d = vr(Sb(buf, kvb, qb), 4)
                c = ("0" if czero else vr(vNM + qb * 4, 4)) if ks == 0 else d
                out.append(f"{MF} {d}, {vr(KF(kvb%2, ks),4)}, {ar(Q(qb,ks),4)}, {c}")
        return out
    def pv_group(db):
        out = []
        for qb in range(4):
            for u in range(2):
                d = ar(O(db, qb), 4)
                out.append(f"{MF} {d}, {ar(VF(db%4,u),4)}, {vr(P(u,qb),4)}, {d}")
        return out
    def l_group():
        out = []
        for qb in range(4):
            for u in range(2):
                d = ar(L(qb), 4)
                out.append(f"{MF} {d}, {ar(ONES,4)}, {vr(P(u,qb),4)}, {d}")
        return out
    def softmax_ops(buf):
        out = []
        cnt = 0
        nor = 0
        for kvb in range(4):
            for qb in range(4):
                t = vT + (cnt % 2) * 4; cnt += 1
                s = Sb(buf, kvb, qb)
                p = P(kvb // 2, qb) + (kvb % 2) * 2
                for r in range(4): out.append(f"v_exp_f32 {vr(t+r)}, {vr(s+r)}")
                out.append(f"v_cvt_pk_bf16_f32 {vr(p)}, {vr(t)}, {vr(t+1)}")
                out.append(f"v_cvt_pk_bf16_f32 {vr(p+1)}, {vr(t+2)}, {vr(t+3)}")
                if nor == 0: out.append(f"v_or_b32 {vr(vor)}, {vr(p)}, {vr(p+1)}")
                else: out.append(f"v_or3_b32 {vr(vor)}, {vr(vor)}, {vr(p)}, {vr(p+1)}")
                nor += 1
        return out
    def check(label):
        return [f"v_and_b32 {vr(vor)}, 0x40004000, {vr(vor)}",
                f"v_cmp_ne_u32 vcc, 0, {vr(vor)}",
                f"s_cbranch_vccnz {label}"]
    def fixmax(buf, has_next, first):
        o = ["s_nop 7", "s_waitcnt lgkmcnt(0)"]
        for qb in range(4):
            d = vD + qb
            regs = [Sb(buf, kvb, qb) + r for kvb in range(4) for r in range(4)]
            o.append(f"v_max3_f32 {vr(d)}, {vr(regs[0])}, {vr(regs[1])}, {vr(regs[2])}")
            for k in range(3, 15, 2):
                o.append(f"v_max3_f32 {vr(d)}, {vr(d)}, {vr(regs[k])}, {vr(regs[k+1])}")
            o.append(f"v_max_f32 {vr(d)}, {vr(d)}, {vr(regs[15])}")
        for vx in (vx16, vx32):
            for qb in range(4): o.append(f"ds_bpermute_b32 {vr(vT+qb)}, {vr(vx)}, {vr(vD+qb)}")
            o.append("s_waitcnt lgkmcnt(0)")
            for qb in range(4): o.append(f"v_max_f32 {vr(vD+qb)}, {vr(vD+qb)}, {vr(vT+qb)}")
        for qb in range(4):
            o.append(f"v_add_f32 {vr(vD+qb)}, {f32(BIAS)}, {vr(vD+qb)}")
            if first:
                o.append(f"v_mov_b32 {vr(vM+qb)}, {vr(vD+qb)}")
            else:
                o.append(f"v_max_f32 {vr(vD+qb)}, 0, {vr(vD+qb)}")
                o.append(f"v_add_f32 {vr(vM+qb)}, {vr(vM+qb)}, {vr(vD+qb)}")
            for r in range(4): o.append(f"v_sub_f32 {vr(vNM+qb*4+r)}, 0, {vr(vM+qb)}")
        for b in ([buf, 1 - buf] if has_next else [buf]):
            for kvb in range(4):
                for qb in range(4):
                    for r in range(4):
                        s = Sb(b, kvb, qb) + r
                        o.append(f"v_sub_f32 {vr(s)}, {vr(s)}, {vr(vD+qb)}")
        if not first:
            for qb in range(4):
                o.append(f"v_sub_f32 {vr(vT+8+qb)}, 0, {vr(vD+qb)}")
                o.append(f"v_exp_f32 {vr(vT+8+qb)}, {vr(vT+8+qb)}")
            o.append("s_nop 0")
            for qb in range(4):
                regs = [O(db, qb) + r for db in range(8) for r in range(4)] + [L(qb) + r for r in range(4)]
                for k in range(0, len(regs), 4):
                    for e in range(4): o.append(f"v_accvgpr_read_b32 {vr(vT+e)}, {ar(regs[k+e])}")
                    for e in range(4): o.append(f"v_mul_f32 {vr(vT+e)}, {vr(vT+e)}, {vr(vT+8+qb)}")
                    for e in range(4): o.append(f"v_accvgpr_write_b32 {ar(regs[k+e])}, {vr(vT+e)}")
        o.append("s_nop 1")
        return o

    rare_blocks = []
    def phaseB(stage, pre_issued):
        seq = []
        if not pre_issued: seq += vread(stage, 0) + vread(stage, 1)
        seq += l_group()[:]
        for db in range(8):
            seq.append(WAIT(("V", db, 0), ("V", db, 1)))
            fill = vread(stage, db + 2) if db + 2 < 8 else []
            seq += merge(pv_group(db), fill, 0, 4)
        return seq

    def iteration(par):
        lab = f"{name}_rare{par}"
        kst = 1 - par
        vst = par
        seq = [f"s_waitcnt vmcnt({2 if par == 1 else 1}) lgkmcnt(0)", "s_barrier"]
        seq += [f"s_add_u32 s3, {sr(s_n)}, 2", f"s_cmp_le_u32 s3, {sr(s_i)}", f"s_cselect_b32 {sr(sK+2)}, {sr(s_nrK)}, 0"]
        seq += kread(kst, 0) + kread(kst, 1)
        sm = softmax_ops(par)
        d = dma("K", par) + dma("V", 1 - par)
        if par == 0 and PREFETCH_W:
            pf = [f"s_xor_b32 {sr(s_tog)}, {sr(s_tog)}, 1",
                  f"s_mov_b32 {sr(sPF)}, {sr(sPQ[0])}", f"s_mov_b32 {sr(sPF+1)}, {sr(sPQ[0]+1)}",
                  f"s_cselect_b32 {sr(sPF+2)}, {sr(sPQ[0]+2)}, 0"]
            for k in range(3):
                for e in range(3):
                    pf.append(f"s_cselect_b32 {sr(sPQ[k]+e)}, {sr(sPQ[k+1]+e)}, {sr(sPQ[k]+e)}")
            pf.append(f"s_cselect_b32 {sr(sPQ[3]+2)}, 0, {sr(sPQ[3]+2)}")
            pf.append(f"buffer_load_dword {vr(vdum)}, {vr(vpf)}, {sr(sPF,4)}, 0 offen")
            pfg = [("ATOMIC", pf)]
        else:
            pfg = []
        npre = 21
        pre = sm[:npre]; sm = sm[npre:]
        seq += flat(merge(pre, d[:6], 0, npre))
        d = d[6:]
        per = (len(sm) + 3) // 4
        for kvb in range(4):
            seq.append(WAIT(*[("K", kvb, ks) for ks in range(4)]))
            fill = []
            if 1 <= kvb <= 2: fill += kread(kst, kvb + 1)
            if kvb == 3: fill += vread(vst, 0) + vread(vst, 1)
            dd = d[:6]; d = d[6:]
            sms = sm[kvb * per:(kvb + 1) * per]
            mixed = flat(merge(sms, fill + dd, 0, len(sms))) if sms else flat(fill + dd)
            seq += merge_keep(qk_group(1 - par, kvb), mixed)
        assert not d
        for g in pfg: seq += g[1]
        seq += [f"s_add_u32 s3, {sr(s_n)}, {sr(s_pass)}", "s_cmp_lt_u32 s3, 6", f"s_cselect_b32 {sr(sKV+2)}, {sr(s_nrV)}, 0"] + kvtouch()
        seq += check(lab)
        seq.append(f"{lab}_ret:")
        seq += phaseB(vst, True)
        rare_blocks.append((lab, par, True))
        return seq

    def merge_keep(main, fill):
        n = len(main); out = []; m = len(fill); k = 0
        for i in range(n):
            out.append(main[i])
            upto = (i + 1) * m // n
            while k < upto: out.append(fill[k]); k += 1
        return out

    def last(par):
        lab = f"{name}_rareL{par}"
        seq = [f"s_waitcnt vmcnt({2 if par == 1 else 1}) lgkmcnt(0)", "s_barrier"]
        seq += [f"s_cmp_eq_u32 {sr(s_wave)}, 2", f"s_cbranch_scc1 {name}_merge"]
        seq += vread(par, 0) + vread(par, 1)
        for kvb in range(4):
            for qb in range(4):
                if kvb < qb: continue
                for r in range(4):
                    s = Sb(par, kvb, qb) + r
                    m = sMD[r] if kvb == qb else sMB
                    seq.append(f"v_cndmask_b32 {vr(s)}, {vr(s)}, {vr(vneg)}, {sr(m,2)}")
        if par == 0:
            seq += [f"s_cmp_lg_u32 {sr(s_i)}, 0", f"s_cbranch_scc1 {name}_nofirst"]
            seq += fixmax(0, False, True)
            seq.append(f"{name}_nofirst:")
        seq += softmax_ops(par)
        seq += check(lab)
        seq.append(f"{lab}_ret:")
        seq += phaseB(par, True)
        rare_blocks.append((lab, par, False))
        return seq

    def emit(seq):
        for x in resolve(flat(seq)):
            if x.endswith(":"): a.label(x[:-1])
            else: a(x)

    a.label(f"{name}_tile")
    a(f"s_lshl_b32 s3, {sr(s_i)}, 15")
    a(f"s_lshl_b32 s6, {sr(s_qh)}, 14")
    a("s_add_u32 s3, s3, s6")
    a(f"s_add_u32 s3, s3, {sr(s_hb)}")
    a(f"v_lshlrev_b32 {vr(vT)}, 4, {vr(vlane)}")
    a(f"v_add_u32 {vr(vq)}, s3, {vr(vT)}")
    a(f"s_add_u32 s3, {sr(s_hb)}, {sr(s_m0)}")
    a(f"v_add_u32 {vr(vsrc)}, s3, {vr(vT)}")
    a(f"v_mov_b32 {vr(vsrcV)}, {vr(vsrc)}")
    a(f"s_mov_b32 {sr(s_nrK)}, {16<<20}")
    a(f"s_mov_b32 {sr(sK+2)}, {16<<20}")
    for g in dma("K", 0): a(g)
    for qb in range(4):
        a(f"s_mov_b32 s3, {qb*4096}")
        for ks in range(4):
            a(f"buffer_load_dwordx4 {ar(Q(qb,ks),4)}, {vr(vq)}, {sr(sQ,4)}, s3 offen offset:{ks*1024}")
    for g in dma("V", 0): a(g)
    a(f"s_cmp_ge_u32 {sr(s_i)}, 1")
    a(f"s_cselect_b32 {sr(sK+2)}, {sr(s_nrK)}, 0")
    for g in dma("K", 1): a(g)
    a(f"s_mov_b32 {sr(s_nrV)}, {48<<20}")
    a(f"s_cmp_eq_u32 {sr(s_pass)}, 0")
    a(f"s_cselect_b32 {sr(sKV+2)}, {sr(s_nrV)}, 0")
    a(kvtouch()); a(kvtouch())
    for r in range(144): a(f"v_accvgpr_write_b32 {ar(r)}, 0")
    for qb in range(4): a(f"v_mov_b32 {vr(vM+qb)}, {vr(vneg)}")
    a(f"s_mov_b32 {sr(s_n)}, 0")
    a("s_waitcnt vmcnt(18)")
    a("s_barrier")
    if stamps.ENABLE:
        a(f"s_cmp_lg_u32 {sr(s_pass)}, 0"); a(f"s_cbranch_scc1 {name}_st1"); st.stamp(1); a("s_waitcnt lgkmcnt(0)"); a.label(f"{name}_st1")
    seq = kread(0, 0) + kread(0, 1)
    for kvb in range(4):
        seq.append(WAIT(*[("K", kvb, ks) for ks in range(4)]))
        fill = kread(0, kvb + 1) if 1 <= kvb <= 2 else []
        seq += merge(qk_group(0, kvb, czero=True), fill, 0, 8)
    emit(seq)
    a(f"s_cmp_eq_u32 {sr(s_i)}, 0")
    a(f"s_cbranch_scc1 {name}_last0")
    emit(fixmax(0, False, True))
    a.label(f"{name}_loop")
    emit(iteration(0))
    a(f"s_add_u32 {sr(s_n)}, {sr(s_n)}, 1")
    a(f"s_cmp_eq_u32 {sr(s_n)}, {sr(s_i)}")
    a(f"s_cbranch_scc1 {name}_last1")
    emit(iteration(1))
    a(f"s_add_u32 {sr(s_n)}, {sr(s_n)}, 1")
    a(f"s_cmp_lg_u32 {sr(s_n)}, {sr(s_i)}")
    a(f"s_cbranch_scc1 {name}_loop")
    a.label(f"{name}_last0")
    a("s_nop 7")
    emit(last(0))
    a(f"s_branch {name}_merge")
    a.label(f"{name}_last1")
    emit(last(1))
    a.label(f"{name}_merge")
    a("s_waitcnt lgkmcnt(0)")
    a("s_barrier")
    if stamps.ENABLE:
        st.stamp(4)
        a(f"s_cmp_lg_u32 {sr(s_pass)}, 0"); a(f"s_cbranch_scc1 {name}_st2"); st.stamp(2); a.label(f"{name}_st2"); a("s_waitcnt lgkmcnt(0)")
    a("s_nop 7")
    a(f"s_cmp_eq_u32 {sr(s_par)}, 0")
    a(f"s_cbranch_scc0 {name}_send1")
    def send(dbs):
        k = 0
        for db in dbs:
            for qb in range(4):
                a(f"ds_write_b128 {vr(vmrg)}, {ar(O(db,qb),4)} offset:{k*1024}"); k += 1
    send(range(4, 8))
    a(f"s_branch {name}_sent")
    a.label(f"{name}_send1")
    send(range(0, 4))
    a.label(f"{name}_sent")
    for qb in range(4): a(f"v_accvgpr_read_b32 {vr(vD+qb)}, {ar(L(qb))}")
    a(f"ds_write_b128 {vr(vmrg)}, {vr(vM,4)} offset:{16*1024}")
    a(f"ds_write_b128 {vr(vmrg)}, {vr(vD,4)} offset:{17*1024}")
    a("s_waitcnt lgkmcnt(0)")
    a("s_barrier")
    R = vS
    a(f"ds_read_b128 {vr(vT,4)}, {vr(vmrgR)} offset:{16*1024}")
    a(f"ds_read_b128 {vr(vT+4,4)}, {vr(vmrgR)} offset:{17*1024}")
    for k in range(16): a(f"ds_read_b128 {vr(R+4*k,4)}, {vr(vmrgR)} offset:{k*1024}")
    a("s_waitcnt lgkmcnt(15)")
    a("s_waitcnt lgkmcnt(14)") if False else None
    a("s_waitcnt lgkmcnt(0)")
    CA, CB = vNM, vNM + 4
    for qb in range(4):
        mm = vT + 8 + qb
        a(f"v_max_f32 {vr(mm)}, {vr(vM+qb)}, {vr(vT+qb)}")
        a(f"v_sub_f32 {vr(CA+qb)}, {vr(vM+qb)}, {vr(mm)}")
        a(f"v_sub_f32 {vr(CB+qb)}, {vr(vT+qb)}, {vr(mm)}")
        a(f"v_exp_f32 {vr(CA+qb)}, {vr(CA+qb)}")
        a(f"v_exp_f32 {vr(CB+qb)}, {vr(CB+qb)}")
        a("s_nop 0")
        a(f"v_mul_f32 {vr(mm)}, {vr(vD+qb)}, {vr(CA+qb)}")
        a(f"v_fmac_f32 {vr(mm)}, {vr(vT+4+qb)}, {vr(CB+qb)}")
        a(f"v_rcp_f32 {vr(mm)}, {vr(mm)}")
        a("s_nop 0")
        a(f"v_mul_f32 {vr(CA+qb)}, {vr(CA+qb)}, {vr(mm)}")
        a(f"v_mul_f32 {vr(CB+qb)}, {vr(CB+qb)}, {vr(mm)}")
    a(f"s_lshl_b32 s3, {sr(s_i)}, 3")
    a(f"s_lshl_b32 s6, {sr(s_qh)}, 2")
    a("s_add_u32 s3, s3, s6")
    a(f"s_mul_i32 s3, s3, {Z_KB*1024}")
    a(f"s_lshl_b32 s6, {sr(s_head)}, 12")
    a("s_add_u32 s3, s3, s6")
    a(f"s_lshl_b32 s6, {sr(s_par)}, 11")
    a("s_add_u32 s3, s3, s6")
    a(f"s_add_u32 s3, s3, {112*1024}")
    a(f"v_lshlrev_b32 {vr(vq)}, 4, {vr(vlane)}")
    a(f"v_add_u32 {vr(vq)}, s3, {vr(vq)}")
    a(f"s_cmp_eq_u32 {sr(s_par)}, 0")
    a(f"s_cbranch_scc0 {name}_fin1")
    def fin(db0):
        W = vS + 64
        cnt = 0
        for qb in range(4):
            a(f"s_mov_b32 s3, {qb*Z_KB*1024}")
            for uu in range(2):
                b = W + (cnt % 4) * 12; cnt += 1
                for e in range(8):
                    a(f"v_accvgpr_read_b32 {vr(b+4+e)}, {ar(O(db0 + 2*uu + e//4, qb) + e%4)}")
                for e in range(8):
                    a(f"v_mul_f32 {vr(b+4+e)}, {vr(b+4+e)}, {vr(CA+qb)}")
                for e in range(8):
                    k = (2 * uu + e // 4) * 4 + qb
                    a(f"v_fmac_f32 {vr(b+4+e)}, {vr(R+4*k+e%4)}, {vr(CB+qb)}")
                for p in range(4):
                    a(f"v_cvt_pk_bf16_f32 {vr(b+p)}, {vr(b+4+2*p)}, {vr(b+5+2*p)}")
                a(f"buffer_store_dwordx4 {vr(b,4)}, {vr(vq)}, {sr(sZ,4)}, s3 offen offset:{uu*1024}")
    fin(0)
    a(f"s_branch {name}_fin")
    a.label(f"{name}_fin1")
    fin(4)
    a.label(f"{name}_fin")
    a(f"s_cmp_lg_u32 {sr(s_pass)}, 0")
    a(f"s_cbranch_scc1 {name}_done")
    st.stamp(3)
    a(f"s_mov_b32 {sr(s_pass)}, 64")
    a(f"s_mov_b32 {sr(s_i)}, {sr(s_p)}")
    a("s_barrier")
    a(f"s_branch {name}_tile")
    a.label(f"{name}_done")
    st.flush("s87", 6)
    a.label(f"{name}_end")
    a("s_endpgm")
    for lab, par, has_next in rare_blocks:
        a.label(lab)
        emit(fixmax(par, has_next, False))
        emit(softmax_ops(par))
        a("s_nop 1")
        a(f"s_branch {lab}_ret")
    acc_off = (V.next + 3) // 4 * 4
    return dict(name=name, nv=acc_off + NA, acc_off=acc_off, grid=256, block=256, lds=131072)
```

```python
from asmb import *
from gemm_gen import GemmCfg
from gemm3 import GemmCore3
from stamps import Stamper
from k1_gen import srd, f32, WS_Z, WS_G, Z_KB, WS_CNT, WS_PART

def gen_k3(a, name="k3_kernel", stages=4, D=12, helper=False):
    cfg = GemmCfg(128, 128, 2, 2, native_a=True, swap=False, stages=stages, ms=16)
    kernel_header(a, name)
    V = RegAlloc(1, 256, "v"); S = RegAlloc(36, 87, "s"); st = Stamper(a, 2)
    core = GemmCore3(a, cfg, V, S, False)
    acc = core.accbase
    vlane = V.alloc("lane"); vt = [V.alloc(f"t{i}") for i in range(4)]
    vout = V.alloc("vout"); vg = V.alloc("g", 4); vpart = V.alloc("vpart"); vcnt = V.alloc("vcnt"); vone = V.alloc("one")
    vpa = V.alloc("vpa"); vpw = V.alloc("vpw"); vdum = V.alloc("vdum")
    s_wave = S.alloc("wave"); s_wt = S.alloc("wt"); s_wn = S.alloc("wn")
    s_tm = S.alloc("tm"); s_tn = S.alloc("tn"); s_half = S.alloc("half")
    s_ab = S.alloc("ab"); s_lda = S.alloc("lda"); s_bb = S.alloc("bb"); s_ldw = S.alloc("ldw")
    sO = S.alloc("srdO", 4, 4); sG = S.alloc("srdG", 4, 4); sP = S.alloc("srdP", 4, 4); sC = S.alloc("srdC", 4, 4)
    a("s_cmp_ge_u32 s2, 256")
    a(f"s_cbranch_scc1 {name}_end")
    st.stamp(0)
    a("s_mov_b32 s87, s2")
    a("s_load_dwordx16 s[8:23], s[0:1], 0")
    a("s_load_dwordx8 s[24:31], s[0:1], 64")
    a("s_load_dwordx4 s[32:35], s[0:1], 96")
    a(f"v_and_b32 {vr(vlane)}, 63, v0")
    a(f"v_lshrrev_b32 {vr(vt[0])}, 6, v0")
    a("s_nop 0")
    a(f"v_readfirstlane_b32 {sr(s_wave)}, {vr(vt[0])}")
    a("s_nop 3")
    a(f"s_lshr_b32 {sr(s_wt)}, {sr(s_wave)}, 1")
    a(f"s_and_b32 {sr(s_wn)}, {sr(s_wave)}, 1")
    a(f"s_and_b32 {sr(s_half)}, s2, 1")
    a("s_lshr_b32 s4, s2, 3")
    a("s_bfe_u32 s5, s2, 0x10002"); a("s_lshl_b32 s5, s5, 3")
    a("s_and_b32 s6, s4, 7"); a(f"s_add_u32 {sr(s_tm)}, s5, s6")
    a("s_bfe_u32 s5, s2, 0x10001"); a("s_lshl_b32 s5, s5, 2")
    a("s_lshr_b32 s6, s4, 3"); a(f"s_add_u32 {sr(s_tn)}, s5, s6")
    a("s_waitcnt lgkmcnt(0)")
    srd(a, core.sA, 34, 35, 128 * Z_KB * 1024, WS_Z)
    a(f"s_cmp_eq_u32 {sr(s_half)}, 0")
    a("s_cselect_b32 s4, s26, s18")
    a("s_cselect_b32 s5, s27, s19")
    srd(a, core.sB, 4, 5, 0)
    a(f"s_mov_b32 s6, {3584*2048}")
    a(f"s_cselect_b32 {sr(core.sB+2)}, s6, {4096*2048}")
    T = core.tail_len(); U = core.U
    assert (56 - T) % U == 0 and (64 - T) % U == 0
    a(f"s_cselect_b32 {sr(core.sLoop)}, {(56-T)//U}, {(64-T)//U}")
    a(f"s_cselect_b32 s6, 0, {112*1024}")
    srd(a, sO, 30, 31, 2048 * 1024 * 2)
    srd(a, sG, 34, 35, 8192, WS_G)
    srd(a, sP, 34, 35, 128 * 65536, WS_PART)
    srd(a, sC, 34, 35, 512 * 128, WS_CNT)
    a(f"s_mov_b32 {sr(s_lda)}, {Z_KB*1024}")
    a(f"s_mul_i32 {sr(s_ab)}, {sr(s_tm)}, {8*Z_KB*1024}")
    a(f"s_add_u32 {sr(s_ab)}, {sr(s_ab)}, s6")
    a(f"s_mov_b32 {sr(s_ldw)}, 2048")
    a(f"s_lshl_b32 {sr(s_bb)}, {sr(s_tn)}, 8")
    a(f"s_lshr_b32 s3, {sr(s_wave)}, 1")
    a("s_lshl_b32 s3, s3, 7")
    a(f"s_add_u32 {sr(s_bb)}, {sr(s_bb)}, s3")
    if helper:
        a(f"s_cmp_eq_u32 {sr(s_wave)}, 4")
        a(f"s_cbranch_scc1 {name}_helper")
    core.setup_src(vlane, s_wave, s_ab, s_lda, s_bb, s_ldw, vt)
    core.setup_lane_consts(vlane, s_wave, s_wt, s_wn, vt)
    a(f"s_lshl_b32 s3, {sr(s_tm)}, 7")
    a(f"s_lshl_b32 s4, {sr(s_wt)}, 6")
    a("s_add_u32 s3, s3, s4")
    a(f"v_and_b32 {vr(vt[0])}, 15, {vr(vlane)}")
    a(f"v_add_u32 {vr(vt[0])}, s3, {vr(vt[0])}")
    a(f"v_lshlrev_b32 {vr(vt[1])}, 2, {vr(vt[0])}")
    for j in range(4):
        a(f"buffer_load_dword {vr(vg+j)}, {vr(vt[1])}, {sr(sG,4)}, 0 offen offset:{j*64}")
    core.prologue_dma()
    a(f"s_and_b32 s3, {sr(s_tn)}, 3"); a("s_lshl_b32 s3, s3, 1"); a(f"s_add_u32 s3, s3, {sr(s_wt)}")
    a(f"s_mul_i32 s3, s3, {sr(s_lda)}"); a(f"s_add_u32 s3, s3, {sr(s_ab)}")
    a(f"s_lshl_b32 s4, {sr(s_wn)}, 12"); a("s_add_u32 s3, s3, s4")
    a(f"v_lshlrev_b32 {vr(vpa)}, 7, {vr(vlane)}")
    a(f"v_add_u32 {vr(vpa)}, s3, {vr(vpa)}")
    a(f"v_bfrev_b32 {vr(vt[3])}, 1")
    a(f"v_cmp_gt_u32 vcc, 32, {vr(vlane)}")
    a("s_nop 1")
    a(f"v_cndmask_b32 {vr(vpa)}, {vr(vt[3])}, {vr(vpa)}, vcc")
    a(f"s_and_b32 s3, {sr(s_tm)}, 7"); a("s_lshl_b32 s3, s3, 3"); a(f"s_lshl_b32 s4, {sr(s_wave)}, 6"); a("s_add_u32 s3, s3, s4")
    a(f"v_lshrrev_b32 {vr(vpw)}, 1, {vr(vlane)}")
    a(f"v_add_u32 {vr(vpw)}, s3, {vr(vpw)}")
    a(f"v_lshlrev_b32 {vr(vpw)}, 11, {vr(vpw)}")
    a(f"v_and_b32 {vr(vt[2])}, 1, {vr(vlane)}")
    a(f"v_lshl_add_u32 {vr(vpw)}, {vr(vt[2])}, 7, {vr(vpw)}")
    a(f"s_lshl_b32 s3, {sr(s_tn)}, 8")
    a(f"v_add_u32 {vr(vpw)}, s3, {vr(vpw)}")
    a(f"v_cmp_gt_u32 vcc, 16, {vr(vlane)}")
    a("s_nop 1")
    a(f"v_cndmask_b32 {vr(vpw)}, {vr(vt[3])}, {vr(vpw)}, vcc")
    tA = [f"buffer_load_dword {vr(vdum)}, {vr(vpa)}, {sr(core.sA,4)}, 0 offen", f"v_add_u32 {vr(vpa)}, 0x2000, {vr(vpa)}"]
    tW = [f"buffer_load_dword {vr(vdum)}, {vr(vpw)}, {sr(core.sB,4)}, 0 offen", f"v_add_u32 {vr(vpw)}, {4*64*2048}, {vr(vpw)}"]
    a(tA[1]); a(tW[1])
    NPF = D // 4
    import os
    K3PF = not os.environ.get("K3_NOPF")
    if K3PF:
        for _ in range(NPF - 1): a(tA); a(tW)
    core.zero_acc()
    a(f"v_lshlrev_b32 {vr(vout)}, 11, {vr(vt[0])}")
    a(f"v_lshrrev_b32 {vr(vt[2])}, 4, {vr(vlane)}")
    a(f"v_lshl_add_u32 {vr(vout)}, {vr(vt[2])}, 3, {vr(vout)}")
    a(f"s_lshl_b32 s3, {sr(s_tn)}, 8")
    a(f"s_lshl_b32 s4, {sr(s_wn)}, 7")
    a("s_add_u32 s3, s3, s4")
    a(f"v_add_u32 {vr(vout)}, s3, {vr(vout)}")
    a(f"s_lshl_b32 s3, {sr(s_tm)}, 3")
    a(f"s_add_u32 s3, s3, {sr(s_tn)}")
    a("s_lshl_b32 s3, s3, 2")
    a(f"s_add_u32 s3, s3, {sr(s_wave)}")
    a("s_lshl_b32 s4, s3, 14")
    a(f"v_lshlrev_b32 {vr(vpart)}, 4, {vr(vlane)}")
    a(f"v_add_u32 {vr(vpart)}, s4, {vr(vpart)}")
    a("s_lshl_b32 s4, s3, 7")
    a(f"v_mov_b32 {vr(vcnt)}, s4")
    core.mainloop(core.sLoop, f"{name}_loop", st, 1, extras={0: tA, 2: tW} if K3PF else None, pro_extra=2*(NPF-1) if K3PF else 0)
    st.stamp(2)
    a(f"v_mov_b32 {vr(vone)}, 1")
    a("s_mov_b64 s[6:7], exec")
    a("s_mov_b64 exec, 1")
    a(f"buffer_atomic_add {vr(vone)}, {vr(vcnt)}, {sr(sC,4)}, 0 offen sc0")
    a("s_waitcnt vmcnt(0)")
    a(f"v_readfirstlane_b32 s3, {vr(vone)}")
    a("s_mov_b64 exec, s[6:7]")
    a("s_nop 3")
    a("s_cmp_lg_u32 s3, 0")
    a(f"s_cbranch_scc1 {name}_second")
    for k in range(16):
        so = "0" if k < 4 else f"s{4}"
        if k % 4 == 0 and k: a(f"s_mov_b32 s4, {(k//4)*4096}")
        a(f"buffer_store_dwordx4 {vr(acc+4*k,4)}, {vr(vpart)}, {sr(sP,4)}, {so} offen offset:{(k%4)*1024} sc1")
    a("s_waitcnt vmcnt(0)")
    a(f"v_mov_b32 {vr(vone)}, 1")
    a("s_mov_b64 exec, 1")
    a(f"buffer_atomic_add {vr(vone)}, {vr(vcnt)}, {sr(sC,4)}, 0 offen offset:64")
    a("s_mov_b64 exec, s[6:7]")
    st.stamp(3); st.stamp(4)
    st.flush("s87", 6)
    a("s_endpgm")
    a.label(f"{name}_second")
    a("s_mov_b64 exec, 1")
    a.label(f"{name}_poll")
    a(f"buffer_load_dword {vr(vone)}, {vr(vcnt)}, {sr(sC,4)}, 0 offen offset:64 sc1")
    a("s_waitcnt vmcnt(0)")
    a(f"v_readfirstlane_b32 s3, {vr(vone)}")
    a("s_nop 3")
    a("s_cmp_lg_u32 s3, 0")
    a(f"s_cbranch_scc1 {name}_ready")
    a("s_sleep 4")
    a(f"s_branch {name}_poll")
    a.label(f"{name}_ready")
    a("s_mov_b64 exec, s[6:7]")
    st.stamp(3)
    R = core.xf[0][0][0]
    for k in range(16):
        so = "0" if k < 4 else f"s{4}"
        if k % 4 == 0 and k: a(f"s_mov_b32 s4, {(k//4)*4096}")
        a(f"buffer_load_dwordx4 {vr(R+4*k,4)}, {vr(vpart)}, {sr(sP,4)}, {so} offen offset:{(k%4)*1024} sc1")
    a(f"s_cmp_lg_u32 {sr(s_half)}, 0")
    a(f"s_cbranch_scc1 {name}_cg")
    for j in range(4): a(f"v_sub_f32 {vr(vg+j)}, 1.0, {vr(vg+j)}")
    a.label(f"{name}_cg")
    W = core.wf[0][0]
    cnt = 0
    for i in range(4):
        for j in range(4):
            k = i * 4 + j
            a(f"s_waitcnt vmcnt({15 - k + cnt})")
            b = W + (cnt % 4) * 8; cnt += 1
            o = k * 4
            for r in range(4):
                a(f"v_sub_f32 {vr(b+2+r)}, {vr(acc+o+r)}, {vr(R+o+r)}")
            for r in range(4):
                a(f"v_fma_f32 {vr(b+2+r)}, {vr(b+2+r)}, {vr(vg+j)}, {vr(R+o+r)}")
            a(f"v_cvt_pk_bf16_f32 {vr(b)}, {vr(b+2)}, {vr(b+3)}")
            a(f"v_cvt_pk_bf16_f32 {vr(b+1)}, {vr(b+4)}, {vr(b+5)}")
            a(f"s_mov_b32 s3, {j*16*2048}")
            a(f"buffer_store_dwordx2 {vr(b,2)}, {vr(vout)}, {sr(sO,4)}, s3 offen offset:{i*32}")
    st.stamp(4)
    st.flush("s87", 6)
    a.label(f"{name}_end")
    a("s_endpgm")
    acc_off = (V.next + 3) // 4 * 4
    return dict(name=name, nv=acc_off, acc_off=acc_off, grid=256, block=256, lds=cfg.LDS)
```

```python
from asmb import *
ENABLE = False
WS_STAMP = 96 << 20
class Stamper:
    def __init__(self, a, kidx, ws_lo=None, ws_hi=None):
        self.a, self.k, self.n = a, kidx, 0
    def stamp(self, idx):
        if not ENABLE: return
        self.a(f"s_memrealtime s[{88+2*idx}:{89+2*idx}]")
    def cyc(self, idx):
        if not ENABLE: return
        self.a(f"s_memtime s[{88+2*idx}:{89+2*idx}]")
    def flush(self, wg_sgpr, nst, nextra=0):
        if not ENABLE: return
        a = self.a
        a(f"s_memrealtime s[{88+2*(nst-1)}:{89+2*(nst-1)}]")
        a("s_load_dwordx2 s[12:13], s[0:1], 104")
        a("s_waitcnt lgkmcnt(0)")
        a(f"s_add_u32 s8, s12, {WS_STAMP + self.k*65536*4}")
        a("s_addc_u32 s9, s13, 0")
        a(f"s_mov_b32 s10, {65536*4}"); a("s_mov_b32 s11, 0x20000")
        for i in range(nst + nextra): a(f"v_mov_b32 v{2+i}, s{88+2*i}")
        a("s_getreg_b32 s12, hwreg(HW_REG_XCC_ID)")
        a("s_getreg_b32 s13, hwreg(HW_REG_HW_ID)")
        a("v_mov_b32 v8, s12"); a("v_mov_b32 v9, s13")
        a(f"s_lshl_b32 s12, {wg_sgpr}, 6")
        a("v_mov_b32 v1, s12")
        a("v_cmp_eq_u32 vcc, 0, v0")
        a("s_and_saveexec_b64 s[14:15], vcc")
        a("buffer_store_dwordx4 v[2:5], v1, s[8:11], 0 offen")
        a("buffer_store_dwordx4 v[6:9], v1, s[8:11], 0 offen offset:16")
```

```python
from asmb import *
import os
ENABLE = not os.environ.get("NO_CODEPF")
def code_touch(a, start_label, end_label, vlane, vtmp, vdst, s_sel, uid, nparts=8):
    if not ENABLE: return
    a("s_getpc_b64 s[4:5]")
    a.label(f"cpf_{uid}")
    a(f"s_add_u32 s4, s4, {start_label}-cpf_{uid}")
    a(f"s_addc_u32 s5, s5, {'-1' if BACK.get(uid) else '0'}")
    a(f"s_mov_b32 s6, {end_label}-{start_label}")
    a("s_mov_b32 s7, 0x20000")
    a(f"s_lshl_b32 s3, {s_sel}, 13")
    a(f"v_lshlrev_b32 {vr(vtmp)}, 7, {vr(vlane)}")
    a(f"buffer_load_dword {vr(vdst)}, {vr(vtmp)}, s[4:7], s3 offen")
BACK = {}
```

```python
from asmb import *
from gemm_gen import GemmCfg
from gemm3 import GemmCore3
from stamps import Stamper
import stamps
from k1_gen import srd, f32, WS_Q, WS_K, WS_V, WS_Z, WS_G, WS_CNT, Z_KB, QSCALE
import math, os
import codepf
STMOD = os.environ.get('STMOD', ' sc1')
PF = not os.environ.get('K1_NOPF')
NOSTORE = bool(os.environ.get('K1_NOSTORE'))

class Core4(GemmCore3):
    def __init__(self, a, cfg, V, S):
        self.a, self.c, self.V, self.S = a, cfg, V, S
        c = cfg
        self.U = 2
        self.accv = V.alloc("acc", 224, 4)
        A = RegAlloc(0, 256, "a")
        self.xf = [[[A.alloc(f"xf{b}{j}{k}", 4, 4) for k in range(2)] for j in range(c.TJ)] for b in range(2)]
        self.wf = [[A.alloc(f"wf{b}{k}", 4, 4) for k in range(2)] for b in range(self.NWB)]
        A.next = max(A.next, getattr(cfg, "acc7_base", 0))
        self.acca = A.alloc("acc7", 32, 4)
        self.NA = A.next
        self.vXrd = [V.alloc(f"vXrd{s}") for s in range(2)]
        self.vWrd = [V.alloc(f"vWrd{p}") for p in range(4)]
        self.vAsrc = [V.alloc(f"vAsrc{p}") for p in range(2)]
        self.nB = 2
        self.vBsrc = [V.alloc(f"vBsrc{p}") for p in range(2)]
        self.sA = S.alloc("srdA", 4, 4); self.sB = S.alloc("srdB", 4, 4)
        self.soffA = [S.alloc(f"soffA{q}") for q in range(c.PA)]
        self.soffB = [S.alloc(f"soffB{q}") for q in range(c.PB)]
        self.sM0A = S.alloc("m0A"); self.sM0B = S.alloc("m0B")
        self.sKA = S.alloc("kstepA"); self.sKB = S.alloc("kstepB")
        self.sLoop = S.alloc("loop")
        self.zero_first = False
    def in_v(self, i): return i < 7
    def acc(self, i, j):
        return vr(self.accv + (i * 8 + j) * 4, 4) if i < 7 else ar(self.acca + j * 4, 4)
    def accidx(self, i, j, r):
        return self.accv + (i * 8 + j) * 4 + r if i < 7 else self.acca + j * 4 + r
    def row_mfmas(self, t, i, zero=False):
        c = self.c
        out = []
        for j in range(c.TJ):
            for k in range(2):
                w, x = ar(self.wf[i % self.NWB][k], 4), ar(self.xf[t % 2][j][k], 4)
                A, B = (x, w) if c.swap else (w, x)
                C = "0" if (self.zero_first and t == 0 and k == 0) else self.acc(i, j)
                out.append(f"v_mfma_f32_16x16x32_bf16 {self.acc(i,j)}, {A}, {B}, {C}")
        return out
    def xreads(self, t):
        return [x.replace("ds_read_b128 v[", "ds_read_b128 a[") for x in super().xreads(t)]
    def wreads(self, t, i):
        return [x.replace("ds_read_b64_tr_b16 v[", "ds_read_b64_tr_b16 a[") for x in super().wreads(t, i)]

def schedule():
    big = []
    for b in range(44):
        q, r = divmod(b, 11)
        big.append((0, q * 4 + r) if r < 4 else (3, q * 7 + r - 4))
    small = [(1 + (s & 1), s >> 1) for s in range(32)]
    tab = []
    bi = si = 0
    for x in range(8):
        def B():
            nonlocal bi; bi += 1; return big[bi - 1]
        def Sm():
            nonlocal si; si += 1; return small[si - 1]
        if x < 4: g = [[B(), B()], [B(), B()], [Sm(), B(), Sm()], [Sm(), B()]]
        else: g = [[B(), B()], [B(), Sm(), Sm()], [Sm(), B(), Sm()], [Sm(), B()]]
        tab.append(g)
    assert bi == 44 and si == 32
    return tab

def gen_k1(a, name="k1_kernel", NEXT=True):
    cfgN = GemmCfg(256, 256, 2, 2, native_a=False, swap=False, stages=2, ms=16)
    cfgS = GemmCfg(256, 256, 2, 2, native_a=False, swap=True, stages=2, ms=16)
    kernel_header(a, name)
    V = RegAlloc(0, 256, "v"); S = RegAlloc(36, 87, "s"); st = Stamper(a, 0)
    vT = V.alloc("T", 16, 4)
    core = Core4(a, cfgN, V, S)
    vlane = V.alloc("lane"); vout = V.alloc("vout"); vc1 = V.alloc("c1", 2, 2)
    vt = [vT + 4, vT + 5, vT + 6, vT + 7]
    s_wave = S.alloc("wave"); s_wt = S.alloc("wt"); s_wn = S.alloc("wn"); s_tm = S.alloc("tm")
    s_list = S.alloc("list"); s_cur = S.alloc("cur"); s_nxt = S.alloc("nxt")
    s_ab, s_lda, s_bb, s_ldw = 21, 26, 27, 30
    sO = S.alloc("srdO", 4, 4)
    sPF = S.alloc("srdPF", 4, 4); s_pf2 = 20
    vpf = V.alloc("vpf"); vdum = V.alloc("vdum")
    s_c = 18
    a("s_cmp_ge_u32 s2, 256")
    a(f"s_cbranch_scc1 {name}_end")
    st.stamp(0)
    a("s_mov_b32 s87, s2")
    a("s_load_dwordx16 s[8:23], s[0:1], 0")
    a("s_load_dwordx8 s[24:31], s[0:1], 64")
    a("s_load_dwordx4 s[32:35], s[0:1], 96")
    a(f"v_and_b32 {vr(vlane)}, 63, v0")
    a(f"v_lshrrev_b32 {vr(vt[0])}, 6, v0")
    a("s_nop 0")
    a(f"v_readfirstlane_b32 {sr(s_wave)}, {vr(vt[0])}")
    a("s_nop 3")
    a(f"s_lshr_b32 {sr(s_wt)}, {sr(s_wave)}, 1")
    a(f"s_and_b32 {sr(s_wn)}, {sr(s_wave)}, 1")
    a(f"s_bfe_u32 {sr(s_tm)}, s2, 0x30003")
    a("s_and_b32 s3, s2, 7"); a("s_lshl_b32 s3, s3, 2")
    a("s_lshr_b32 s4, s2, 6"); a("s_add_u32 s3, s3, s4")
    tab = schedule()
    a(f"s_mov_b32 {sr(s_list)}, 0")
    for x in range(8):
        for g in range(4):
            val = 0
            for k, (ty, col) in enumerate(tab[x][g]): val |= (0x80 | (ty << 5) | col) << (8 * k)
            a(f"s_cmp_eq_u32 s3, {x*4+g}")
            a(f"s_cselect_b32 {sr(s_list)}, {val}, {sr(s_list)}")
    c1 = -2.0 * math.sqrt(2.0 / math.pi) * math.log2(math.e)
    c2 = c1 * 0.044715

    uid = [0]
    def decodeB(sB):
        uid[0] += 1; L = f"{name}_db{uid[0]}"
        a("s_cmp_eq_u32 s5, 3")
        a(f"s_cbranch_scc1 {L}_gu")
        a(f"s_mov_b32 {sr(sB)}, s12"); a(f"s_mov_b32 {sr(sB+1)}, s13"); a(f"s_mov_b32 {sr(sB+2)}, {1024*8192}")
        a("s_cmp_eq_u32 s5, 1")
        a(f"s_cselect_b32 {sr(sB)}, s14, {sr(sB)}"); a(f"s_cselect_b32 {sr(sB+1)}, s15, {sr(sB+1)}")
        a(f"s_cselect_b32 {sr(sB+2)}, {512*8192}, {sr(sB+2)}")
        a("s_cmp_eq_u32 s5, 2")
        a(f"s_cselect_b32 {sr(sB)}, s16, {sr(sB)}"); a(f"s_cselect_b32 {sr(sB+1)}, s17, {sr(sB+1)}")
        a(f"s_cselect_b32 {sr(sB+2)}, {512*8192}, {sr(sB+2)}")
        a(f"s_mov_b32 {sr(s_ldw)}, 8192")
        a(f"s_lshl_b32 {sr(s_bb)}, s6, 9")
        a(f"s_lshl_b32 s3, {sr(s_wave)}, 7")
        a(f"s_add_u32 {sr(s_bb)}, {sr(s_bb)}, s3")
        a(f"s_branch {L}_src")
        a.label(f"{L}_gu")
        a(f"s_cmp_eq_u32 {sr(s_wn)}, 0")
        a(f"s_cselect_b32 {sr(sB)}, s22, s24"); a(f"s_cselect_b32 {sr(sB+1)}, s23, s25")
        a(f"s_mov_b32 {sr(sB+2)}, {1024*7168}")
        a(f"s_mov_b32 {sr(s_ldw)}, 7168")
        a(f"s_lshl_b32 {sr(s_bb)}, s6, 8")
        a(f"s_lshl_b32 s3, {sr(s_wt)}, 7")
        a(f"s_add_u32 {sr(s_bb)}, {sr(s_bb)}, s3")
        a.label(f"{L}_src")
        a(f"s_mov_b32 {sr(sB+3)}, 0x20000")
    def set_pf(code):
        a(f"s_bfe_u32 s5, {sr(code)}, 0x20005"); a(f"s_and_b32 s6, {sr(code)}, 31")
        decodeB(sPF)
        a(f"s_cmp_eq_u32 {sr(code)}, 0")
        a(f"s_cselect_b32 {sr(sPF+2)}, 0, {sr(sPF+2)}")
        a(f"v_lshrrev_b32 {vr(vpf)}, 3, {vr(vlane)}")
        a(f"v_lshlrev_b32 {vr(vpf)}, 6, {vr(vpf)}")
        a(f"v_and_b32 {vr(vt[3])}, 7, {vr(vlane)}")
        a(f"s_lshl_b32 s3, {sr(s_tm)}, 3")
        a(f"v_add3_u32 {vr(vpf)}, {vr(vpf)}, {vr(vt[3])}, s3")
        a(f"v_mul_lo_u32 {vr(vpf)}, {vr(vpf)}, {sr(s_ldw)}")
        a(f"v_add_u32 {vr(vpf)}, {sr(s_bb)}, {vr(vpf)}")
        a(f"v_bfrev_b32 {vr(vt[3])}, 1")
        a(f"v_cmp_gt_u32 vcc, 16, {vr(vlane)}")
        a(f"s_lshl_b32 {sr(s_pf2)}, {sr(s_ldw)}, 7")
        a("s_nop 0")
        a(f"v_cndmask_b32 {vr(vpf)}, {vr(vt[3])}, {vr(vpf)}, vcc")
    def touchW():
        return [f"buffer_load_dword {vr(vdum)}, {vr(vpf)}, {sr(sPF,4)}, 0 offen",
                f"v_add_u32 {vr(vpf)}, {sr(s_pf2)}, {vr(vpf)}"]
    def set_dma_params(code, always=False):
        uid[0] += 1; L = f"{name}_sp{uid[0]}"
        if not always:
            a(f"s_cmp_eq_u32 {sr(code)}, 0")
            a(f"s_cbranch_scc0 {L}_valid")
            a(f"s_mov_b32 {sr(core.sA+2)}, 0"); a(f"s_mov_b32 {sr(core.sB+2)}, 0")
            a(f"s_branch {L}_done")
            a.label(f"{L}_valid")
        a(f"s_bfe_u32 s5, {sr(code)}, 0x20005")
        a(f"s_and_b32 s6, {sr(code)}, 31")
        a("s_sub_u32 s7, s5, 1"); a("s_cmp_lt_u32 s7, 2")
        a(f"s_cselect_b32 {sr(core.sA)}, s10, s8"); a(f"s_cselect_b32 {sr(core.sA+1)}, s11, s9")
        a(f"s_mov_b32 s7, {2048*512*2}")
        a(f"s_cselect_b32 {sr(core.sA+2)}, s7, {2048*1024*2}")
        a(f"s_mov_b32 {sr(core.sA+3)}, 0x20000")
        a(f"s_mov_b32 s7, 1024")
        a(f"s_cselect_b32 {sr(s_lda)}, s7, 2048")
        decodeB(core.sB)
        a(f"s_lshl_b32 s3, {sr(s_tm)}, 8")
        a(f"s_mul_i32 {sr(s_ab)}, s3, {sr(s_lda)}")
        core.setup_src(vlane, s_wave, s_ab, s_lda, s_bb, s_ldw, vt)
        a.label(f"{L}_done")

    a(f"s_and_b32 {sr(s_cur)}, {sr(s_list)}, 0xff")
    a(f"s_lshr_b32 {sr(s_list)}, {sr(s_list)}, 8")
    a("s_waitcnt lgkmcnt(0)")
    set_dma_params(s_cur, True)
    core.setup_lane_consts(vlane, s_wave, s_wt, s_wn, vt)
    core.prologue_dma()
    a(f"v_mov_b32 {vr(vc1)}, {f32(c1)}"); a(f"v_mov_b32 {vr(vc1+1)}, {f32(c1)}")
    ntouch = 0
    if PF:
        set_pf(s_cur)
        a(f"v_add_u32 {vr(vpf)}, {sr(s_pf2)}, {vr(vpf)}")
        a(touchW())
        a("s_and_b32 s3, s2, 7"); a("s_lshl_b32 s3, s3, 2"); a("s_lshr_b32 s4, s2, 6"); a("s_add_u32 s3, s3, s4")
        a("s_lshl_b32 s3, s3, 2"); a(f"s_add_u32 s3, s3, {sr(s_wave)}"); a("s_lshl_b32 s3, s3, 1")
        a(f"s_lshl_b32 s4, {sr(s_tm)}, 8"); a("s_add_u32 s3, s3, s4")
        a(f"v_lshlrev_b32 {vr(vt[0])}, 7, {vr(vlane)}")
        a("s_lshl_b32 s4, s3, 11")
        a(f"s_add_u32 {sr(sO)}, s8, s4"); a(f"s_addc_u32 {sr(sO+1)}, s9, 0"); a(f"s_mov_b32 {sr(sO+2)}, 4096"); a(f"s_mov_b32 {sr(sO+3)}, 0x20000")
        a(f"buffer_load_dword {vr(vdum)}, {vr(vt[0])}, {sr(sO,4)}, 0 offen")
        a("s_lshl_b32 s4, s3, 10")
        a(f"s_add_u32 {sr(sO)}, s10, s4"); a(f"s_addc_u32 {sr(sO+1)}, s11, 0"); a(f"s_mov_b32 {sr(sO+2)}, 2048")
        a(f"buffer_load_dword {vr(vdum)}, {vr(vt[0])}, {sr(sO,4)}, 0 offen")
        a(touchW())
        ntouch = 4
        if codepf.ENABLE:
            a("s_bfe_u32 s31, s2, 0x10003"); a("s_lshl_b32 s31, s31, 2"); a(f"s_add_u32 s31, s31, {sr(s_wave)}")
            codepf.BACK["k1a"] = True
            codepf.code_touch(a, name, "k1_code_end", vlane, vt[0], vdum, "s31", "k1a")
            ntouch = 5
    a(f"s_waitcnt vmcnt({cfgN.PB + ntouch})")
    a("s_barrier")
    a(core.xreads(0)); a(core.wreads(0, 0)); a(core.wreads(0, 1))
    a("s_waitcnt lgkmcnt(0)")
    a("s_barrier")
    st.stamp(1); st.cyc(4)
    if stamps.ENABLE: a("s_waitcnt lgkmcnt(0)")

    a.label(f"{name}_tile")
    a(f"s_and_b32 {sr(s_nxt)}, {sr(s_list)}, 0xff")
    a(f"s_lshr_b32 {sr(s_list)}, {sr(s_list)}, 8")
    a(f"s_bfe_u32 s5, {sr(s_cur)}, 0x20005")
    a("s_sub_u32 s7, s5, 1"); a("s_cmp_lt_u32 s7, 2")
    a(f"s_cselect_b32 {sr(core.sLoop)}, 3, 7")
    a("s_cmp_eq_u32 s5, 2")
    a(f"s_cbranch_scc1 {name}_S_first")
    def body(var, cfg):
        core.c = cfg
        def trip():
            core.step3(0, True, True, True, True, 1 if PF else 0, extra=touchW() if PF else None)
            core.step3(1, True, True, True, True, 0)
        a.label(f"{name}_{var}_first")
        core.zero_first = True
        core._hist = [(4, 0), (4, 0)]
        trip()
        core.zero_first = False
        a(f"s_branch {name}_{var}_ctl")
        a.label(f"{name}_{var}_loop")
        trip()
        a(f"s_sub_u32 {sr(core.sLoop)}, {sr(core.sLoop)}, 1")
        a.label(f"{name}_{var}_ctl")
        a(f"s_cmp_gt_u32 {sr(core.sLoop)}, 3")
        a(f"s_cbranch_scc1 {name}_{var}_loop")
        a(f"s_cmp_eq_u32 {sr(core.sLoop)}, 2")
        a(f"s_cbranch_scc1 {name}_{var}_loop")
        a(f"s_cmp_eq_u32 {sr(core.sLoop)}, 0")
        a(f"s_cbranch_scc1 {name}_{var}_epi")
        a(f"s_cmp_eq_u32 {sr(core.sLoop)}, 1")
        a(f"s_cbranch_scc1 {name}_{var}_sw")
        if PF: set_pf(s_nxt)
        a(f"s_branch {name}_{var}_loop")
        a.label(f"{name}_{var}_sw")
        set_dma_params(s_nxt)
        a(f"s_branch {name}_{var}_loop")
        a.label(f"{name}_{var}_epi")
        core.c = cfgN
    def src_regs(blocks, tmp):
        regs = []
        for n_, (i, j) in enumerate(blocks):
            for r in range(4):
                if core.in_v(i): regs.append(core.accidx(i, j, r))
                else:
                    a(f"v_accvgpr_read_b32 {vr(tmp + n_*4 + r)}, {ar(core.accidx(i, j, r))}")
                    regs.append(tmp + n_ * 4 + r)
        return regs
    def head_base(ws_off_sgpr_or_const):
        a(f"s_and_b32 s3, {sr(s_cur)}, 31")
        a("s_lshl_b32 s3, s3, 1"); a(f"s_add_u32 s3, s3, {sr(s_wn)}"); a("s_lshl_b32 s3, s3, 19")
        a(f"s_lshl_b32 s4, {sr(s_tm)}, 16"); a("s_add_u32 s3, s3, s4")
        a(f"s_lshl_b32 s4, {sr(s_wt)}, 15"); a("s_add_u32 s3, s3, s4")
        a(f"v_lshlrev_b32 {vr(vout)}, 4, {vr(vlane)}")
        a(f"v_add_u32 {vr(vout)}, s3, {vr(vout)}")
        a(f"s_bfe_u32 s5, {sr(s_cur)}, 0x20005")
        a("s_lshl_b32 s4, s5, 24")
        a(f"s_add_u32 {sr(sO)}, s34, s4"); a(f"s_addc_u32 {sr(sO+1)}, s35, 0")
        a(f"s_mov_b32 {sr(sO+2)}, {0 if NOSTORE else 16<<20}"); a(f"s_mov_b32 {sr(sO+3)}, 0x20000")

    body("N", cfgN)
    st.stamp(2); st.cyc(5)
    a(f"s_bfe_u32 s5, {sr(s_cur)}, 0x20005")
    a("s_cmp_eq_u32 s5, 3")
    a(f"s_cbranch_scc1 {name}_epi_gu")
    head_base(None)
    a("s_cmp_eq_u32 s5, 1")
    a(f"s_cbranch_scc1 {name}_epi_k")
    def epi_qk(scale):
        cnt = 0
        if scale:
            a(f"s_mov_b32 {sr(s_c)}, {f32(QSCALE)}"); a(f"s_mov_b32 {sr(s_c+1)}, {f32(QSCALE)}")
        for u in range(4):
            for j in range(8):
                b = vT + (cnt % 2) * 4; cnt += 1
                R = src_regs([(2 * u, j), (2 * u + 1, j)], vT + 8)
                if scale:
                    for p in range(4):
                        a(f"v_pk_mul_f32 {vr(R[2*p],2)}, {vr(R[2*p],2)}, {sr(s_c,2)}")
                for p in range(4):
                    a(f"v_cvt_pk_bf16_f32 {vr(b+p)}, {vr(R[2*p])}, {vr(R[2*p+1])}")
                a(f"s_mov_b32 s3, {j*4096}")
                a(f"buffer_store_dwordx4 {vr(b,4)}, {vr(vout)}, {sr(sO,4)}, s3 offen offset:{u*1024}{STMOD}")
    epi_qk(True)
    a(f"s_branch {name}_next")
    a.label(f"{name}_epi_k")
    epi_qk(False)
    a(f"s_branch {name}_next")
    a.label(f"{name}_epi_gu")
    a(f"s_lshl_b32 s3, {sr(s_tm)}, 4"); a(f"s_lshl_b32 s4, {sr(s_wt)}, 3"); a("s_add_u32 s3, s3, s4")
    a(f"s_mul_i32 s3, s3, {Z_KB*1024}")
    a(f"s_and_b32 s4, {sr(s_cur)}, 31"); a("s_lshl_b32 s4, s4, 12"); a("s_add_u32 s3, s3, s4")
    a(f"s_lshl_b32 s4, {sr(s_wn)}, 11"); a("s_add_u32 s3, s3, s4")
    a(f"v_lshlrev_b32 {vr(vout)}, 4, {vr(vlane)}")
    a(f"v_add_u32 {vr(vout)}, s3, {vr(vout)}")
    srd(a, sO, 34, 35, 0 if NOSTORE else 128 * Z_KB * 1024, WS_Z)
    a(f"s_mov_b32 {sr(s_c)}, {f32(c2)}"); a(f"s_mov_b32 {sr(s_c+1)}, {f32(c2)}")
    cnt = 0
    for u in range(2):
        for j in range(8):
            b = vT + (cnt % 2) * 4; cnt += 1
            X = src_regs([(2 * u, j), (2 * u + 1, j)], None)
            E = vT + 8
            for p in range(4): a(f"v_pk_mul_f32 {vr(E+2*p,2)}, {vr(X[2*p],2)}, {vr(X[2*p],2)}")
            for p in range(4): a(f"v_pk_fma_f32 {vr(E+2*p,2)}, {vr(E+2*p,2)}, {sr(s_c,2)}, {vr(vc1,2)}")
            for p in range(4): a(f"v_pk_mul_f32 {vr(E+2*p,2)}, {vr(E+2*p,2)}, {vr(X[2*p],2)}")
            for e in range(8): a(f"v_exp_f32 {vr(E+e)}, {vr(E+e)}")
            for n_, ib in enumerate((4 + 2 * u, 5 + 2 * u)):
                if core.in_v(ib):
                    for p in range(2):
                        a(f"v_pk_mul_f32 {vr(X[n_*4+2*p],2)}, {vr(X[n_*4+2*p],2)}, {vr(core.accidx(ib,j,2*p),2)}")
                else:
                    tmp = core.accidx(4 + 2 * u, j, 0)
                    for r in range(4): a(f"v_accvgpr_read_b32 {vr(tmp+r)}, {ar(core.accidx(ib,j,r))}")
                    for p in range(2):
                        a(f"v_pk_mul_f32 {vr(X[n_*4+2*p],2)}, {vr(X[n_*4+2*p],2)}, {vr(tmp+2*p,2)}")
            for p in range(4): a(f"v_pk_add_f32 {vr(E+2*p,2)}, {vr(E+2*p,2)}, 1.0 op_sel_hi:[1,0]")
            for e in range(8): a(f"v_rcp_f32 {vr(E+e)}, {vr(E+e)}")
            a(f"s_mov_b32 s3, {j*Z_KB*1024}")
            for p in range(4): a(f"v_pk_mul_f32 {vr(X[2*p],2)}, {vr(X[2*p],2)}, {vr(E+2*p,2)}")
            for p in range(4): a(f"v_cvt_pk_bf16_f32 {vr(b+p)}, {vr(X[2*p])}, {vr(X[2*p+1])}")
            a(f"buffer_store_dwordx4 {vr(b,4)}, {vr(vout)}, {sr(sO,4)}, s3 offen offset:{u*1024}{STMOD}")
    a(f"s_branch {name}_next")
    body("S", cfgS)
    st.stamp(2); st.cyc(5)
    head_base(None)
    cnt = 0
    for i in range(8):
        for uu in range(4):
            b = vT + (cnt % 2) * 4; cnt += 1
            R = src_regs([(i, 2 * uu), (i, 2 * uu + 1)], vT + 8)
            for p in range(4): a(f"v_cvt_pk_bf16_f32 {vr(b+p)}, {vr(R[2*p])}, {vr(R[2*p+1])}")
            a(f"s_mov_b32 s3, {uu*8192 + (i//4)*4096}")
            a(f"buffer_store_dwordx4 {vr(b,4)}, {vr(vout)}, {sr(sO,4)}, s3 offen offset:{(i%4)*1024}{STMOD}")
    a.label(f"{name}_next")
    a(f"s_mov_b32 {sr(s_cur)}, {sr(s_nxt)}")
    a(f"s_cmp_lg_u32 {sr(s_cur)}, 0")
    a(f"s_cbranch_scc1 {name}_tile")
    a("s_lshr_b32 s3, s2, 6"); a("s_cmp_eq_u32 s3, 3")
    a(f"s_cbranch_scc0 {name}_fin")
    a("s_and_b32 s3, s2, 7"); a("s_cmp_lt_u32 s3, 4")
    a(f"s_cbranch_scc0 {name}_fin")
    a("s_lshl_b32 s3, s3, 3"); a(f"s_add_u32 s3, s3, {sr(s_tm)}")
    a("s_waitcnt vmcnt(0) lgkmcnt(0)")
    a("s_add_u32 s4, s34, %d" % WS_CNT); a("s_addc_u32 s5, s35, 0"); a("s_mov_b32 s6, 65536"); a("s_mov_b32 s7, 0x20000")
    a(f"v_lshlrev_b32 v2, 3, {vr(vlane)}")
    a("s_lshl_b32 s18, s3, 11"); a(f"s_lshl_b32 s19, {sr(s_wave)}, 9"); a("s_add_u32 s18, s18, s19")
    a("v_add_u32 v2, s18, v2")
    a("v_mov_b32 v4, 0"); a("v_mov_b32 v5, 0")
    a("buffer_store_dwordx2 v[4:5], v2, s[4:7], 0 offen")
    a("s_lshl_b32 s3, s3, 6"); a(f"s_lshl_b32 s4, {sr(s_wave)}, 4"); a("s_add_u32 s3, s3, s4")
    srd(a, core.sA, 8, 9, 2048 * 1024 * 2)
    srd(a, core.sB, 28, 29, 2048)
    srd(a, sO, 34, 35, 8192, WS_G)
    G = 8
    a(f"v_lshlrev_b32 v2, 5, {vr(vlane)}")
    a(f"buffer_load_dwordx4 v[{G}:{G+3}], v2, {sr(core.sB,4)}, 0 offen")
    a(f"buffer_load_dwordx4 v[{G+4}:{G+7}], v2, {sr(core.sB,4)}, 0 offen offset:16")
    a("s_lshl_b32 s4, s3, 11")
    a("v_add_u32 v3, s4, v2")
    XB = 32
    for t in range(16):
        a(f"s_mov_b32 s5, {t*2048}")
        a(f"buffer_load_dwordx4 v[{XB+8*t}:{XB+8*t+3}], v3, {sr(core.sA,4)}, s5 offen")
        a(f"buffer_load_dwordx4 v[{XB+8*t+4}:{XB+8*t+7}], v3, {sr(core.sA,4)}, s5 offen offset:16")
    a("s_waitcnt vmcnt(32)")
    for r in range(8):
        a(f"v_lshlrev_b32 v{16+2*r}, 16, v{G+r}")
        a(f"v_and_b32 v{17+2*r}, 0xffff0000, v{G+r}")
    a("v_mov_b32 v6, 0")
    for t in range(16):
        a(f"s_waitcnt vmcnt({2*(15-t)})")
        acc = 4
        for r in range(8):
            x = XB + 8 * t + r
            a(f"v_lshlrev_b32 v5, 16, v{x}")
            if r == 0: a(f"v_mul_f32 v{acc}, v5, v{16+2*r}")
            else: a(f"v_fmac_f32 v{acc}, v5, v{16+2*r}")
            a(f"v_and_b32 v5, 0xffff0000, v{x}")
            a(f"v_fmac_f32 v{acc}, v5, v{17+2*r}")
        for m in ("quad_perm:[1,0,3,2]", "quad_perm:[2,3,0,1]", "row_half_mirror", "row_mirror"):
            a("s_nop 1")
            a(f"v_add_f32_dpp v{acc}, v{acc}, v{acc} {m} row_mask:0xf bank_mask:0xf")
        a("s_nop 1")
        for q in range(4): a(f"v_readlane_b32 s{4+q}, v{acc}, {16*q}")
        a("s_nop 1")
        a("v_mov_b32 v5, s4"); a("v_add_f32 v5, s5, v5"); a("v_add_f32 v5, s6, v5"); a("v_add_f32 v5, s7, v5")
        a(f"v_cmp_eq_u32 vcc, {t}, {vr(vlane)}")
        a("s_nop 1")
        a("v_cndmask_b32 v6, v6, v5, vcc")
    a(f"v_mul_f32 v6, {f32(-math.log2(math.e))}, v6")
    a("v_exp_f32 v6, v6"); a("s_nop 0"); a("v_add_f32 v6, 1.0, v6"); a("v_rcp_f32 v6, v6")
    a(f"v_add_u32 v7, s3, {vr(vlane)}")
    a("v_lshlrev_b32 v7, 2, v7")
    a(f"v_cmp_gt_u32 vcc, 16, {vr(vlane)}")
    a("s_and_saveexec_b64 s[4:5], vcc")
    a(f"buffer_store_dword v6, v7, {sr(sO,4)}, 0 offen")
    a("s_mov_b64 exec, s[4:5]")
    a.label(f"{name}_fin")
    if NEXT:
        a("s_bfe_u32 s31, s2, 0x10003"); a("s_lshl_b32 s31, s31, 2"); a(f"s_add_u32 s31, s31, {sr(s_wave)}")
        codepf.code_touch(a, "k2_kernel", "k2_code_end", vlane, vt[0], vdum, "s31", "k1b")
    if stamps.ENABLE:
        a(f"v_lshl_add_u32 v0, {sr(s_wave)}, 6, {vr(vlane)}")
    st.flush("s87", 4, 2)
    a.label(f"{name}_end")
    a("s_endpgm")
    a.label("k1_code_end")
    assert V.next <= 256
    return dict(name=name, nv=256 + core.NA, acc_off=256, grid=256, block=256, lds=cfgN.LDS)
```

```python
from asmb import *
from stamps import Stamper
import stamps
import codepf
from k1_gen import srd, f32, WS_Q, WS_K, WS_V, WS_Z, Z_KB

MF = "v_mfma_f32_16x16x32_bf16"
PREFETCH_W = True
import os
STMOD = os.environ.get('STMOD', ' sc1')
BIAS = 7.0
NEG = -1.0e30

class RD:
    def __init__(self, tag, text): self.tag, self.text = tag, text
class WAIT:
    def __init__(self, *tags): self.tags = tags

def resolve(seq):
    out = []; issued = 0; pos = {}; done = 0
    for it in seq:
        if isinstance(it, RD):
            pos[it.tag] = issued; issued += 1; out.append(it.text)
        elif isinstance(it, WAIT):
            need = max(pos[t] for t in it.tags if t in pos) + 1 if any(t in pos for t in it.tags) else 0
            if need > done:
                n = issued - need
                out.append(f"s_waitcnt lgkmcnt({min(n, 15)})")
                done = max(done, issued - min(n, 15))
        else:
            out.append(it)
    return out

def flat(items):
    o = []
    for x in items:
        if isinstance(x, (list, tuple)): o.extend(flat(x))
        else: o.append(x)
    return o

def gen_k2(a, name="k2_kernel", NEXT=True):
    kernel_header(a, name)
    V = RegAlloc(1, 256, "v"); S = RegAlloc(12, 84, "s"); st = Stamper(a, 1)
    def O(db, qb): return (db * 4 + qb) * 4
    def L(qb): return 128 + qb * 4
    def Q(qb, ks): return 144 + (qb * 4 + ks) * 4
    ONES = 208
    def VF(set_, u): return 212 + (set_ * 2 + u) * 4
    NA = 244
    vS = V.alloc("S", 128, 4)
    def Sb(buf, kvb, qb): return vS + ((buf * 4 + kvb) * 4 + qb) * 4
    vP = V.alloc("P", 32, 4)
    def P(u, qb): return vP + (u * 4 + qb) * 4
    vK = V.alloc("K", 32, 4)
    def KF(set_, ks): return vK + (set_ * 4 + ks) * 4
    vNM = V.alloc("negm", 16, 4)
    vT = V.alloc("T", 16, 4)
    vM = V.alloc("moff", 4, 4)
    vD = V.alloc("delta", 4, 4)
    vlane = V.alloc("lane"); vKrd = V.alloc("Krd"); vVrd = V.alloc("Vrd"); vsrc = V.alloc("src"); vsrcV = V.alloc("srcV")
    vx16 = V.alloc("x16"); vx32 = V.alloc("x32"); vneg = V.alloc("neg"); vor = V.alloc("or"); vq = V.alloc("q"); vmrg = V.alloc("mrg"); vmrgR = V.alloc("mrgR")
    sQ = S.alloc("srdQ", 4, 4); sK = S.alloc("srdK", 4, 4); sV = S.alloc("srdV", 4, 4); sZ = S.alloc("srdZ", 4, 4)
    sMD = [S.alloc(f"maskD{r}", 2, 2) for r in range(4)]; sMB = S.alloc("maskB", 2, 2)
    sTri = sMD
    s_wave = S.alloc("wave"); s_qh = S.alloc("qh"); s_par = S.alloc("par"); s_head = S.alloc("head"); s_p = S.alloc("p")
    s_i = S.alloc("i"); s_n = S.alloc("n"); s_pass = S.alloc("pass"); s_m0 = S.alloc("m0w"); s_4k = S.alloc("c4k"); s_hb = S.alloc("headbase")
    sPF = S.alloc("srdPF", 4, 4)
    sPQ = [S.alloc(f"pfq{k}", 3) for k in range(4)]
    s_tog = S.alloc("pftog")
    vpf = V.alloc("vpf"); vdum = V.alloc("vdum"); vkv = V.alloc("vkv")
    sKV = S.alloc("srdKV", 4, 4); s_64k = S.alloc("c64k")
    s_32k = S.alloc("c32k"); s_nrK = S.alloc("nrK"); s_nrV = S.alloc("nrV")

    a("s_cmp_ge_u32 s2, 256")
    a(f"s_cbranch_scc1 {name}_end")
    st.stamp(0)
    a("s_mov_b32 s87, s2")
    a("s_load_dwordx2 s[4:5], s[0:1], 104")
    a("s_load_dwordx2 s[8:9], s[0:1], 40")
    a("s_load_dwordx2 s[10:11], s[0:1], 72")
    a(f"v_and_b32 {vr(vlane)}, 63, v0")
    a(f"v_lshrrev_b32 {vr(vT)}, 6, v0")
    a("s_nop 0")
    a(f"v_readfirstlane_b32 {sr(s_wave)}, {vr(vT)}")
    a("s_nop 3")
    a(f"s_and_b32 {sr(s_qh)}, {sr(s_wave)}, 1")
    a(f"s_lshr_b32 {sr(s_par)}, {sr(s_wave)}, 1")
    a("s_and_b32 s3, s2, 7")
    a("s_lshr_b32 s6, s2, 3")
    a(f"s_and_b32 {sr(s_p)}, s6, 7")
    a("s_lshr_b32 s6, s6, 3")
    a("s_lshl_b32 s3, s3, 2")
    a(f"s_add_u32 {sr(s_head)}, s3, s6")
    a(f"s_lshl_b32 {sr(s_hb)}, {sr(s_head)}, 19")
    a(f"s_mov_b32 {sr(s_4k)}, 4096")
    a(f"s_mov_b32 {sr(s_32k)}, 32768")
    a(f"s_lshl_b32 {sr(s_m0)}, {sr(s_wave)}, 13")
    a("s_waitcnt lgkmcnt(0)")
    srd(a, sQ, 4, 5, 16 << 20, WS_Q)
    srd(a, sK, 4, 5, 16 << 20, WS_K)
    srd(a, sV, 4, 5, 16 << 20, WS_V)
    srd(a, sZ, 4, 5, 128 * Z_KB * 1024, WS_Z)
    a(f"s_lshl_b32 s3, s2, 2"); a(f"s_add_u32 s3, s3, {sr(s_wave)}")
    a("s_lshl_b32 s6, s3, 13")
    a(f"s_add_u32 {sr(sPQ[0])}, s8, s6"); a(f"s_addc_u32 {sr(sPQ[0]+1)}, s9, 0"); a(f"s_mov_b32 {sr(sPQ[0]+2)}, 8192")
    a("s_mul_i32 s6, s3, 7168")
    a(f"s_add_u32 {sr(sPQ[1])}, s10, s6"); a(f"s_addc_u32 {sr(sPQ[1]+1)}, s11, 0"); a(f"s_mov_b32 {sr(sPQ[1]+2)}, 7168")
    a("s_lshr_b32 s6, s3, 3"); a(f"s_mul_i32 s6, s6, {Z_KB*1024}")
    a("s_and_b32 s7, s3, 7"); a("s_mul_i32 s7, s7, 14336"); a("s_add_u32 s6, s6, s7")
    a(f"s_add_u32 {sr(sPQ[2])}, {sr(sZ)}, s6"); a(f"s_addc_u32 {sr(sPQ[2]+1)}, {sr(sZ+1)}, 0"); a(f"s_mov_b32 {sr(sPQ[2]+2)}, 8192")
    a(f"s_add_u32 {sr(sPQ[3])}, {sr(sPQ[2])}, 8192"); a(f"s_addc_u32 {sr(sPQ[3]+1)}, {sr(sPQ[2]+1)}, 0"); a(f"s_mov_b32 {sr(sPQ[3]+2)}, 6144")
    a(f"s_mov_b32 {sr(sPF+3)}, 0x20000")
    a(f"s_and_b32 {sr(s_tog)}, {sr(s_wave)}, 1")
    a(f"v_lshlrev_b32 {vr(vpf)}, 7, {vr(vlane)}")
    srd(a, sKV, 4, 5, 48 << 20, WS_Q)
    a(f"s_mov_b32 {sr(s_64k)}, 65536")
    a(f"s_lshl_b32 s3, {sr(s_p)}, 2"); a(f"s_add_u32 s3, s3, {sr(s_wave)}"); a("s_lshl_b32 s3, s3, 11")
    a(f"s_add_u32 s3, s3, {sr(s_hb)}")
    a(f"s_add_u32 s3, s3, {WS_K}")
    a(f"v_and_b32 {vr(vkv)}, 15, {vr(vlane)}")
    a(f"v_lshlrev_b32 {vr(vkv)}, 7, {vr(vkv)}")
    a(f"v_bfe_u32 {vr(vT+1)}, {vr(vlane)}, 4, 1")
    a(f"v_lshlrev_b32 {vr(vT+1)}, 24, {vr(vT+1)}")
    a(f"v_add3_u32 {vr(vkv)}, {vr(vkv)}, {vr(vT+1)}, s3")
    a(f"v_bfrev_b32 {vr(vT+1)}, 1")
    a(f"v_cmp_gt_u32 vcc, 32, {vr(vlane)}")
    a("s_nop 1")
    a(f"v_cndmask_b32 {vr(vkv)}, {vr(vT+1)}, {vr(vkv)}, vcc")
    a(f"v_lshlrev_b32 {vr(vT)}, 4, {vr(vlane)}")
    a(f"s_lshl_b32 s3, {sr(s_par)}, 14")
    a(f"v_add_u32 {vr(vKrd)}, s3, {vr(vT)}")
    a(f"v_add_u32 {vr(vVrd)}, 0x10000, {vr(vKrd)}")
    a(f"v_xor_b32 {vr(vx16)}, 16, {vr(vlane)}"); a(f"v_lshlrev_b32 {vr(vx16)}, 2, {vr(vx16)}")
    a(f"v_xor_b32 {vr(vx32)}, 32, {vr(vlane)}"); a(f"v_lshlrev_b32 {vr(vx32)}, 2, {vr(vx32)}")
    a(f"v_mov_b32 {vr(vneg)}, {f32(NEG)}")
    a(f"s_mul_i32 s3, {sr(s_wave)}, 18432")
    a(f"v_add_u32 {vr(vmrg)}, s3, {vr(vT)}")
    a(f"s_xor_b32 s3, {sr(s_wave)}, 2")
    a("s_mul_i32 s3, s3, 18432")
    a(f"v_add_u32 {vr(vmrgR)}, s3, {vr(vT)}")
    a(f"v_lshrrev_b32 {vr(vT+1)}, 4, {vr(vlane)}")
    a(f"v_lshlrev_b32 {vr(vT+1)}, 2, {vr(vT+1)}")
    a(f"v_and_b32 {vr(vT+2)}, 15, {vr(vlane)}")
    for r in range(4):
        a(f"v_add_u32 {vr(vT+3)}, {r}, {vr(vT+1)}")
        a(f"v_cmp_gt_u32 {sr(sTri[r],2)}, {vr(vT+3)}, {vr(vT+2)}")
    a(f"v_mov_b32 {vr(vT)}, 0x3f803f80")
    for r in range(4): a(f"v_accvgpr_write_b32 {ar(ONES+r)}, {vr(vT)}")
    a(f"s_cmp_eq_u32 {sr(s_qh)}, {sr(s_par)}")
    for r in range(4):
        a(f"s_cselect_b64 {sr(sMD[r],2)}, {sr(sTri[r],2)}, 0")
    a(f"s_cselect_b64 {sr(sMB,2)}, -1, 0")
    a(f"s_mov_b32 {sr(s_pass)}, 0")
    a(f"s_sub_u32 {sr(s_i)}, 15, {sr(s_p)}")

    def dma(kind, stage):
        base = stage * 32768 + (65536 if kind == "V" else 0)
        s_, v_ = (sV, vsrcV) if kind == "V" else (sK, vsrc)
        out = []
        for q in range(8):
            g = []
            if q % 4 == 0:
                g.append(f"s_add_u32 m0, {sr(s_m0)}, {base + (q//4)*4096}")
                g.append("s_nop 0")
            so = "0" if q < 4 else sr(s_4k)
            g.append(f"buffer_load_dwordx4 {vr(v_)}, {sr(s_,4)}, {so} offen offset:{(q%4)*1024} lds")
            out.append(g)
        out.append([f"v_add_u32 {vr(v_)}, {sr(s_32k)}, {vr(v_)}"])
        return out
    def kvtouch():
        return [f"buffer_load_dword {vr(vdum)}, {vr(vkv)}, {sr(sKV,4)}, 0 offen",
                f"v_add_u32 {vr(vkv)}, {sr(s_64k)}, {vr(vkv)}"]
    def kread(stage, kvb):
        return [RD(("K", kvb, ks), f"ds_read_b128 {vr(KF(kvb%2, ks),4)}, {vr(vKrd)} offset:{stage*32768 + (kvb*4+ks)*1024}") for ks in range(4)]
    def vread(stage, db):
        return [RD(("V", db, u), f"ds_read_b128 {ar(VF(db%4, u),4)}, {vr(vVrd)} offset:{stage*32768 + (u*8+db)*1024}") for u in range(2)]
    def qk_group(buf, kvb, czero=False):
        out = []
        for qb in range(4):
            for ks in range(4):
                d = vr(Sb(buf, kvb, qb), 4)
                c = ("0" if czero else vr(vNM + qb * 4, 4)) if ks == 0 else d
                out.append(f"{MF} {d}, {vr(KF(kvb%2, ks),4)}, {ar(Q(qb,ks),4)}, {c}")
        return out
    def pv_group(db):
        out = []
        for qb in range(4):
            for u in range(2):
                d = ar(O(db, qb), 4)
                out.append(f"{MF} {d}, {ar(VF(db%4,u),4)}, {vr(P(u,qb),4)}, {d}")
        return out
    def l_group():
        out = []
        for qb in range(4):
            for u in range(2):
                d = ar(L(qb), 4)
                out.append(f"{MF} {d}, {ar(ONES,4)}, {vr(P(u,qb),4)}, {d}")
        return out
    def softmax_ops(buf):
        out = []
        cnt = 0
        nor = 0
        for kvb in range(4):
            for qb in range(4):
                t = vT + (cnt % 2) * 4; cnt += 1
                s = Sb(buf, kvb, qb)
                p = P(kvb // 2, qb) + (kvb % 2) * 2
                for r in range(4): out.append(f"v_exp_f32 {vr(t+r)}, {vr(s+r)}")
                out.append(f"v_cvt_pk_bf16_f32 {vr(p)}, {vr(t)}, {vr(t+1)}")
                out.append(f"v_cvt_pk_bf16_f32 {vr(p+1)}, {vr(t+2)}, {vr(t+3)}")
                if nor == 0: out.append(f"v_or_b32 {vr(vor)}, {vr(p)}, {vr(p+1)}")
                else: out.append(f"v_or3_b32 {vr(vor)}, {vr(vor)}, {vr(p)}, {vr(p+1)}")
                nor += 1
        return out
    def check(label):
        return [f"v_and_b32 {vr(vor)}, 0x40004000, {vr(vor)}",
                f"v_cmp_ne_u32 vcc, 0, {vr(vor)}",
                f"s_cbranch_vccnz {label}"]
    def fixmax(buf, has_next, first):
        o = ["s_nop 7", "s_waitcnt lgkmcnt(0)"]
        for qb in range(4):
            d = vD + qb
            regs = [Sb(buf, kvb, qb) + r for kvb in range(4) for r in range(4)]
            o.append(f"v_max3_f32 {vr(d)}, {vr(regs[0])}, {vr(regs[1])}, {vr(regs[2])}")
            for k in range(3, 15, 2):
                o.append(f"v_max3_f32 {vr(d)}, {vr(d)}, {vr(regs[k])}, {vr(regs[k+1])}")
            o.append(f"v_max_f32 {vr(d)}, {vr(d)}, {vr(regs[15])}")
        for vx in (vx16, vx32):
            for qb in range(4): o.append(f"ds_bpermute_b32 {vr(vT+qb)}, {vr(vx)}, {vr(vD+qb)}")
            o.append("s_waitcnt lgkmcnt(0)")
            for qb in range(4): o.append(f"v_max_f32 {vr(vD+qb)}, {vr(vD+qb)}, {vr(vT+qb)}")
        for qb in range(4):
            o.append(f"v_add_f32 {vr(vD+qb)}, {f32(BIAS)}, {vr(vD+qb)}")
            if first:
                o.append(f"v_mov_b32 {vr(vM+qb)}, {vr(vD+qb)}")
            else:
                o.append(f"v_max_f32 {vr(vD+qb)}, 0, {vr(vD+qb)}")
                o.append(f"v_add_f32 {vr(vM+qb)}, {vr(vM+qb)}, {vr(vD+qb)}")
            for r in range(4): o.append(f"v_sub_f32 {vr(vNM+qb*4+r)}, 0, {vr(vM+qb)}")
        for b in ([buf, 1 - buf] if has_next else [buf]):
            for kvb in range(4):
                for qb in range(4):
                    for r in range(4):
                        s = Sb(b, kvb, qb) + r
                        o.append(f"v_sub_f32 {vr(s)}, {vr(s)}, {vr(vD+qb)}")
        if not first:
            for qb in range(4):
                o.append(f"v_sub_f32 {vr(vT+8+qb)}, 0, {vr(vD+qb)}")
                o.append(f"v_exp_f32 {vr(vT+8+qb)}, {vr(vT+8+qb)}")
            o.append("s_nop 0")
            for qb in range(4):
                regs = [O(db, qb) + r for db in range(8) for r in range(4)] + [L(qb) + r for r in range(4)]
                for k in range(0, len(regs), 4):
                    for e in range(4): o.append(f"v_accvgpr_read_b32 {vr(vT+e)}, {ar(regs[k+e])}")
                    for e in range(4): o.append(f"v_mul_f32 {vr(vT+e)}, {vr(vT+e)}, {vr(vT+8+qb)}")
                    for e in range(4): o.append(f"v_accvgpr_write_b32 {ar(regs[k+e])}, {vr(vT+e)}")
        o.append("s_nop 1")
        return o

    rare_blocks = []
    def phaseB(stage, pre_issued):
        seq = []
        if not pre_issued: seq += vread(stage, 0) + vread(stage, 1)
        seq += l_group()[:]
        for db in range(8):
            seq.append(WAIT(("V", db, 0), ("V", db, 1)))
            fill = vread(stage, db + 2) if db + 2 < 8 else []
            seq += merge(pv_group(db), fill, 0, 4)
        return seq

    def iteration(par):
        lab = f"{name}_rare{par}"
        kst = 1 - par
        vst = par
        seq = [f"s_waitcnt vmcnt({2 if par == 1 else 1}) lgkmcnt(0)", "s_barrier"]
        seq += [f"s_add_u32 s3, {sr(s_n)}, 2", f"s_cmp_le_u32 s3, {sr(s_i)}", f"s_cselect_b32 {sr(sK+2)}, {sr(s_nrK)}, 0"]
        seq += kread(kst, 0) + kread(kst, 1)
        sm = softmax_ops(par)
        d = dma("K", par) + dma("V", 1 - par)
        if par == 0 and PREFETCH_W:
            pf = [f"s_xor_b32 {sr(s_tog)}, {sr(s_tog)}, 1",
                  f"s_mov_b32 {sr(sPF)}, {sr(sPQ[0])}", f"s_mov_b32 {sr(sPF+1)}, {sr(sPQ[0]+1)}",
                  f"s_cselect_b32 {sr(sPF+2)}, {sr(sPQ[0]+2)}, 0"]
            for k in range(3):
                for e in range(3):
                    pf.append(f"s_cselect_b32 {sr(sPQ[k]+e)}, {sr(sPQ[k+1]+e)}, {sr(sPQ[k]+e)}")
            pf.append(f"s_cselect_b32 {sr(sPQ[3]+2)}, 0, {sr(sPQ[3]+2)}")
            pf.append(f"buffer_load_dword {vr(vdum)}, {vr(vpf)}, {sr(sPF,4)}, 0 offen")
            pfg = [("ATOMIC", pf)]
        else:
            pfg = []
        npre = 21
        pre = sm[:npre]; sm = sm[npre:]
        seq += flat(merge(pre, d[:6], 0, npre))
        d = d[6:]
        per = (len(sm) + 3) // 4
        for kvb in range(4):
            seq.append(WAIT(*[("K", kvb, ks) for ks in range(4)]))
            fill = []
            if 1 <= kvb <= 2: fill += kread(kst, kvb + 1)
            if kvb == 3: fill += vread(vst, 0) + vread(vst, 1)
            dd = d[:6]; d = d[6:]
            sms = sm[kvb * per:(kvb + 1) * per]
            mixed = flat(merge(sms, fill + dd, 0, len(sms))) if sms else flat(fill + dd)
            seq += merge_keep(qk_group(1 - par, kvb), mixed)
        assert not d
        for g in pfg: seq += g[1]
        seq += [f"s_add_u32 s3, {sr(s_n)}, {sr(s_pass)}", "s_cmp_lt_u32 s3, 6", f"s_cselect_b32 {sr(sKV+2)}, {sr(s_nrV)}, 0"] + kvtouch()
        seq += check(lab)
        seq.append(f"{lab}_ret:")
        seq += phaseB(vst, True)
        rare_blocks.append((lab, par, True))
        return seq

    def merge_keep(main, fill):
        n = len(main); out = []; m = len(fill); k = 0
        for i in range(n):
            out.append(main[i])
            upto = (i + 1) * m // n
            while k < upto: out.append(fill[k]); k += 1
        return out

    def last(par):
        lab = f"{name}_rareL{par}"
        seq = [f"s_waitcnt vmcnt({2 if par == 1 else 1}) lgkmcnt(0)", "s_barrier"]
        seq += [f"s_cmp_eq_u32 {sr(s_wave)}, 2", f"s_cbranch_scc1 {name}_merge"]
        seq += vread(par, 0) + vread(par, 1)
        for kvb in range(4):
            for qb in range(4):
                if kvb < qb: continue
                for r in range(4):
                    s = Sb(par, kvb, qb) + r
                    m = sMD[r] if kvb == qb else sMB
                    seq.append(f"v_cndmask_b32 {vr(s)}, {vr(s)}, {vr(vneg)}, {sr(m,2)}")
        if par == 0:
            seq += [f"s_cmp_lg_u32 {sr(s_i)}, 0", f"s_cbranch_scc1 {name}_nofirst"]
            seq += fixmax(0, False, True)
            seq.append(f"{name}_nofirst:")
        seq += softmax_ops(par)
        seq += check(lab)
        seq.append(f"{lab}_ret:")
        seq += phaseB(par, True)
        rare_blocks.append((lab, par, False))
        return seq

    def emit(seq):
        for x in resolve(flat(seq)):
            if x.endswith(":"): a.label(x[:-1])
            else: a(x)

    a.label(f"{name}_tile")
    a(f"s_lshl_b32 s3, {sr(s_i)}, 15")
    a(f"s_lshl_b32 s6, {sr(s_qh)}, 14")
    a("s_add_u32 s3, s3, s6")
    a(f"s_add_u32 s3, s3, {sr(s_hb)}")
    a(f"v_lshlrev_b32 {vr(vT)}, 4, {vr(vlane)}")
    a(f"v_add_u32 {vr(vq)}, s3, {vr(vT)}")
    a(f"s_add_u32 s3, {sr(s_hb)}, {sr(s_m0)}")
    a(f"v_add_u32 {vr(vsrc)}, s3, {vr(vT)}")
    a(f"v_mov_b32 {vr(vsrcV)}, {vr(vsrc)}")
    a(f"s_mov_b32 {sr(s_nrK)}, {16<<20}")
    a(f"s_mov_b32 {sr(sK+2)}, {16<<20}")
    for g in dma("K", 0): a(g)
    for qb in range(4):
        a(f"s_mov_b32 s3, {qb*4096}")
        for ks in range(4):
            a(f"buffer_load_dwordx4 {ar(Q(qb,ks),4)}, {vr(vq)}, {sr(sQ,4)}, s3 offen offset:{ks*1024}")
    for g in dma("V", 0): a(g)
    a(f"s_cmp_ge_u32 {sr(s_i)}, 1")
    a(f"s_cselect_b32 {sr(sK+2)}, {sr(s_nrK)}, 0")
    for g in dma("K", 1): a(g)
    a(f"s_mov_b32 {sr(s_nrV)}, {48<<20}")
    a(f"s_cmp_eq_u32 {sr(s_pass)}, 0")
    a(f"s_cselect_b32 {sr(sKV+2)}, {sr(s_nrV)}, 0")
    a(kvtouch()); a(kvtouch())
    for r in range(144): a(f"v_accvgpr_write_b32 {ar(r)}, 0")
    for qb in range(4): a(f"v_mov_b32 {vr(vM+qb)}, {vr(vneg)}")
    a(f"s_mov_b32 {sr(s_n)}, 0")
    a("s_waitcnt vmcnt(18)")
    a("s_barrier")
    if stamps.ENABLE:
        a(f"s_cmp_lg_u32 {sr(s_pass)}, 0"); a(f"s_cbranch_scc1 {name}_st1"); st.stamp(1); st.cyc2(0); a.label(f"{name}_st1")
    seq = kread(0, 0) + kread(0, 1)
    for kvb in range(4):
        seq.append(WAIT(*[("K", kvb, ks) for ks in range(4)]))
        fill = kread(0, kvb + 1) if 1 <= kvb <= 2 else []
        seq += merge(qk_group(0, kvb, czero=True), fill, 0, 8)
    emit(seq)
    a(f"s_cmp_eq_u32 {sr(s_i)}, 0")
    a(f"s_cbranch_scc1 {name}_last0")
    emit(fixmax(0, False, True))
    a.label(f"{name}_loop")
    emit(iteration(0))
    a(f"s_add_u32 {sr(s_n)}, {sr(s_n)}, 1")
    a(f"s_cmp_eq_u32 {sr(s_n)}, {sr(s_i)}")
    a(f"s_cbranch_scc1 {name}_last1")
    emit(iteration(1))
    a(f"s_add_u32 {sr(s_n)}, {sr(s_n)}, 1")
    a(f"s_cmp_lg_u32 {sr(s_n)}, {sr(s_i)}")
    a(f"s_cbranch_scc1 {name}_loop")
    a.label(f"{name}_last0")
    a("s_nop 7")
    emit(last(0))
    a(f"s_branch {name}_merge")
    a.label(f"{name}_last1")
    emit(last(1))
    a.label(f"{name}_merge")
    a("s_waitcnt lgkmcnt(0)")
    a("s_barrier")
    if stamps.ENABLE:
        st.stamp(4)
        a(f"s_cmp_lg_u32 {sr(s_pass)}, 0"); a(f"s_cbranch_scc1 {name}_st2"); st.stamp(2); st.cyc2(1); a.label(f"{name}_st2"); a("s_waitcnt lgkmcnt(0)")
    a("s_nop 7")
    a(f"s_cmp_eq_u32 {sr(s_par)}, 0")
    a(f"s_cbranch_scc0 {name}_send1")
    def send(dbs):
        k = 0
        for db in dbs:
            for qb in range(4):
                a(f"ds_write_b128 {vr(vmrg)}, {ar(O(db,qb),4)} offset:{k*1024}"); k += 1
    send(range(4, 8))
    a(f"s_branch {name}_sent")
    a.label(f"{name}_send1")
    send(range(0, 4))
    a.label(f"{name}_sent")
    for qb in range(4): a(f"v_accvgpr_read_b32 {vr(vD+qb)}, {ar(L(qb))}")
    a(f"ds_write_b128 {vr(vmrg)}, {vr(vM,4)} offset:{16*1024}")
    a(f"ds_write_b128 {vr(vmrg)}, {vr(vD,4)} offset:{17*1024}")
    a("s_waitcnt lgkmcnt(0)")
    a("s_barrier")
    R = vS
    a(f"ds_read_b128 {vr(vT,4)}, {vr(vmrgR)} offset:{16*1024}")
    a(f"ds_read_b128 {vr(vT+4,4)}, {vr(vmrgR)} offset:{17*1024}")
    for k in range(16): a(f"ds_read_b128 {vr(R+4*k,4)}, {vr(vmrgR)} offset:{k*1024}")
    a("s_waitcnt lgkmcnt(15)")
    a("s_waitcnt lgkmcnt(14)") if False else None
    a("s_waitcnt lgkmcnt(0)")
    CA, CB = vNM, vNM + 4
    for qb in range(4):
        mm = vT + 8 + qb
        a(f"v_max_f32 {vr(mm)}, {vr(vM+qb)}, {vr(vT+qb)}")
        a(f"v_sub_f32 {vr(CA+qb)}, {vr(vM+qb)}, {vr(mm)}")
        a(f"v_sub_f32 {vr(CB+qb)}, {vr(vT+qb)}, {vr(mm)}")
        a(f"v_exp_f32 {vr(CA+qb)}, {vr(CA+qb)}")
        a(f"v_exp_f32 {vr(CB+qb)}, {vr(CB+qb)}")
        a("s_nop 0")
        a(f"v_mul_f32 {vr(mm)}, {vr(vD+qb)}, {vr(CA+qb)}")
        a(f"v_fmac_f32 {vr(mm)}, {vr(vT+4+qb)}, {vr(CB+qb)}")
        a(f"v_rcp_f32 {vr(mm)}, {vr(mm)}")
        a("s_nop 0")
        a(f"v_mul_f32 {vr(CA+qb)}, {vr(CA+qb)}, {vr(mm)}")
        a(f"v_mul_f32 {vr(CB+qb)}, {vr(CB+qb)}, {vr(mm)}")
    a(f"s_lshl_b32 s3, {sr(s_i)}, 3")
    a(f"s_lshl_b32 s6, {sr(s_qh)}, 2")
    a("s_add_u32 s3, s3, s6")
    a(f"s_mul_i32 s3, s3, {Z_KB*1024}")
    a(f"s_lshl_b32 s6, {sr(s_head)}, 12")
    a("s_add_u32 s3, s3, s6")
    a(f"s_lshl_b32 s6, {sr(s_par)}, 11")
    a("s_add_u32 s3, s3, s6")
    a(f"s_add_u32 s3, s3, {112*1024}")
    a(f"v_lshlrev_b32 {vr(vq)}, 4, {vr(vlane)}")
    a(f"v_add_u32 {vr(vq)}, s3, {vr(vq)}")
    a(f"s_cmp_eq_u32 {sr(s_par)}, 0")
    a(f"s_cbranch_scc0 {name}_fin1")
    def fin(db0):
        W = vS + 64
        cnt = 0
        for qb in range(4):
            a(f"s_mov_b32 s3, {qb*Z_KB*1024}")
            for uu in range(2):
                b = W + (cnt % 4) * 12; cnt += 1
                for e in range(8):
                    a(f"v_accvgpr_read_b32 {vr(b+4+e)}, {ar(O(db0 + 2*uu + e//4, qb) + e%4)}")
                for e in range(8):
                    a(f"v_mul_f32 {vr(b+4+e)}, {vr(b+4+e)}, {vr(CA+qb)}")
                for e in range(8):
                    k = (2 * uu + e // 4) * 4 + qb
                    a(f"v_fmac_f32 {vr(b+4+e)}, {vr(R+4*k+e%4)}, {vr(CB+qb)}")
                for p in range(4):
                    a(f"v_cvt_pk_bf16_f32 {vr(b+p)}, {vr(b+4+2*p)}, {vr(b+5+2*p)}")
                a(f"buffer_store_dwordx4 {vr(b,4)}, {vr(vq)}, {sr(sZ,4)}, s3 offen offset:{uu*1024}{STMOD}")
    fin(0)
    a(f"s_branch {name}_fin")
    a.label(f"{name}_fin1")
    fin(4)
    a.label(f"{name}_fin")
    a(f"s_cmp_lg_u32 {sr(s_pass)}, 0")
    a(f"s_cbranch_scc1 {name}_done")
    st.stamp(3)
    a(f"s_mov_b32 {sr(s_pass)}, 64")
    a(f"s_mov_b32 {sr(s_i)}, {sr(s_p)}")
    a("s_barrier")
    a(f"s_branch {name}_tile")
    a.label(f"{name}_done")
    if NEXT:
        codepf.code_touch(a, "k3_kernel", "k3_code_end", vlane, vT, vdum, sr(s_wave), "k2b")
    st.flush("s87", 6)
    a.label(f"{name}_end")
    a("s_endpgm")
    a.label("k2_code_end")
    for lab, par, has_next in rare_blocks:
        a.label(lab)
        emit(fixmax(par, has_next, False))
        emit(softmax_ops(par))
        a("s_nop 1")
        a(f"s_branch {lab}_ret")
    acc_off = (V.next + 3) // 4 * 4
    return dict(name=name, nv=acc_off + NA, acc_off=acc_off, grid=256, block=256, lds=131072)
```

```python
from asmb import *
from gemm_gen import GemmCfg
from gemm3 import GemmCore3
from stamps import Stamper
from k1_gen import srd, f32, WS_Z, WS_G, Z_KB, WS_CNT, WS_PART

def gen_k3(a, name="k3_kernel", stages=4, D=12, helper=False):
    cfg = GemmCfg(128, 128, 2, 2, native_a=True, swap=False, stages=stages, ms=16)
    kernel_header(a, name)
    V = RegAlloc(1, 256, "v"); S = RegAlloc(36, 84, "s"); st = Stamper(a, 2)
    core = GemmCore3(a, cfg, V, S, False)
    acc = core.accbase
    vlane = V.alloc("lane"); vt = [V.alloc(f"t{i}") for i in range(4)]
    vout = V.alloc("vout"); vg = V.alloc("g", 4); vpart = V.alloc("vpart"); vcnt = V.alloc("vcnt"); vone = V.alloc("one")
    vpa = V.alloc("vpa"); vpw = V.alloc("vpw"); vdum = V.alloc("vdum")
    s_wave = S.alloc("wave"); s_wt = S.alloc("wt"); s_wn = S.alloc("wn")
    s_tm = S.alloc("tm"); s_tn = S.alloc("tn"); s_half = S.alloc("half")
    s_ab = S.alloc("ab"); s_lda = S.alloc("lda"); s_bb = S.alloc("bb"); s_ldw = S.alloc("ldw")
    sO = S.alloc("srdO", 4, 4); sG = S.alloc("srdG", 4, 4); sP = S.alloc("srdP", 4, 4); sC = S.alloc("srdC", 4, 4)
    a("s_cmp_ge_u32 s2, 256")
    a(f"s_cbranch_scc1 {name}_end")
    st.stamp(0)
    a("s_mov_b32 s87, s2")
    a("s_load_dwordx16 s[8:23], s[0:1], 0")
    a("s_load_dwordx8 s[24:31], s[0:1], 64")
    a("s_load_dwordx4 s[32:35], s[0:1], 96")
    a(f"v_and_b32 {vr(vlane)}, 63, v0")
    a(f"v_lshrrev_b32 {vr(vt[0])}, 6, v0")
    a("s_nop 0")
    a(f"v_readfirstlane_b32 {sr(s_wave)}, {vr(vt[0])}")
    a("s_nop 3")
    a(f"s_lshr_b32 {sr(s_wt)}, {sr(s_wave)}, 1")
    a(f"s_and_b32 {sr(s_wn)}, {sr(s_wave)}, 1")
    a(f"s_and_b32 {sr(s_half)}, s2, 1")
    a("s_lshr_b32 s4, s2, 3")
    a("s_bfe_u32 s5, s2, 0x10002"); a("s_lshl_b32 s5, s5, 3")
    a("s_and_b32 s6, s4, 7"); a(f"s_add_u32 {sr(s_tm)}, s5, s6")
    a("s_bfe_u32 s5, s2, 0x10001"); a("s_lshl_b32 s5, s5, 2")
    a("s_lshr_b32 s6, s4, 3"); a(f"s_add_u32 {sr(s_tn)}, s5, s6")
    a("s_waitcnt lgkmcnt(0)")
    srd(a, core.sA, 34, 35, 128 * Z_KB * 1024, WS_Z)
    a(f"s_cmp_eq_u32 {sr(s_half)}, 0")
    a("s_cselect_b32 s4, s26, s18")
    a("s_cselect_b32 s5, s27, s19")
    srd(a, core.sB, 4, 5, 0)
    a(f"s_mov_b32 s6, {3584*2048}")
    a(f"s_cselect_b32 {sr(core.sB+2)}, s6, {4096*2048}")
    T = core.tail_len(); U = core.U
    assert (56 - T) % U == 0 and (64 - T) % U == 0
    a(f"s_cselect_b32 {sr(core.sLoop)}, {(56-T)//U}, {(64-T)//U}")
    a(f"s_cselect_b32 s6, 0, {112*1024}")
    srd(a, sO, 30, 31, 2048 * 1024 * 2)
    srd(a, sG, 34, 35, 8192, WS_G)
    srd(a, sP, 34, 35, 128 * 65536, WS_PART)
    srd(a, sC, 34, 35, 512 * 128, WS_CNT)
    a(f"s_mov_b32 {sr(s_lda)}, {Z_KB*1024}")
    a(f"s_mul_i32 {sr(s_ab)}, {sr(s_tm)}, {8*Z_KB*1024}")
    a(f"s_add_u32 {sr(s_ab)}, {sr(s_ab)}, s6")
    a(f"s_mov_b32 {sr(s_ldw)}, 2048")
    a(f"s_lshl_b32 {sr(s_bb)}, {sr(s_tn)}, 8")
    a(f"s_lshr_b32 s3, {sr(s_wave)}, 1")
    a("s_lshl_b32 s3, s3, 7")
    a(f"s_add_u32 {sr(s_bb)}, {sr(s_bb)}, s3")
    if helper:
        a(f"s_cmp_eq_u32 {sr(s_wave)}, 4")
        a(f"s_cbranch_scc1 {name}_helper")
    core.setup_src(vlane, s_wave, s_ab, s_lda, s_bb, s_ldw, vt)
    core.setup_lane_consts(vlane, s_wave, s_wt, s_wn, vt)
    a(f"s_lshl_b32 s3, {sr(s_tm)}, 7")
    a(f"s_lshl_b32 s4, {sr(s_wt)}, 6")
    a("s_add_u32 s3, s3, s4")
    a(f"v_and_b32 {vr(vt[0])}, 15, {vr(vlane)}")
    a(f"v_add_u32 {vr(vt[0])}, s3, {vr(vt[0])}")
    a(f"v_lshlrev_b32 {vr(vt[1])}, 2, {vr(vt[0])}")
    for j in range(4):
        a(f"buffer_load_dword {vr(vg+j)}, {vr(vt[1])}, {sr(sG,4)}, 0 offen offset:{j*64}")
    core.prologue_dma()
    a(f"s_and_b32 s3, {sr(s_tn)}, 3"); a("s_lshl_b32 s3, s3, 1"); a(f"s_add_u32 s3, s3, {sr(s_wt)}")
    a(f"s_mul_i32 s3, s3, {sr(s_lda)}"); a(f"s_add_u32 s3, s3, {sr(s_ab)}")
    a(f"s_lshl_b32 s4, {sr(s_wn)}, 12"); a("s_add_u32 s3, s3, s4")
    a(f"v_lshlrev_b32 {vr(vpa)}, 7, {vr(vlane)}")
    a(f"v_add_u32 {vr(vpa)}, s3, {vr(vpa)}")
    a(f"v_bfrev_b32 {vr(vt[3])}, 1")
    a(f"v_cmp_gt_u32 vcc, 32, {vr(vlane)}")
    a("s_nop 1")
    a(f"v_cndmask_b32 {vr(vpa)}, {vr(vt[3])}, {vr(vpa)}, vcc")
    a(f"s_and_b32 s3, {sr(s_tm)}, 7"); a("s_lshl_b32 s3, s3, 3"); a(f"s_lshl_b32 s4, {sr(s_wave)}, 6"); a("s_add_u32 s3, s3, s4")
    a(f"v_lshrrev_b32 {vr(vpw)}, 1, {vr(vlane)}")
    a(f"v_add_u32 {vr(vpw)}, s3, {vr(vpw)}")
    a(f"v_lshlrev_b32 {vr(vpw)}, 11, {vr(vpw)}")
    a(f"v_and_b32 {vr(vt[2])}, 1, {vr(vlane)}")
    a(f"v_lshl_add_u32 {vr(vpw)}, {vr(vt[2])}, 7, {vr(vpw)}")
    a(f"s_lshl_b32 s3, {sr(s_tn)}, 8")
    a(f"v_add_u32 {vr(vpw)}, s3, {vr(vpw)}")
    a(f"v_cmp_gt_u32 vcc, 16, {vr(vlane)}")
    a("s_nop 1")
    a(f"v_cndmask_b32 {vr(vpw)}, {vr(vt[3])}, {vr(vpw)}, vcc")
    tA = [f"buffer_load_dword {vr(vdum)}, {vr(vpa)}, {sr(core.sA,4)}, 0 offen", f"v_add_u32 {vr(vpa)}, 0x2000, {vr(vpa)}"]
    tW = [f"buffer_load_dword {vr(vdum)}, {vr(vpw)}, {sr(core.sB,4)}, 0 offen", f"v_add_u32 {vr(vpw)}, {4*64*2048}, {vr(vpw)}"]
    a(tA[1]); a(tW[1])
    NPF = D // 4
    import os
    K3PF = not os.environ.get("K3_NOPF")
    if K3PF:
        for _ in range(NPF - 1): a(tA); a(tW)
    core.zero_acc()
    a(f"v_lshlrev_b32 {vr(vout)}, 11, {vr(vt[0])}")
    a(f"v_lshrrev_b32 {vr(vt[2])}, 4, {vr(vlane)}")
    a(f"v_lshl_add_u32 {vr(vout)}, {vr(vt[2])}, 3, {vr(vout)}")
    a(f"s_lshl_b32 s3, {sr(s_tn)}, 8")
    a(f"s_lshl_b32 s4, {sr(s_wn)}, 7")
    a("s_add_u32 s3, s3, s4")
    a(f"v_add_u32 {vr(vout)}, s3, {vr(vout)}")
    a(f"s_lshl_b32 s3, {sr(s_tm)}, 3")
    a(f"s_add_u32 s3, s3, {sr(s_tn)}")
    a("s_lshl_b32 s3, s3, 2")
    a(f"s_add_u32 s3, s3, {sr(s_wave)}")
    a("s_lshl_b32 s4, s3, 14")
    a(f"v_lshlrev_b32 {vr(vpart)}, 4, {vr(vlane)}")
    a(f"v_add_u32 {vr(vpart)}, s4, {vr(vpart)}")
    a("s_lshl_b32 s4, s3, 7")
    a(f"v_mov_b32 {vr(vcnt)}, s4")
    st.cyc2(0)
    core.mainloop(core.sLoop, f"{name}_loop", st, 1, extras={0: tA, 2: tW} if K3PF else None, pro_extra=2*(NPF-1) if K3PF else 0)
    st.stamp(2); st.cyc2(1)
    a(f"v_mov_b32 {vr(vone)}, 1")
    a("s_mov_b64 s[6:7], exec")
    a("s_mov_b64 exec, 1")
    a(f"buffer_atomic_add {vr(vone)}, {vr(vcnt)}, {sr(sC,4)}, 0 offen sc0")
    a("s_waitcnt vmcnt(0)")
    a(f"v_readfirstlane_b32 s3, {vr(vone)}")
    a("s_mov_b64 exec, s[6:7]")
    a("s_nop 3")
    a("s_cmp_lg_u32 s3, 0")
    a(f"s_cbranch_scc1 {name}_second")
    for k in range(16):
        so = "0" if k < 4 else f"s{4}"
        if k % 4 == 0 and k: a(f"s_mov_b32 s4, {(k//4)*4096}")
        a(f"buffer_store_dwordx4 {vr(acc+4*k,4)}, {vr(vpart)}, {sr(sP,4)}, {so} offen offset:{(k%4)*1024} sc1")
    a("s_waitcnt vmcnt(0)")
    a(f"v_mov_b32 {vr(vone)}, 1")
    a("s_mov_b64 exec, 1")
    a(f"buffer_atomic_add {vr(vone)}, {vr(vcnt)}, {sr(sC,4)}, 0 offen offset:64")
    a("s_mov_b64 exec, s[6:7]")
    st.stamp(3); st.stamp(4)
    st.flush("s87", 6)
    a("s_endpgm")
    a.label(f"{name}_second")
    a("s_mov_b64 exec, 1")
    a.label(f"{name}_poll")
    a(f"buffer_load_dword {vr(vone)}, {vr(vcnt)}, {sr(sC,4)}, 0 offen offset:64 sc1")
    a("s_waitcnt vmcnt(0)")
    a(f"v_readfirstlane_b32 s3, {vr(vone)}")
    a("s_nop 3")
    a("s_cmp_lg_u32 s3, 0")
    a(f"s_cbranch_scc1 {name}_ready")
    a("s_sleep 4")
    a(f"s_branch {name}_poll")
    a.label(f"{name}_ready")
    a("s_mov_b64 exec, s[6:7]")
    st.stamp(3)
    R = core.xf[0][0][0]
    for k in range(16):
        so = "0" if k < 4 else f"s{4}"
        if k % 4 == 0 and k: a(f"s_mov_b32 s4, {(k//4)*4096}")
        a(f"buffer_load_dwordx4 {vr(R+4*k,4)}, {vr(vpart)}, {sr(sP,4)}, {so} offen offset:{(k%4)*1024} sc1")
    a(f"s_cmp_lg_u32 {sr(s_half)}, 0")
    a(f"s_cbranch_scc1 {name}_cg")
    for j in range(4): a(f"v_sub_f32 {vr(vg+j)}, 1.0, {vr(vg+j)}")
    a.label(f"{name}_cg")
    W = core.wf[0][0]
    cnt = 0
    for i in range(4):
        for j in range(4):
            k = i * 4 + j
            a(f"s_waitcnt vmcnt({15 - k + cnt})")
            b = W + (cnt % 4) * 8; cnt += 1
            o = k * 4
            for r in range(4):
                a(f"v_sub_f32 {vr(b+2+r)}, {vr(acc+o+r)}, {vr(R+o+r)}")
            for r in range(4):
                a(f"v_fma_f32 {vr(b+2+r)}, {vr(b+2+r)}, {vr(vg+j)}, {vr(R+o+r)}")
            a(f"v_cvt_pk_bf16_f32 {vr(b)}, {vr(b+2)}, {vr(b+3)}")
            a(f"v_cvt_pk_bf16_f32 {vr(b+1)}, {vr(b+4)}, {vr(b+5)}")
            a(f"s_mov_b32 s3, {j*16*2048}")
            a(f"buffer_store_dwordx2 {vr(b,2)}, {vr(vout)}, {sr(sO,4)}, s3 offen offset:{i*32}")
    st.stamp(4)
    st.flush("s87", 6)
    a.label(f"{name}_end")
    a("s_endpgm")
    a.label("k3_code_end")
    acc_off = (V.next + 3) // 4 * 4
    return dict(name=name, nv=acc_off, acc_off=acc_off, grid=256, block=256, lds=cfg.LDS)
```

```python
from asmb import *
ENABLE = False
WS_STAMP = 96 << 20
class Stamper:
    def __init__(self, a, kidx, ws_lo=None, ws_hi=None):
        self.a, self.k, self.n = a, kidx, 0
    def stamp(self, idx):
        if not ENABLE: return
        self.a(f"s_memrealtime s[{88+2*idx}:{89+2*idx}]")
    def cyc(self, idx):
        if not ENABLE: return
        self.a(f"s_memtime s[{88+2*idx}:{89+2*idx}]")
    def cyc2(self, which):
        if not ENABLE: return
        self.a("s_memtime s[84:85]"); self.a("s_waitcnt lgkmcnt(0)"); self.a(f"s_mov_b32 s{100+which}, s84")
    def flush(self, wg_sgpr, nst, nextra=0):
        if not ENABLE: return
        a = self.a
        a(f"s_memrealtime s[{88+2*(nst-1)}:{89+2*(nst-1)}]")
        a("s_load_dwordx2 s[12:13], s[0:1], 104")
        a("s_waitcnt lgkmcnt(0)")
        a(f"s_add_u32 s8, s12, {WS_STAMP + self.k*65536*4}")
        a("s_addc_u32 s9, s13, 0")
        a(f"s_mov_b32 s10, {65536*4}"); a("s_mov_b32 s11, 0x20000")
        for i in range(nst + nextra): a(f"v_mov_b32 v{2+i}, s{88+2*i}")
        a("s_getreg_b32 s12, hwreg(HW_REG_XCC_ID)")
        a("s_getreg_b32 s13, hwreg(HW_REG_HW_ID)")
        a("v_mov_b32 v8, s12"); a("s_sub_u32 s13, s101, s100"); a("v_mov_b32 v9, s13")
        a(f"s_lshl_b32 s12, {wg_sgpr}, 6")
        a("v_mov_b32 v1, s12")
        a("v_cmp_eq_u32 vcc, 0, v0")
        a("s_and_saveexec_b64 s[14:15], vcc")
        a("buffer_store_dwordx4 v[2:5], v1, s[8:11], 0 offen")
        a("buffer_store_dwordx4 v[6:9], v1, s[8:11], 0 offen offset:16")
```

```python
from asmb import *
from gemm_gen import GemmCfg, GemmCore
from gemm2 import GemmCore2

class GemmCore3(GemmCore2):
    def __init__(self, a, cfg, V, S, acc_in_agpr):
        s_saved = cfg.S
        cfg.S = 2
        super().__init__(a, cfg, V, S, acc_in_agpr)
        cfg.S = s_saved
        self.U = cfg.S if cfg.S % 2 == 0 else 2 * cfg.S

    def xreads(self, t):
        c = self.c
        out = []
        st = t % c.S
        for j in range(c.TJ):
            for k in range(2):
                if c.native_a:
                    off = c.A_BASE + st * c.A_STAGE + (j * 2 + k) * 1024
                    v = self.vXrd[0]
                else:
                    off = c.A_BASE + st * c.A_STAGE + j * 16 * 128
                    v = self.vXrd[k]
                assert off < 65536
                out.append(f"ds_read_b128 {vr(self.xf[t%2][j][k],4)}, {vr(v)} offset:{off}")
        return out
    def wreads(self, t, i):
        c = self.c
        out = []
        for k in range(2):
            for half in range(2):
                hoff = half * (16 * 128 if c.native_a else 512)
                off = (t % c.S) * c.B_STAGE + (i // c.BPP) * 8192 + k * 32 * 128 + hoff
                assert off < 65536
                out.append(f"ds_read_b64_tr_b16 {vr(self.wf[i%self.NWB][k]+2*half,2)}, {vr(self.vWrd[i%c.BPP])} offset:{off}")
        return out

    def zero_acc(self):
        c = self.c
        for i in range(c.TI):
            for j in range(c.TJ):
                for r in range(c.AR):
                    if self.acc_in_agpr: self.a(f"v_accvgpr_write_b32 {self.accreg(i,j,r)}, 0")
                    else: self.a(f"v_mov_b32 {self.accreg(i,j,r)}, 0")

    def step3(self, t, dX, dW, rdX, rdW, vm, barrier=True, extra=None, post=None):
        a, c = self.a, self.c
        TI, S = c.TI, c.S
        nm = 2 * c.TJ
        xr = self.xreads(t + 1) if rdX else []
        nrx = TI - 2
        xper = [len(xr) * (r + 1) // nrx - len(xr) * r // nrx for r in range(nrx)]
        dx = self.dmaA(t % S) if dX else []
        if extra: dx = dx + [list(extra)]
        dxper = [len(dx) * (r + 1) // nrx - len(dx) * r // nrx for r in range(nrx)] if c.TI <= 4 else \
                [min(5, max(0, len(dx) - 5 * r)) for r in range(nrx)]
        dw = self.dmaB(t % S) if dW else []
        hist = self._hist
        for i in range(TI):
            w2, x2 = hist[-2]; w1, x1 = hist[-1]
            if i == TI - 2:
                if barrier:
                    a(f"s_waitcnt vmcnt({vm}) lgkmcnt(0)")
                    a("s_barrier")
                    if post: a(post)
                else:
                    a("s_waitcnt lgkmcnt(0)")
            elif i == TI - 1:
                pass
            else:
                a(f"s_waitcnt lgkmcnt({min(15, x2 + w1 + x1)})")
            if i + 2 < TI: wr = self.wreads(t, i + 2)
            elif rdW: wr = self.wreads(t + 1, i + 2 - TI)
            else: wr = []
            xs = []; ds = []
            if i < nrx:
                xs = xr[:xper[i]]; xr = xr[xper[i]:]
                ds = dx[:dxper[i]]; dx = dx[dxper[i]:]
            else:
                h = (len(dw) + 1) // 2 if i == TI - 2 else len(dw)
                ds = dw[:h]; dw = dw[h:]
            fill = self._mix1(wr + xs, ds)
            a(merge(self.row_mfmas(t, i), fill, 0, nm - 1))
            hist = [hist[-1], (len(wr), len(xs))]
        assert not dx and not dw and not xr
        self._hist = hist

    def prologue_dma(self):
        a, c = self.a, self.c
        for st in range(c.S):
            for g in self.dmaA(st): a(g)
            for g in self.dmaB(st): a(g)

    def tail_len(self, n=None):
        c = self.c
        T = c.S + 1
        while T % self.U: T += 1
        return T

    def mainloop(self, s_loopcount, label, st=None, sidx=1, extras=None, pro_extra=0):
        a, c = self.a, self.c
        S, PA, PB, U = c.S, c.PA, c.PB, self.U
        extras = extras or {}
        a(f"s_waitcnt vmcnt({(S-2)*(PA+PB) + PB + pro_extra})")
        a("s_barrier")
        a(self.xreads(0)); a(self.wreads(0, 0)); a(self.wreads(0, 1))
        a("s_waitcnt lgkmcnt(0)")
        a("s_barrier")
        if st: st.stamp(sidx); a("s_waitcnt lgkmcnt(0)")
        self._hist = [(4, 0), (4, 0)]
        a.label(label)
        for t in range(U):
            nx = sum(1 for u in range(t + 2 - S, t + 1) if (u % U) in extras)
            self.step3(t, True, True, True, True, (S - 2) * (PA + PB) + nx, extra=extras.get(t))
        assert self._hist == [(4, 0), (4, 0)]
        a(f"s_sub_u32 {sr(s_loopcount)}, {sr(s_loopcount)}, 1")
        a(f"s_cmp_lg_u32 {sr(s_loopcount)}, 0")
        a(f"s_cbranch_scc1 {label}")
        self.tail()

    def tail(self):
        a, c = self.a, self.c
        S, PA, PB, U = c.S, c.PA, c.PB, self.U
        T = self.tail_len()
        for k in range(T):
            r = k - T
            dX = r + S <= -1
            dW = r + S <= -1
            seq = []
            for u in range(r - 2, r + S + 1):
                if u <= -1: seq.append(("X", u))
                if u <= -1 and u <= r + S - 1: seq.append(("W", u))
            need = [x for x in (("W", r + 1), ("X", r + 2)) if x[1] <= -1]
            if need:
                last = max(seq.index(x) for x in need)
                vm = sum(PA if x[0] == "X" else PB for x in seq[last + 1:])
            else:
                vm = 0
            self.step3(k, dX, dW, r + 1 <= -1, r + 1 <= -1, vm, barrier=(r + 1 <= -1))
```

```python
from asmb import *
from stamps import Stamper
import stamps
import codepf
from k1_gen import srd, f32, WS_Q, WS_K, WS_V, WS_Z, Z_KB

MF = "v_mfma_f32_16x16x32_bf16"
PREFETCH_W = True
import os
STMOD = os.environ.get('STMOD', ' sc1')
BIAS = 7.0
NEG = -1.0e30

class RD:
    def __init__(self, tag, text): self.tag, self.text = tag, text
class WAIT:
    def __init__(self, *tags): self.tags = tags

def resolve(seq, pre=()):
    out = []; issued = len(pre); pos = {t: n for n, t in enumerate(pre)}; done = 0
    for it in seq:
        if isinstance(it, RD):
            pos[it.tag] = issued; issued += 1; out.append(it.text)
        elif isinstance(it, WAIT):
            need = max(pos[t] for t in it.tags if t in pos) + 1 if any(t in pos for t in it.tags) else 0
            if need > done:
                n = issued - need
                out.append(f"s_waitcnt lgkmcnt({min(n, 15)})")
                done = max(done, issued - min(n, 15))
        else:
            out.append(it)
    return out

def flat(items):
    o = []
    for x in items:
        if isinstance(x, (list, tuple)): o.extend(flat(x))
        else: o.append(x)
    return o

def gen_k2(a, name="k2_kernel", NEXT=True, mg=None):
    if not mg: kernel_header(a, name)
    V = RegAlloc(1, 256, "v"); S = RegAlloc(12, 100 if mg else 84, "s"); st = Stamper(a, 1)
    def O(db, qb): return (db * 4 + qb) * 4
    def L(qb): return 128 + qb * 4
    def Q(qb, ks): return 144 + (qb * 4 + ks) * 4
    ONES = 208
    def VF(set_, u): return 212 + (set_ * 2 + u) * 4
    NA = 244
    vS = V.alloc("S", 128, 4)
    def Sb(buf, kvb, qb): return vS + ((buf * 4 + kvb) * 4 + qb) * 4
    vP = V.alloc("P", 32, 4)
    def P(u, qb): return vP + (u * 4 + qb) * 4
    vK = V.alloc("K", 32, 4)
    def KF(set_, ks): return vK + (set_ * 4 + ks) * 4
    vNM = V.alloc("negm", 16, 4)
    vT = V.alloc("T", 16, 4)
    vM = V.alloc("moff", 4, 4)
    vD = V.alloc("delta", 4, 4)
    vlane = V.alloc("lane"); vKrd = V.alloc("Krd"); vVrd = V.alloc("Vrd"); vsrc = V.alloc("src"); vsrcV = V.alloc("srcV")
    vx16 = V.alloc("x16"); vx32 = V.alloc("x32"); vneg = V.alloc("neg"); vor = V.alloc("or"); vq = V.alloc("q"); vmrg = V.alloc("mrg"); vmrgR = V.alloc("mrgR")
    sQ = S.alloc("srdQ", 4, 4); sK = S.alloc("srdK", 4, 4); sV = S.alloc("srdV", 4, 4); sZ = S.alloc("srdZ", 4, 4)
    sMD = [S.alloc(f"maskD{r}", 2, 2) for r in range(4)]; sMB = S.alloc("maskB", 2, 2)
    sTri = sMD
    s_wave = S.alloc("wave"); s_qh = S.alloc("qh"); s_par = S.alloc("par"); s_head = S.alloc("head"); s_p = S.alloc("p")
    s_i = S.alloc("i"); s_n = S.alloc("n"); s_pass = S.alloc("pass"); s_m0 = S.alloc("m0w"); s_4k = S.alloc("c4k"); s_hb = S.alloc("headbase")
    sPF = S.alloc("srdPF", 4, 4)
    sPQ = [S.alloc(f"pfq{k}", 3) for k in range(4)]
    s_tog = S.alloc("pftog")
    vpf = V.alloc("vpf"); vdum = V.alloc("vdum"); vkv = V.alloc("vkv")
    sKV = S.alloc("srdKV", 4, 4); s_64k = S.alloc("c64k")
    s_32k = S.alloc("c32k"); s_nrK = S.alloc("nrK"); s_nrV = S.alloc("nrV")

    if mg:
        sF = S.alloc("srdF", 4, 4); s_jobs = S.alloc("jobs"); s_sig = S.alloc("sig")
    else:
        a("s_cmp_ge_u32 s2, 256")
        a(f"s_cbranch_scc1 {name}_end")
        st.stamp(0)
        a("s_mov_b32 s87, s2")
    a("s_load_dwordx2 s[4:5], s[0:1], 104")
    a("s_load_dwordx2 s[8:9], s[0:1], 40")
    a("s_load_dwordx2 s[10:11], s[0:1], 72")
    if mg:
        mg.lane_id(a, vlane)
        a(f"s_mov_b32 {sr(s_wave)}, s{mg.S_WAVE}")
    else:
        a(f"v_and_b32 {vr(vlane)}, 63, v0")
        a(f"v_lshrrev_b32 {vr(vT)}, 6, v0")
        a("s_nop 0")
        a(f"v_readfirstlane_b32 {sr(s_wave)}, {vr(vT)}")
        a("s_nop 3")
    a(f"s_and_b32 {sr(s_qh)}, {sr(s_wave)}, 1")
    a(f"s_lshr_b32 {sr(s_par)}, {sr(s_wave)}, 1")
    a("s_and_b32 s3, s2, 7")
    a("s_lshr_b32 s6, s2, 3")
    if mg:
        a(f"s_lshr_b32 {sr(s_p)}, s6, 2")
        a("s_and_b32 s6, s6, 3")
        a(f"s_mov_b32 {sr(s_jobs)}, 0")
        for k, jl in enumerate(mg.ATT_JOBS):
            val = 0
            for n_, i_ in enumerate(jl): val |= (16 | i_) << (5 * n_)
            a(f"s_cmp_eq_u32 {sr(s_p)}, {k}"); a(f"s_cselect_b32 {sr(s_jobs)}, {val}, {sr(s_jobs)}")
        a(f"s_brev_b32 {sr(s_sig)}, 1")
    else:
        a(f"s_and_b32 {sr(s_p)}, s6, 7")
        a("s_lshr_b32 s6, s6, 3")
    a("s_lshl_b32 s3, s3, 2")
    a(f"s_add_u32 {sr(s_head)}, s3, s6")
    a(f"s_lshl_b32 {sr(s_hb)}, {sr(s_head)}, 19")
    a(f"s_mov_b32 {sr(s_4k)}, 4096")
    a(f"s_mov_b32 {sr(s_32k)}, 32768")
    a(f"s_lshl_b32 {sr(s_m0)}, {sr(s_wave)}, 13")
    a("s_waitcnt lgkmcnt(0)")
    srd(a, sQ, 4, 5, 16 << 20, WS_Q)
    srd(a, sK, 4, 5, 16 << 20, WS_K)
    srd(a, sV, 4, 5, 16 << 20, WS_V)
    srd(a, sZ, 4, 5, 128 * Z_KB * 1024, WS_Z)
    a(f"s_lshl_b32 s3, s2, 2"); a(f"s_add_u32 s3, s3, {sr(s_wave)}")
    a("s_lshl_b32 s6, s3, 13")
    a(f"s_add_u32 {sr(sPQ[0])}, s8, s6"); a(f"s_addc_u32 {sr(sPQ[0]+1)}, s9, 0"); a(f"s_mov_b32 {sr(sPQ[0]+2)}, 8192")
    a("s_mul_i32 s6, s3, 7168")
    a(f"s_add_u32 {sr(sPQ[1])}, s10, s6"); a(f"s_addc_u32 {sr(sPQ[1]+1)}, s11, 0"); a(f"s_mov_b32 {sr(sPQ[1]+2)}, 7168")
    a("s_lshr_b32 s6, s3, 3"); a(f"s_mul_i32 s6, s6, {Z_KB*1024}")
    a("s_and_b32 s7, s3, 7"); a("s_mul_i32 s7, s7, 14336"); a("s_add_u32 s6, s6, s7")
    a(f"s_add_u32 {sr(sPQ[2])}, {sr(sZ)}, s6"); a(f"s_addc_u32 {sr(sPQ[2]+1)}, {sr(sZ+1)}, 0"); a(f"s_mov_b32 {sr(sPQ[2]+2)}, {0 if mg else 8192}")
    a(f"s_add_u32 {sr(sPQ[3])}, {sr(sPQ[2])}, 8192"); a(f"s_addc_u32 {sr(sPQ[3]+1)}, {sr(sPQ[2]+1)}, 0"); a(f"s_mov_b32 {sr(sPQ[3]+2)}, {0 if mg else 6144}")
    a(f"s_mov_b32 {sr(sPF+3)}, 0x20000")
    a(f"s_and_b32 {sr(s_tog)}, {sr(s_wave)}, 1")
    a(f"v_lshlrev_b32 {vr(vpf)}, 7, {vr(vlane)}")
    srd(a, sKV, 4, 5, 48 << 20, WS_Q)
    if mg: srd(a, sF, 4, 5, mg.FLAG_BYTES, mg.WS_FLAG)
    a(f"s_mov_b32 {sr(s_64k)}, 65536")
    a(f"s_lshl_b32 s3, {sr(s_p)}, 2"); a(f"s_add_u32 s3, s3, {sr(s_wave)}"); a("s_lshl_b32 s3, s3, 11")
    a(f"s_add_u32 s3, s3, {sr(s_hb)}")
    a(f"s_add_u32 s3, s3, {WS_K}")
    a(f"v_and_b32 {vr(vkv)}, 15, {vr(vlane)}")
    a(f"v_lshlrev_b32 {vr(vkv)}, 7, {vr(vkv)}")
    a(f"v_bfe_u32 {vr(vT+1)}, {vr(vlane)}, 4, 1")
    a(f"v_lshlrev_b32 {vr(vT+1)}, 24, {vr(vT+1)}")
    a(f"v_add3_u32 {vr(vkv)}, {vr(vkv)}, {vr(vT+1)}, s3")
    a(f"v_bfrev_b32 {vr(vT+1)}, 1")
    a(f"v_cmp_gt_u32 vcc, 32, {vr(vlane)}")
    a("s_nop 1")
    a(f"v_cndmask_b32 {vr(vkv)}, {vr(vT+1)}, {vr(vkv)}, vcc")
    a(f"v_lshlrev_b32 {vr(vT)}, 4, {vr(vlane)}")
    a(f"s_lshl_b32 s3, {sr(s_par)}, 14")
    a(f"v_add_u32 {vr(vKrd)}, s3, {vr(vT)}")
    a(f"v_add_u32 {vr(vVrd)}, 0x10000, {vr(vKrd)}")
    a(f"v_xor_b32 {vr(vx16)}, 16, {vr(vlane)}"); a(f"v_lshlrev_b32 {vr(vx16)}, 2, {vr(vx16)}")
    a(f"v_xor_b32 {vr(vx32)}, 32, {vr(vlane)}"); a(f"v_lshlrev_b32 {vr(vx32)}, 2, {vr(vx32)}")
    a(f"v_mov_b32 {vr(vneg)}, {f32(NEG)}")
    a(f"s_mul_i32 s3, {sr(s_wave)}, 18432")
    a(f"v_add_u32 {vr(vmrg)}, s3, {vr(vT)}")
    a(f"s_xor_b32 s3, {sr(s_wave)}, 2")
    a("s_mul_i32 s3, s3, 18432")
    a(f"v_add_u32 {vr(vmrgR)}, s3, {vr(vT)}")
    a(f"v_lshrrev_b32 {vr(vT+1)}, 4, {vr(vlane)}")
    a(f"v_lshlrev_b32 {vr(vT+1)}, 2, {vr(vT+1)}")
    a(f"v_and_b32 {vr(vT+2)}, 15, {vr(vlane)}")
    for r in range(4):
        a(f"v_add_u32 {vr(vT+3)}, {r}, {vr(vT+1)}")
        a(f"v_cmp_gt_u32 {sr(sTri[r],2)}, {vr(vT+3)}, {vr(vT+2)}")
    a(f"v_mov_b32 {vr(vT)}, 0x3f803f80")
    for r in range(4): a(f"v_accvgpr_write_b32 {ar(ONES+r)}, {vr(vT)}")
    a(f"s_cmp_eq_u32 {sr(s_qh)}, {sr(s_par)}")
    for r in range(4):
        a(f"s_cselect_b64 {sr(sMD[r],2)}, {sr(sTri[r],2)}, 0")
    a(f"s_cselect_b64 {sr(sMB,2)}, -1, 0")
    a(f"s_mov_b32 {sr(s_pass)}, 0")
    if mg:
        a(f"s_and_b32 {sr(s_i)}, {sr(s_jobs)}, 15"); a(f"s_lshr_b32 {sr(s_jobs)}, {sr(s_jobs)}, 5")
        a(f"s_lshr_b32 s6, {sr(s_head)}, 1"); a("s_lshl_b32 s6, s6, 9")
        mg.wait_flags(a, f"{name}_wq", sF, "s6", 48, True, vlane, vT)
        def signal():
            return ["s_mov_b64 exec, 1", f"buffer_store_dword {vr(vneg)}, {vr(vlane)}, {sr(sF,4)}, {sr(s_sig)} offen sc1", "s_mov_b64 exec, -1"]
    else:
        a(f"s_sub_u32 {sr(s_i)}, 15, {sr(s_p)}")

    def dma(kind, stage):
        base = stage * 32768 + (65536 if kind == "V" else 0)
        s_, v_ = (sV, vsrcV) if kind == "V" else (sK, vsrc)
        out = []
        for q in range(8):
            g = []
            if q % 4 == 0:
                g.append(f"s_add_u32 m0, {sr(s_m0)}, {base + (q//4)*4096}")
                g.append("s_nop 0")
            so = "0" if q < 4 else sr(s_4k)
            g.append(f"buffer_load_dwordx4 {vr(v_)}, {sr(s_,4)}, {so} offen offset:{(q%4)*1024} lds")
            out.append(g)
        out.append([f"v_add_u32 {vr(v_)}, {sr(s_32k)}, {vr(v_)}"])
        return out
    def kvtouch():
        return [f"buffer_load_dword {vr(vdum)}, {vr(vkv)}, {sr(sKV,4)}, 0 offen",
                f"v_add_u32 {vr(vkv)}, {sr(s_64k)}, {vr(vkv)}"]
    def kread(stage, kvb):
        return [RD(("K", kvb, ks), f"ds_read_b128 {vr(KF(kvb%2, ks),4)}, {vr(vKrd)} offset:{stage*32768 + (kvb*4+ks)*1024}") for ks in range(4)]
    def vread(stage, db):
        return [RD(("V", db, u), f"ds_read_b128 {ar(VF(db%4, u),4)}, {vr(vVrd)} offset:{stage*32768 + (u*8+db)*1024}") for u in range(2)]
    def qk_group(buf, kvb, czero=False):
        out = []
        for qb in range(4):
            for ks in range(4):
                d = vr(Sb(buf, kvb, qb), 4)
                c = ("0" if czero else vr(vNM + qb * 4, 4)) if ks == 0 else d
                out.append(f"{MF} {d}, {vr(KF(kvb%2, ks),4)}, {ar(Q(qb,ks),4)}, {c}")
        return out
    def pv_group(db):
        out = []
        for qb in range(4):
            for u in range(2):
                d = ar(O(db, qb), 4)
                out.append(f"{MF} {d}, {ar(VF(db%4,u),4)}, {vr(P(u,qb),4)}, {d}")
        return out
    def l_group():
        out = []
        for qb in range(4):
            for u in range(2):
                d = ar(L(qb), 4)
                out.append(f"{MF} {d}, {ar(ONES,4)}, {vr(P(u,qb),4)}, {d}")
        return out
    def softmax_ops(buf):
        out = []
        cnt = 0
        nor = 0
        for kvb in range(4):
            for qb in range(4):
                t = vT + (cnt % 2) * 4; cnt += 1
                s = Sb(buf, kvb, qb)
                p = P(kvb // 2, qb) + (kvb % 2) * 2
                for r in range(4): out.append(f"v_exp_f32 {vr(t+r)}, {vr(s+r)}")
                out.append(f"v_cvt_pk_bf16_f32 {vr(p)}, {vr(t)}, {vr(t+1)}")
                out.append(f"v_cvt_pk_bf16_f32 {vr(p+1)}, {vr(t+2)}, {vr(t+3)}")
                if nor == 0: out.append(f"v_or_b32 {vr(vor)}, {vr(p)}, {vr(p+1)}")
                else: out.append(f"v_or3_b32 {vr(vor)}, {vr(vor)}, {vr(p)}, {vr(p+1)}")
                nor += 1
        return out
    def check(label):
        return [f"v_and_b32 {vr(vor)}, 0x40004000, {vr(vor)}",
                f"v_cmp_ne_u32 vcc, 0, {vr(vor)}",
                f"s_cbranch_vccnz {label}"]
    def fixmax(buf, has_next, first):
        o = ["s_nop 7", "s_waitcnt lgkmcnt(0)"]
        for qb in range(4):
            d = vD + qb
            regs = [Sb(buf, kvb, qb) + r for kvb in range(4) for r in range(4)]
            o.append(f"v_max3_f32 {vr(d)}, {vr(regs[0])}, {vr(regs[1])}, {vr(regs[2])}")
            for k in range(3, 15, 2):
                o.append(f"v_max3_f32 {vr(d)}, {vr(d)}, {vr(regs[k])}, {vr(regs[k+1])}")
            o.append(f"v_max_f32 {vr(d)}, {vr(d)}, {vr(regs[15])}")
        for vx in (vx16, vx32):
            for qb in range(4): o.append(f"ds_bpermute_b32 {vr(vT+qb)}, {vr(vx)}, {vr(vD+qb)}")
            o.append("s_waitcnt lgkmcnt(0)")
            for qb in range(4): o.append(f"v_max_f32 {vr(vD+qb)}, {vr(vD+qb)}, {vr(vT+qb)}")
        for qb in range(4):
            o.append(f"v_add_f32 {vr(vD+qb)}, {f32(BIAS)}, {vr(vD+qb)}")
            if first:
                o.append(f"v_mov_b32 {vr(vM+qb)}, {vr(vD+qb)}")
            else:
                o.append(f"v_max_f32 {vr(vD+qb)}, 0, {vr(vD+qb)}")
                o.append(f"v_add_f32 {vr(vM+qb)}, {vr(vM+qb)}, {vr(vD+qb)}")
            for r in range(4): o.append(f"v_sub_f32 {vr(vNM+qb*4+r)}, 0, {vr(vM+qb)}")
        for b in ([buf, 1 - buf] if has_next else [buf]):
            for kvb in range(4):
                for qb in range(4):
                    for r in range(4):
                        s = Sb(b, kvb, qb) + r
                        o.append(f"v_sub_f32 {vr(s)}, {vr(s)}, {vr(vD+qb)}")
        if not first:
            for qb in range(4):
                o.append(f"v_sub_f32 {vr(vT+8+qb)}, 0, {vr(vD+qb)}")
                o.append(f"v_exp_f32 {vr(vT+8+qb)}, {vr(vT+8+qb)}")
            o.append("s_nop 0")
            for qb in range(4):
                regs = [O(db, qb) + r for db in range(8) for r in range(4)] + [L(qb) + r for r in range(4)]
                for k in range(0, len(regs), 4):
                    for e in range(4): o.append(f"v_accvgpr_read_b32 {vr(vT+e)}, {ar(regs[k+e])}")
                    for e in range(4): o.append(f"v_mul_f32 {vr(vT+e)}, {vr(vT+e)}, {vr(vT+8+qb)}")
                    for e in range(4): o.append(f"v_accvgpr_write_b32 {ar(regs[k+e])}, {vr(vT+e)}")
        o.append("s_nop 1")
        return o

    rare_blocks = []
    def phaseB(stage, pre_issued):
        seq = []
        if not pre_issued: seq += vread(stage, 0) + vread(stage, 1)
        seq += l_group()[:]
        for db in range(8):
            seq.append(WAIT(("V", db, 0), ("V", db, 1)))
            fill = vread(stage, db + 2) if db + 2 < 8 else []
            seq += merge(pv_group(db), fill, 0, 4)
        return seq

    def iteration(par):
        lab = f"{name}_rare{par}"
        kst = 1 - par
        vst = par
        seq = [f"s_waitcnt vmcnt({2 if par == 1 else 1}) lgkmcnt(0)", "s_barrier"]
        seq += [f"s_add_u32 s3, {sr(s_n)}, 2", f"s_cmp_le_u32 s3, {sr(s_i)}", f"s_cselect_b32 {sr(sK+2)}, {sr(s_nrK)}, 0"]
        seq += kread(kst, 0) + kread(kst, 1)
        sm = softmax_ops(par)
        d = dma("K", par) + dma("V", 1 - par)
        if par == 0 and PREFETCH_W:
            pf = [f"s_xor_b32 {sr(s_tog)}, {sr(s_tog)}, 1",
                  f"s_mov_b32 {sr(sPF)}, {sr(sPQ[0])}", f"s_mov_b32 {sr(sPF+1)}, {sr(sPQ[0]+1)}",
                  f"s_cselect_b32 {sr(sPF+2)}, {sr(sPQ[0]+2)}, 0"]
            for k in range(3):
                for e in range(3):
                    pf.append(f"s_cselect_b32 {sr(sPQ[k]+e)}, {sr(sPQ[k+1]+e)}, {sr(sPQ[k]+e)}")
            pf.append(f"s_cselect_b32 {sr(sPQ[3]+2)}, 0, {sr(sPQ[3]+2)}")
            pf.append(f"buffer_load_dword {vr(vdum)}, {vr(vpf)}, {sr(sPF,4)}, 0 offen")
            pfg = [("ATOMIC", pf)]
        else:
            pfg = []
        npre = 21
        pre = sm[:npre]; sm = sm[npre:]
        seq += flat(merge(pre, d[:6], 0, npre))
        d = d[6:]
        per = (len(sm) + 3) // 4
        for kvb in range(4):
            seq.append(WAIT(*[("K", kvb, ks) for ks in range(4)]))
            fill = []
            if 1 <= kvb <= 2: fill += kread(kst, kvb + 1)
            if kvb == 3: fill += vread(vst, 0) + vread(vst, 1)
            dd = d[:6]; d = d[6:]
            sms = sm[kvb * per:(kvb + 1) * per]
            mixed = flat(merge(sms, fill + dd, 0, len(sms))) if sms else flat(fill + dd)
            seq += merge_keep(qk_group(1 - par, kvb), mixed)
        assert not d
        for g in pfg: seq += g[1]
        seq += [f"s_add_u32 s3, {sr(s_n)}, {sr(s_pass)}", "s_cmp_lt_u32 s3, 6", f"s_cselect_b32 {sr(sKV+2)}, {sr(s_nrV)}, 0"] + kvtouch()
        seq += check(lab)
        seq.append(f"{lab}_ret:")
        seq += phaseB(vst, True)
        rare_blocks.append((lab, par, True))
        return seq

    def merge_keep(main, fill):
        n = len(main); out = []; m = len(fill); k = 0
        for i in range(n):
            out.append(main[i])
            upto = (i + 1) * m // n
            while k < upto: out.append(fill[k]); k += 1
        return out

    def last(par):
        lab = f"{name}_rareL{par}"
        seq = [f"s_waitcnt vmcnt({2 if par == 1 else 1}) lgkmcnt(0)", "s_barrier"]
        seq += [f"s_cmp_eq_u32 {sr(s_wave)}, 2", f"s_cbranch_scc1 {name}_merge"]
        seq += vread(par, 0) + vread(par, 1)
        for kvb in range(4):
            for qb in range(4):
                if kvb < qb: continue
                for r in range(4):
                    s = Sb(par, kvb, qb) + r
                    m = sMD[r] if kvb == qb else sMB
                    seq.append(f"v_cndmask_b32 {vr(s)}, {vr(s)}, {vr(vneg)}, {sr(m,2)}")
        if par == 0:
            seq += [f"s_cmp_lg_u32 {sr(s_i)}, 0", f"s_cbranch_scc1 {name}_nofirst"]
            seq += fixmax(0, False, True)
            seq.append(f"{name}_nofirst:")
        seq += softmax_ops(par)
        seq += check(lab)
        seq.append(f"{lab}_ret:")
        seq += phaseB(par, True)
        rare_blocks.append((lab, par, False))
        return seq

    def emit(seq):
        for x in resolve(flat(seq)):
            if x.endswith(":"): a.label(x[:-1])
            else: a(x)

    a.label(f"{name}_tile")
    a(f"s_lshl_b32 s3, {sr(s_i)}, 15")
    a(f"s_lshl_b32 s6, {sr(s_qh)}, 14")
    a("s_add_u32 s3, s3, s6")
    a(f"s_add_u32 s3, s3, {sr(s_hb)}")
    a(f"v_lshlrev_b32 {vr(vT)}, 4, {vr(vlane)}")
    a(f"v_add_u32 {vr(vq)}, s3, {vr(vT)}")
    a(f"s_add_u32 s3, {sr(s_hb)}, {sr(s_m0)}")
    a(f"v_add_u32 {vr(vsrc)}, s3, {vr(vT)}")
    a(f"v_mov_b32 {vr(vsrcV)}, {vr(vsrc)}")
    a(f"s_mov_b32 {sr(s_nrK)}, {16<<20}")
    a(f"s_mov_b32 {sr(sK+2)}, {16<<20}")
    for g in dma("K", 0): a(g)
    for qb in range(4):
        a(f"s_mov_b32 s3, {qb*4096}")
        for ks in range(4):
            a(f"buffer_load_dwordx4 {ar(Q(qb,ks),4)}, {vr(vq)}, {sr(sQ,4)}, s3 offen offset:{ks*1024}")
    for g in dma("V", 0): a(g)
    a(f"s_cmp_ge_u32 {sr(s_i)}, 1")
    a(f"s_cselect_b32 {sr(sK+2)}, {sr(s_nrK)}, 0")
    for g in dma("K", 1): a(g)
    a(f"s_mov_b32 {sr(s_nrV)}, {48<<20}")
    a(f"s_cmp_eq_u32 {sr(s_pass)}, 0")
    a(f"s_cselect_b32 {sr(sKV+2)}, {sr(s_nrV)}, 0")
    a(kvtouch()); a(kvtouch())
    for r in range(144): a(f"v_accvgpr_write_b32 {ar(r)}, 0")
    for qb in range(4): a(f"v_mov_b32 {vr(vM+qb)}, {vr(vneg)}")
    a(f"s_mov_b32 {sr(s_n)}, 0")
    a("s_waitcnt vmcnt(18)")
    a("s_barrier")
    if mg: a(signal())
    if stamps.ENABLE:
        a(f"s_cmp_lg_u32 {sr(s_pass)}, 0"); a(f"s_cbranch_scc1 {name}_st1"); st.stamp(1); st.cyc2(0); a.label(f"{name}_st1")
    seq = kread(0, 0) + kread(0, 1)
    for kvb in range(4):
        seq.append(WAIT(*[("K", kvb, ks) for ks in range(4)]))
        fill = kread(0, kvb + 1) if 1 <= kvb <= 2 else []
        seq += merge(qk_group(0, kvb, czero=True), fill, 0, 8)
    emit(seq)
    a(f"s_cmp_eq_u32 {sr(s_i)}, 0")
    a(f"s_cbranch_scc1 {name}_last0")
    emit(fixmax(0, False, True))
    a.label(f"{name}_loop")
    emit(iteration(0))
    a(f"s_add_u32 {sr(s_n)}, {sr(s_n)}, 1")
    a(f"s_cmp_eq_u32 {sr(s_n)}, {sr(s_i)}")
    a(f"s_cbranch_scc1 {name}_last1")
    emit(iteration(1))
    a(f"s_add_u32 {sr(s_n)}, {sr(s_n)}, 1")
    a(f"s_cmp_lg_u32 {sr(s_n)}, {sr(s_i)}")
    a(f"s_cbranch_scc1 {name}_loop")
    a.label(f"{name}_last0")
    a("s_nop 7")
    emit(last(0))
    a(f"s_branch {name}_merge")
    a.label(f"{name}_last1")
    emit(last(1))
    a.label(f"{name}_merge")
    a("s_waitcnt lgkmcnt(0)")
    a("s_barrier")
    if stamps.ENABLE:
        st.stamp(4)
        a(f"s_cmp_lg_u32 {sr(s_pass)}, 0"); a(f"s_cbranch_scc1 {name}_st2"); st.stamp(2); st.cyc2(1); a.label(f"{name}_st2"); a("s_waitcnt lgkmcnt(0)")
    a("s_nop 7")
    a(f"s_cmp_eq_u32 {sr(s_par)}, 0")
    a(f"s_cbranch_scc0 {name}_send1")
    def send(dbs):
        k = 0
        for db in dbs:
            for qb in range(4):
                a(f"ds_write_b128 {vr(vmrg)}, {ar(O(db,qb),4)} offset:{k*1024}"); k += 1
    send(range(4, 8))
    a(f"s_branch {name}_sent")
    a.label(f"{name}_send1")
    send(range(0, 4))
    a.label(f"{name}_sent")
    for qb in range(4): a(f"v_accvgpr_read_b32 {vr(vD+qb)}, {ar(L(qb))}")
    a(f"ds_write_b128 {vr(vmrg)}, {vr(vM,4)} offset:{16*1024}")
    a(f"ds_write_b128 {vr(vmrg)}, {vr(vD,4)} offset:{17*1024}")
    a("s_waitcnt lgkmcnt(0)")
    a("s_barrier")
    R = vS
    a(f"ds_read_b128 {vr(vT,4)}, {vr(vmrgR)} offset:{16*1024}")
    a(f"ds_read_b128 {vr(vT+4,4)}, {vr(vmrgR)} offset:{17*1024}")
    for k in range(16): a(f"ds_read_b128 {vr(R+4*k,4)}, {vr(vmrgR)} offset:{k*1024}")
    a("s_waitcnt lgkmcnt(15)")
    a("s_waitcnt lgkmcnt(14)") if False else None
    a("s_waitcnt lgkmcnt(0)")
    CA, CB = vNM, vNM + 4
    for qb in range(4):
        mm = vT + 8 + qb
        a(f"v_max_f32 {vr(mm)}, {vr(vM+qb)}, {vr(vT+qb)}")
        a(f"v_sub_f32 {vr(CA+qb)}, {vr(vM+qb)}, {vr(mm)}")
        a(f"v_sub_f32 {vr(CB+qb)}, {vr(vT+qb)}, {vr(mm)}")
        a(f"v_exp_f32 {vr(CA+qb)}, {vr(CA+qb)}")
        a(f"v_exp_f32 {vr(CB+qb)}, {vr(CB+qb)}")
        a("s_nop 0")
        a(f"v_mul_f32 {vr(mm)}, {vr(vD+qb)}, {vr(CA+qb)}")
        a(f"v_fmac_f32 {vr(mm)}, {vr(vT+4+qb)}, {vr(CB+qb)}")
        a(f"v_rcp_f32 {vr(mm)}, {vr(mm)}")
        a("s_nop 0")
        a(f"v_mul_f32 {vr(CA+qb)}, {vr(CA+qb)}, {vr(mm)}")
        a(f"v_mul_f32 {vr(CB+qb)}, {vr(CB+qb)}, {vr(mm)}")
    a(f"s_lshl_b32 s3, {sr(s_i)}, 3")
    a(f"s_lshl_b32 s6, {sr(s_qh)}, 2")
    a("s_add_u32 s3, s3, s6")
    a(f"s_mul_i32 s3, s3, {Z_KB*1024}")
    a(f"s_lshl_b32 s6, {sr(s_head)}, 12")
    a("s_add_u32 s3, s3, s6")
    a(f"s_lshl_b32 s6, {sr(s_par)}, 11")
    a("s_add_u32 s3, s3, s6")
    a(f"s_add_u32 s3, s3, {112*1024}")
    a(f"v_lshlrev_b32 {vr(vq)}, 4, {vr(vlane)}")
    a(f"v_add_u32 {vr(vq)}, s3, {vr(vq)}")
    a(f"s_cmp_eq_u32 {sr(s_par)}, 0")
    a(f"s_cbranch_scc0 {name}_fin1")
    def fin(db0):
        W = vS + 64
        cnt = 0
        for qb in range(4):
            a(f"s_mov_b32 s3, {qb*Z_KB*1024}")
            for uu in range(2):
                b = W + (cnt % 4) * 12; cnt += 1
                for e in range(8):
                    a(f"v_accvgpr_read_b32 {vr(b+4+e)}, {ar(O(db0 + 2*uu + e//4, qb) + e%4)}")
                for e in range(8):
                    a(f"v_mul_f32 {vr(b+4+e)}, {vr(b+4+e)}, {vr(CA+qb)}")
                for e in range(8):
                    k = (2 * uu + e // 4) * 4 + qb
                    a(f"v_fmac_f32 {vr(b+4+e)}, {vr(R+4*k+e%4)}, {vr(CB+qb)}")
                for p in range(4):
                    a(f"v_cvt_pk_bf16_f32 {vr(b+p)}, {vr(b+4+2*p)}, {vr(b+5+2*p)}")
                a(f"buffer_store_dwordx4 {vr(b,4)}, {vr(vq)}, {sr(sZ,4)}, s3 offen offset:{uu*1024}{STMOD}")
    fin(0)
    a(f"s_branch {name}_fin")
    a.label(f"{name}_fin1")
    fin(4)
    a.label(f"{name}_fin")
    if mg:
        a(f"s_lshl_b32 s3, {sr(s_i)}, 1"); a(f"s_lshr_b32 s6, {sr(s_head)}, 4"); a("s_add_u32 s3, s3, s6"); a("s_lshl_b32 s3, s3, 8")
        a(f"s_and_b32 s6, {sr(s_head)}, 15"); a("s_lshl_b32 s6, s6, 2"); a(f"s_add_u32 s6, s6, {sr(s_wave)}"); a("s_lshl_b32 s6, s6, 2")
        a("s_add_u32 s3, s3, s6"); a(f"s_add_u32 {sr(s_sig)}, s3, {mg.F_CTX}")
        a(f"s_mov_b32 {sr(s_pass)}, 64")
        a(f"s_and_b32 {sr(s_i)}, {sr(s_jobs)}, 15")
        a("s_barrier")
        a(f"s_cmp_eq_u32 {sr(s_jobs)}, 0")
        a(f"s_cbranch_scc1 {name}_done")
        a(f"s_lshr_b32 {sr(s_jobs)}, {sr(s_jobs)}, 5")
        a(f"s_branch {name}_tile")
        a.label(f"{name}_done")
        a("s_waitcnt vmcnt(0)")
        a(signal())
        a(f"s_branch {name}_exit")
    else:
        a(f"s_cmp_lg_u32 {sr(s_pass)}, 0")
        a(f"s_cbranch_scc1 {name}_done")
        st.stamp(3)
        a(f"s_mov_b32 {sr(s_pass)}, 64")
        a(f"s_mov_b32 {sr(s_i)}, {sr(s_p)}")
        a("s_barrier")
        a(f"s_branch {name}_tile")
        a.label(f"{name}_done")
        if NEXT:
            codepf.code_touch(a, "k3_kernel", "k3_code_end", vlane, vT, vdum, sr(s_wave), "k2b")
        st.flush("s87", 6)
        a.label(f"{name}_end")
        a("s_endpgm")
        a.label("k2_code_end")
    for lab, par, has_next in rare_blocks:
        a.label(lab)
        emit(fixmax(par, has_next, False))
        emit(softmax_ops(par))
        a("s_nop 1")
        a(f"s_branch {lab}_ret")
    if mg: a.label(f"{name}_exit")
    acc_off = (V.next + 3) // 4 * 4
    return dict(name=name, nv=acc_off + NA, acc_off=acc_off, grid=256, block=256, lds=131072)
```

```python
from asmb import *
from gemm_gen import GemmCfg
from gemm3 import GemmCore3
from k1v2_gen import Core4
from k1_gen import srd, f32, WS_Q, WS_K, WS_V, WS_Z, WS_G, WS_CNT, WS_PART, Z_KB, QSCALE
from k2_gen import RD, WAIT, resolve, flat, MF, BIAS, NEG
import codepf, math, os

STAMPS = bool(os.environ.get("STAMPS"))
WS_FLAG = WS_CNT
F_QKV, F_GU, F_CTX, F_EX = 0, 8192, 12288, 20480
FLAG_BYTES = 32768
WS_STAMP = 96 << 20
SPIN_MAX = 100000
ST = " sc1"
S_WAVE = 101
ATT_JOBS = [[14, 0], [13, 1], [12, 2], [11, 3], [10, 4], [9, 5], [8, 6], [15, 7]]

def stamp(a, idx):
    if not STAMPS: return
    a("s_memrealtime s[4:5]")
    a("s_load_dwordx2 s[6:7], s[0:1], 104")
    a("s_waitcnt lgkmcnt(0)")
    a(f"s_add_u32 s8, s6, {WS_STAMP}"); a("s_addc_u32 s9, s7, 0"); a("s_mov_b32 s10, 0x40000"); a("s_mov_b32 s11, 0x20000")
    a("s_lshl_b32 s6, s2, 8"); a(f"s_lshl_b32 s7, s{S_WAVE}, 6"); a("s_add_u32 s6, s6, s7"); a(f"s_add_u32 s6, s6, {idx*4}")
    a("v_mov_b32 v1, s6"); a("v_mov_b32 v2, s4")
    a("buffer_store_dword v2, v1, s[8:11], 0 offen")
    a("s_waitcnt vmcnt(0)")

def lane_id(a, v):
    a(f"v_mbcnt_lo_u32_b32 {vr(v)}, -1, 0")
    a(f"v_mbcnt_hi_u32_b32 {vr(v)}, -1, {vr(v)}")

def wait_flags(a, lab, sF, s_off, nlanes, x2, vlane, t0, sleep=8):
    a(f"v_lshlrev_b32 {vr(t0+2)}, {3 if x2 else 2}, {vr(vlane)}")
    a("s_mov_b32 s3, 0")
    a.label(lab)
    if x2: a(f"buffer_load_dwordx2 {vr(t0,2)}, {vr(t0+2)}, {sr(sF,4)}, {s_off} offen sc1")
    else: a(f"buffer_load_dword {vr(t0)}, {vr(t0+2)}, {sr(sF,4)}, {s_off} offen sc1")
    a("s_waitcnt vmcnt(0)")
    if x2: a(f"v_min_u32 {vr(t0)}, {vr(t0)}, {vr(t0+1)}")
    a(f"v_cmp_eq_u32 vcc, 0, {vr(t0)}")
    if nlanes < 64:
        a(f"s_mov_b32 s4, {((1 << nlanes) - 1) & 0xffffffff}"); a(f"s_mov_b32 s5, {((1 << nlanes) - 1) >> 32}")
        a("s_and_b64 vcc, vcc, s[4:5]")
    else:
        a("s_or_b64 vcc, vcc, vcc")
    a(f"s_cbranch_scc0 {lab}_ok")
    a(f"s_sleep {sleep}")
    a("s_add_u32 s3, s3, 1"); a(f"s_cmp_lt_u32 s3, {SPIN_MAX}")
    a(f"s_cbranch_scc1 {lab}")
    a.label(f"{lab}_ok")

def sig_regs(a, vsig, vone, vlane, tmp):
    a(f"v_bfrev_b32 {vr(tmp)}, 1")
    a(f"v_cmp_eq_u32 vcc, 0, {vr(vlane)}")
    a(f"v_mov_b32 {vr(vone)}, 1")
    a("s_nop 0")
    a(f"v_cndmask_b32 {vr(vsig)}, {vr(tmp)}, {vr(vlane)}, vcc")

def gen_k0(a, name="k0_kernel"):
    kernel_header(a, name)
    a("s_cmp_ge_u32 s2, 256"); a(f"s_cbranch_scc1 {name}_end")
    a("s_load_dwordx4 s[8:11], s[0:1], 0")
    a("s_load_dwordx2 s[28:29], s[0:1], 80")
    a("s_load_dwordx2 s[34:35], s[0:1], 104")
    a("v_and_b32 v1, 63, v0")
    a("v_lshrrev_b32 v2, 6, v0"); a("s_nop 0"); a("v_readfirstlane_b32 s36, v2"); a("s_nop 3")
    a("s_lshl_b32 s37, s2, 2"); a("s_add_u32 s37, s37, s36")
    a("s_waitcnt lgkmcnt(0)")
    srd(a, 12, 8, 9, 2048 * 2048); srd(a, 16, 28, 29, 2048); srd(a, 20, 34, 35, 8192, WS_G); srd(a, 24, 34, 35, FLAG_BYTES, WS_FLAG)
    srd(a, 40, 10, 11, 2048 * 1024)
    a("v_lshlrev_b32 v2, 5, v1")
    a("s_lshl_b32 s3, s37, 12"); a("v_add_u32 v3, s3, v2")
    a("buffer_load_dwordx4 v[8:11], v2, s[16:19], 0 offen"); a("buffer_load_dwordx4 v[12:15], v2, s[16:19], 0 offen offset:16")
    for t in range(2):
        a(f"buffer_load_dwordx4 v[{32+8*t}:{35+8*t}], v3, s[12:15], 0 offen offset:{t*2048}")
        a(f"buffer_load_dwordx4 v[{36+8*t}:{39+8*t}], v3, s[12:15], 0 offen offset:{t*2048+16}")
    a("v_lshlrev_b32 v4, 2, v1"); a("s_lshl_b32 s3, s37, 5"); a("v_add_u32 v4, s3, v4"); a("v_mov_b32 v5, 0")
    a("v_cmp_gt_u32 vcc, 8, v1"); a("s_and_saveexec_b64 s[38:39], vcc")
    a("buffer_store_dword v5, v4, s[24:27], 0 offen")
    a("s_mov_b64 exec, s[38:39]")
    a("v_lshlrev_b32 v4, 7, v1"); a("s_lshl_b32 s3, s37, 11"); a("v_add_u32 v4, s3, v4")
    a("v_cmp_gt_u32 vcc, 16, v1"); a("s_and_saveexec_b64 s[38:39], vcc")
    a("buffer_load_dword v50, v4, s[40:43], 0 offen")
    a("s_mov_b64 exec, s[38:39]")
    a("s_lshr_b32 s31, s2, 3"); a("s_lshl_b32 s31, s31, 2"); a("s_add_u32 s31, s31, s36")
    codepf.code_touch(a, "mega_kernel", "mega_code_end", 1, 4, 51, "s31", "k0a")
    a("s_waitcnt vmcnt(3)")
    for r in range(8):
        a(f"v_lshlrev_b32 v{16+2*r}, 16, v{8+r}"); a(f"v_and_b32 v{17+2*r}, 0xffff0000, v{8+r}")
    a("v_mov_b32 v6, 0")
    for t in range(2):
        for r in range(8):
            x = 32 + 8 * t + r
            a(f"v_lshlrev_b32 v5, 16, v{x}")
            a(f"v_mul_f32 v4, v5, v{16+2*r}" if r == 0 else f"v_fmac_f32 v4, v5, v{16+2*r}")
            a(f"v_and_b32 v5, 0xffff0000, v{x}"); a(f"v_fmac_f32 v4, v5, v{17+2*r}")
        for m in ("quad_perm:[1,0,3,2]", "quad_perm:[2,3,0,1]", "row_half_mirror", "row_mirror"):
            a("s_nop 1"); a(f"v_add_f32_dpp v4, v4, v4 {m} row_mask:0xf bank_mask:0xf")
        a("s_nop 1")
        for q in range(4): a(f"v_readlane_b32 s{4+q}, v4, {16*q}")
        a("s_nop 1")
        a("v_mov_b32 v5, s4"); a("v_add_f32 v5, s5, v5"); a("v_add_f32 v5, s6, v5"); a("v_add_f32 v5, s7, v5")
        a(f"v_cmp_eq_u32 vcc, {t}, v1"); a("s_nop 1"); a("v_cndmask_b32 v6, v6, v5, vcc")
    a(f"v_mul_f32 v6, {f32(-math.log2(math.e))}, v6")
    a("v_exp_f32 v6, v6"); a("s_nop 0"); a("v_add_f32 v6, 1.0, v6"); a("v_rcp_f32 v6, v6")
    a("s_lshl_b32 s3, s37, 1"); a("v_add_u32 v7, s3, v1"); a("v_lshlrev_b32 v7, 2, v7")
    a("v_cmp_gt_u32 vcc, 2, v1"); a("s_and_saveexec_b64 s[38:39], vcc")
    a("buffer_store_dword v6, v7, s[20:23], 0 offen")
    a.label(f"{name}_end"); a("s_endpgm")
    return dict(name=name, nv=56, acc_off=56, grid=256, block=256, lds=0)

def phase_g1(a, name="g1"):
    cfgN = GemmCfg(256, 256, 2, 2, native_a=False, swap=False, stages=2, ms=16)
    cfgS = GemmCfg(256, 256, 2, 2, native_a=False, swap=True, stages=2, ms=16)
    V = RegAlloc(0, 256, "v"); S = RegAlloc(36, 100, "s")
    vT = V.alloc("T", 16, 4)
    core = Core4(a, cfgN, V, S)
    vlane = V.alloc("lane"); vout = V.alloc("vout"); vc1 = V.alloc("c1", 2, 2)
    vpf = V.alloc("vpf"); vdum = V.alloc("vdum")
    A = RegAlloc(core.NA, 256, "a")
    vt = [vT + 4, vT + 5, vT + 6, vT + 7]
    s_wave = S_WAVE; s_wt = S.alloc("wt"); s_wn = S.alloc("wn")
    s_cur = S.alloc("cur"); s_nxt = S.alloc("nxt"); s_nx2 = S.alloc("nx2"); s_sig = S.alloc("sig")
    s_ab, s_lda, s_bb, s_ldw = 21, 26, 27, 30
    sO = S.alloc("srdO", 4, 4); sPF = S.alloc("srdPF", 4, 4); sF = S.alloc("srdF", 4, 4)
    s_pf2 = 20; s_c = 18
    a("s_load_dwordx16 s[8:23], s[0:1], 0")
    a("s_load_dwordx8 s[24:31], s[0:1], 64")
    a("s_load_dwordx4 s[32:35], s[0:1], 96")
    a(f"v_and_b32 {vr(vlane)}, 63, v0")
    a(f"v_lshrrev_b32 {vr(vt[0])}, 6, v0")
    a("s_nop 0")
    a(f"v_readfirstlane_b32 {sr(s_wave)}, {vr(vt[0])}")
    a("s_nop 3")
    a(f"s_lshr_b32 {sr(s_wt)}, {sr(s_wave)}, 1")
    a(f"s_and_b32 {sr(s_wn)}, {sr(s_wave)}, 1")
    a("s_and_b32 s3, s2, 7"); a("s_lshr_b32 s4, s2, 3")
    a("s_lshr_b32 s5, s4, 3"); a("s_and_b32 s6, s4, 7")
    a("s_lshl_b32 s7, s3, 1"); a(f"s_and_b32 {sr(s_cur)}, s5, 1"); a(f"s_add_u32 s7, s7, {sr(s_cur)}")
    a("s_lshl_b32 s7, s7, 3"); a("s_add_u32 s7, s7, s6"); a("s_add_u32 s7, s7, 0x400")
    a(f"s_mul_i32 {sr(s_nx2)}, s3, 28"); a(f"s_add_u32 {sr(s_nx2)}, {sr(s_nx2)}, s4"); a(f"s_add_u32 {sr(s_nx2)}, {sr(s_nx2)}, 0x700")
    a("s_cmp_lt_u32 s4, 28"); a(f"s_cselect_b32 {sr(s_nx2)}, {sr(s_nx2)}, 0")
    a("s_add_u32 s3, s7, 0x100"); a("s_add_u32 s4, s7, 0x200")
    a("s_cmp_lt_u32 s5, 2")
    a(f"s_cselect_b32 {sr(s_cur)}, s7, s3")
    a(f"s_cselect_b32 {sr(s_nxt)}, {sr(s_nx2)}, s4")
    a(f"s_cselect_b32 {sr(s_nx2)}, 0, {sr(s_nx2)}")
    a(f"s_brev_b32 {sr(s_sig)}, 1")
    c1 = -2.0 * math.sqrt(2.0 / math.pi) * math.log2(math.e); c2 = c1 * 0.044715
    uid = [0]
    def fields(code):
        a(f"s_bfe_u32 s5, {sr(code)}, 0x20008"); a(f"s_bfe_u32 s6, {sr(code)}, 0x50003")
    def decodeB(sB):
        uid[0] += 1; L = f"{name}_db{uid[0]}"
        a("s_cmp_eq_u32 s5, 3"); a(f"s_cbranch_scc1 {L}_gu")
        a(f"s_mov_b32 {sr(sB)}, s12"); a(f"s_mov_b32 {sr(sB+1)}, s13"); a(f"s_mov_b32 {sr(sB+2)}, {1024*8192}")
        a("s_cmp_eq_u32 s5, 1")
        a(f"s_cselect_b32 {sr(sB)}, s14, {sr(sB)}"); a(f"s_cselect_b32 {sr(sB+1)}, s15, {sr(sB+1)}")
        a(f"s_cselect_b32 {sr(sB+2)}, {512*8192}, {sr(sB+2)}")
        a("s_cmp_eq_u32 s5, 2")
        a(f"s_cselect_b32 {sr(sB)}, s16, {sr(sB)}"); a(f"s_cselect_b32 {sr(sB+1)}, s17, {sr(sB+1)}")
        a(f"s_cselect_b32 {sr(sB+2)}, {512*8192}, {sr(sB+2)}")
        a(f"s_mov_b32 {sr(s_ldw)}, 8192")
        a(f"s_lshl_b32 {sr(s_bb)}, s6, 9"); a(f"s_lshl_b32 s3, {sr(s_wave)}, 7"); a(f"s_add_u32 {sr(s_bb)}, {sr(s_bb)}, s3")
        a(f"s_branch {L}_src")
        a.label(f"{L}_gu")
        a(f"s_cmp_eq_u32 {sr(s_wn)}, 0")
        a(f"s_cselect_b32 {sr(sB)}, s22, s24"); a(f"s_cselect_b32 {sr(sB+1)}, s23, s25")
        a(f"s_mov_b32 {sr(sB+2)}, {1024*7168}")
        a(f"s_mov_b32 {sr(s_ldw)}, 7168")
        a(f"s_lshl_b32 {sr(s_bb)}, s6, 8"); a(f"s_lshl_b32 s3, {sr(s_wt)}, 7"); a(f"s_add_u32 {sr(s_bb)}, {sr(s_bb)}, s3")
        a.label(f"{L}_src")
        a(f"s_mov_b32 {sr(sB+3)}, 0x20000")
    def set_pf(code):
        fields(code); decodeB(sPF)
        a(f"s_cmp_eq_u32 {sr(code)}, 0"); a(f"s_cselect_b32 {sr(sPF+2)}, 0, {sr(sPF+2)}")
        a(f"v_lshrrev_b32 {vr(vpf)}, 3, {vr(vlane)}"); a(f"v_lshlrev_b32 {vr(vpf)}, 6, {vr(vpf)}")
        a(f"v_and_b32 {vr(vt[3])}, 7, {vr(vlane)}")
        a(f"s_and_b32 s3, {sr(code)}, 7"); a("s_lshl_b32 s3, s3, 3")
        a(f"v_add3_u32 {vr(vpf)}, {vr(vpf)}, {vr(vt[3])}, s3")
        a(f"v_mul_lo_u32 {vr(vpf)}, {vr(vpf)}, {sr(s_ldw)}")
        a(f"v_add_u32 {vr(vpf)}, {sr(s_bb)}, {vr(vpf)}")
        a(f"v_bfrev_b32 {vr(vt[3])}, 1")
        a(f"v_cmp_gt_u32 vcc, 16, {vr(vlane)}")
        a(f"s_lshl_b32 {sr(s_pf2)}, {sr(s_ldw)}, 7"); a("s_nop 0")
        a(f"v_cndmask_b32 {vr(vpf)}, {vr(vt[3])}, {vr(vpf)}, vcc")
    def touchW():
        return [f"buffer_load_dword {vr(vdum)}, {vr(vpf)}, {sr(sPF,4)}, 0 offen", f"v_add_u32 {vr(vpf)}, {sr(s_pf2)}, {vr(vpf)}"]
    def set_dma_params(code, always=False):
        uid[0] += 1; L = f"{name}_sp{uid[0]}"
        if not always:
            a(f"s_cmp_eq_u32 {sr(code)}, 0"); a(f"s_cbranch_scc0 {L}_valid")
            a(f"s_mov_b32 {sr(core.sA+2)}, 0"); a(f"s_mov_b32 {sr(core.sB+2)}, 0")
            a(f"s_branch {L}_done")
            a.label(f"{L}_valid")
        fields(code)
        a("s_sub_u32 s7, s5, 1"); a("s_cmp_lt_u32 s7, 2")
        a(f"s_cselect_b32 {sr(core.sA)}, s10, s8"); a(f"s_cselect_b32 {sr(core.sA+1)}, s11, s9")
        a(f"s_mov_b32 s7, {2048*512*2}"); a(f"s_cselect_b32 {sr(core.sA+2)}, s7, {2048*1024*2}")
        a(f"s_mov_b32 {sr(core.sA+3)}, 0x20000")
        a("s_mov_b32 s7, 1024"); a(f"s_cselect_b32 {sr(s_lda)}, s7, 2048")
        decodeB(core.sB)
        a(f"s_and_b32 s3, {sr(code)}, 7"); a("s_lshl_b32 s3, s3, 8")
        a(f"s_mul_i32 {sr(s_ab)}, s3, {sr(s_lda)}")
        core.setup_src(vlane, s_wave, s_ab, s_lda, s_bb, s_ldw, vt)
        a.label(f"{L}_done")
    def signal():
        return ["s_mov_b64 exec, 1",
                f"buffer_store_dword {vr(vc1)}, {vr(vlane)}, {sr(sF,4)}, {sr(s_sig)} offen sc1",
                "s_mov_b64 exec, -1"]
    a("s_waitcnt lgkmcnt(0)")
    set_dma_params(s_cur, True)
    core.setup_lane_consts(vlane, s_wave, s_wt, s_wn, vt)
    core.prologue_dma()
    a(f"v_mov_b32 {vr(vc1)}, {f32(c1)}"); a(f"v_mov_b32 {vr(vc1+1)}, {f32(c1)}")
    srd(a, sF, 34, 35, FLAG_BYTES, WS_FLAG)
    set_pf(s_cur)
    a(f"v_add_u32 {vr(vpf)}, {sr(s_pf2)}, {vr(vpf)}")
    a(touchW()); a(touchW())
    a(f"s_waitcnt vmcnt({cfgN.PB + 2})")
    a("s_barrier")
    a(core.xreads(0)); a(core.wreads(0, 0)); a(core.wreads(0, 1))
    a("s_waitcnt lgkmcnt(0)")
    a("s_barrier")
    a.label(f"{name}_tile")
    a(f"s_bfe_u32 s5, {sr(s_cur)}, 0x20008")
    a("s_sub_u32 s7, s5, 1"); a("s_cmp_lt_u32 s7, 2")
    a(f"s_cselect_b32 {sr(core.sLoop)}, 3, 7")
    a("s_cmp_eq_u32 s5, 2")
    a(f"s_cbranch_scc1 {name}_S_first")
    def body(var, cfg):
        core.c = cfg
        def trip(first):
            core.step3(0, True, True, True, True, 1, extra=touchW(), post=signal() if first else None)
            core.step3(1, True, True, True, True, 0)
        a.label(f"{name}_{var}_first")
        core.zero_first = True; core._hist = [(4, 0), (4, 0)]
        trip(True)
        core.zero_first = False
        a(f"s_branch {name}_{var}_ctl")
        a.label(f"{name}_{var}_loop")
        trip(False)
        a(f"s_sub_u32 {sr(core.sLoop)}, {sr(core.sLoop)}, 1")
        a.label(f"{name}_{var}_ctl")
        a(f"s_cmp_gt_u32 {sr(core.sLoop)}, 3"); a(f"s_cbranch_scc1 {name}_{var}_loop")
        a(f"s_cmp_eq_u32 {sr(core.sLoop)}, 2"); a(f"s_cbranch_scc1 {name}_{var}_loop")
        a(f"s_cmp_eq_u32 {sr(core.sLoop)}, 0"); a(f"s_cbranch_scc1 {name}_{var}_epi")
        a(f"s_cmp_eq_u32 {sr(core.sLoop)}, 1"); a(f"s_cbranch_scc1 {name}_{var}_sw")
        set_pf(s_nxt)
        a(f"s_branch {name}_{var}_loop")
        a.label(f"{name}_{var}_sw")
        set_dma_params(s_nxt)
        a(f"s_branch {name}_{var}_loop")
        a.label(f"{name}_{var}_epi")
        core.c = cfgN
    def src_regs(blocks, tmp):
        regs = []
        for n_, (i, j) in enumerate(blocks):
            for r in range(4):
                if core.in_v(i): regs.append(core.accidx(i, j, r))
                else:
                    a(f"v_accvgpr_read_b32 {vr(tmp + n_*4 + r)}, {ar(core.accidx(i, j, r))}")
                    regs.append(tmp + n_ * 4 + r)
        return regs
    def head_base():
        fields(s_cur)
        a("s_lshl_b32 s3, s6, 1"); a(f"s_add_u32 s3, s3, {sr(s_wn)}"); a("s_lshl_b32 s3, s3, 19")
        a(f"s_and_b32 s7, {sr(s_cur)}, 7"); a("s_lshl_b32 s4, s7, 16"); a("s_add_u32 s3, s3, s4")
        a(f"s_lshl_b32 s4, {sr(s_wt)}, 15"); a("s_add_u32 s3, s3, s4")
        a(f"v_lshlrev_b32 {vr(vout)}, 4, {vr(vlane)}"); a(f"v_add_u32 {vr(vout)}, s3, {vr(vout)}")
        a("s_lshl_b32 s4, s5, 24")
        a(f"s_add_u32 {sr(sO)}, s34, s4"); a(f"s_addc_u32 {sr(sO+1)}, s35, 0")
        a(f"s_mov_b32 {sr(sO+2)}, {16<<20}"); a(f"s_mov_b32 {sr(sO+3)}, 0x20000")
        a("s_lshl_b32 s3, s5, 3"); a("s_add_u32 s3, s3, s7"); a("s_lshl_b32 s3, s3, 2"); a(f"s_add_u32 s3, s3, {sr(s_wave)}"); a("s_lshl_b32 s3, s3, 2")
        a("s_lshl_b32 s4, s6, 9"); a(f"s_add_u32 {sr(s_sig)}, s3, s4")
    body("N", cfgN)
    a(f"s_bfe_u32 s5, {sr(s_cur)}, 0x20008")
    a("s_cmp_eq_u32 s5, 3"); a(f"s_cbranch_scc1 {name}_epi_gu")
    head_base()
    a("s_cmp_eq_u32 s5, 1"); a(f"s_cbranch_scc1 {name}_epi_k")
    def epi_qk(scale):
        cnt = 0
        if scale: a(f"s_mov_b32 {sr(s_c)}, {f32(QSCALE)}"); a(f"s_mov_b32 {sr(s_c+1)}, {f32(QSCALE)}")
        for u in range(4):
            for j in range(8):
                b = vT + (cnt % 2) * 4; cnt += 1
                R = src_regs([(2 * u, j), (2 * u + 1, j)], vT + 8)
                if scale:
                    for p in range(4): a(f"v_pk_mul_f32 {vr(R[2*p],2)}, {vr(R[2*p],2)}, {sr(s_c,2)}")
                for p in range(4): a(f"v_cvt_pk_bf16_f32 {vr(b+p)}, {vr(R[2*p])}, {vr(R[2*p+1])}")
                a(f"s_mov_b32 s3, {j*4096}")
                a(f"buffer_store_dwordx4 {vr(b,4)}, {vr(vout)}, {sr(sO,4)}, s3 offen offset:{u*1024}{ST}")
    epi_qk(True); a(f"s_branch {name}_next")
    a.label(f"{name}_epi_k"); epi_qk(False); a(f"s_branch {name}_next")
    a.label(f"{name}_epi_gu")
    fields(s_cur)
    a(f"s_and_b32 s7, {sr(s_cur)}, 7")
    a("s_lshl_b32 s3, s7, 4"); a(f"s_lshl_b32 s4, {sr(s_wt)}, 3"); a("s_add_u32 s3, s3, s4")
    a(f"s_mul_i32 s3, s3, {Z_KB*1024}")
    a("s_lshl_b32 s4, s6, 12"); a("s_add_u32 s3, s3, s4")
    a(f"s_lshl_b32 s4, {sr(s_wn)}, 11"); a("s_add_u32 s3, s3, s4")
    a(f"v_lshlrev_b32 {vr(vout)}, 4, {vr(vlane)}"); a(f"v_add_u32 {vr(vout)}, s3, {vr(vout)}")
    srd(a, sO, 34, 35, 128 * Z_KB * 1024, WS_Z)
    a("s_lshl_b32 s3, s6, 2"); a(f"s_add_u32 s3, s3, {sr(s_wave)}"); a("s_lshl_b32 s3, s3, 2")
    a("s_lshl_b32 s4, s7, 9"); a("s_add_u32 s3, s3, s4"); a(f"s_add_u32 {sr(s_sig)}, s3, {F_GU}")
    a(f"s_mov_b32 {sr(s_c)}, {f32(c2)}"); a(f"s_mov_b32 {sr(s_c+1)}, {f32(c2)}")
    cnt = 0
    for u in range(2):
        for j in range(8):
            b = vT + (cnt % 2) * 4; cnt += 1
            X = src_regs([(2 * u, j), (2 * u + 1, j)], None)
            E = vT + 8
            for p in range(4): a(f"v_pk_mul_f32 {vr(E+2*p,2)}, {vr(X[2*p],2)}, {vr(X[2*p],2)}")
            for p in range(4): a(f"v_pk_fma_f32 {vr(E+2*p,2)}, {vr(E+2*p,2)}, {sr(s_c,2)}, {vr(vc1,2)}")
            for p in range(4): a(f"v_pk_mul_f32 {vr(E+2*p,2)}, {vr(E+2*p,2)}, {vr(X[2*p],2)}")
            for e in range(8): a(f"v_exp_f32 {vr(E+e)}, {vr(E+e)}")
            for n_, ib in enumerate((4 + 2 * u, 5 + 2 * u)):
                if core.in_v(ib):
                    for p in range(2): a(f"v_pk_mul_f32 {vr(X[n_*4+2*p],2)}, {vr(X[n_*4+2*p],2)}, {vr(core.accidx(ib,j,2*p),2)}")
                else:
                    tmp = core.accidx(4 + 2 * u, j, 0)
                    for r in range(4): a(f"v_accvgpr_read_b32 {vr(tmp+r)}, {ar(core.accidx(ib,j,r))}")
                    for p in range(2): a(f"v_pk_mul_f32 {vr(X[n_*4+2*p],2)}, {vr(X[n_*4+2*p],2)}, {vr(tmp+2*p,2)}")
            for p in range(4): a(f"v_pk_add_f32 {vr(E+2*p,2)}, {vr(E+2*p,2)}, 1.0 op_sel_hi:[1,0]")
            for e in range(8): a(f"v_rcp_f32 {vr(E+e)}, {vr(E+e)}")
            a(f"s_mov_b32 s3, {j*Z_KB*1024}")
            for p in range(4): a(f"v_pk_mul_f32 {vr(X[2*p],2)}, {vr(X[2*p],2)}, {vr(E+2*p,2)}")
            for p in range(4): a(f"v_cvt_pk_bf16_f32 {vr(b+p)}, {vr(X[2*p])}, {vr(X[2*p+1])}")
            a(f"buffer_store_dwordx4 {vr(b,4)}, {vr(vout)}, {sr(sO,4)}, s3 offen offset:{u*1024}{ST}")
    a(f"s_branch {name}_next")
    body("S", cfgS)
    head_base()
    cnt = 0
    for i in range(8):
        for uu in range(4):
            b = vT + (cnt % 2) * 4; cnt += 1
            R = src_regs([(i, 2 * uu), (i, 2 * uu + 1)], vT + 8)
            for p in range(4): a(f"v_cvt_pk_bf16_f32 {vr(b+p)}, {vr(R[2*p])}, {vr(R[2*p+1])}")
            a(f"s_mov_b32 s3, {uu*8192 + (i//4)*4096}")
            a(f"buffer_store_dwordx4 {vr(b,4)}, {vr(vout)}, {sr(sO,4)}, s3 offen offset:{(i%4)*1024}{ST}")
    a.label(f"{name}_next")
    a(f"s_mov_b32 {sr(s_cur)}, {sr(s_nxt)}"); a(f"s_mov_b32 {sr(s_nxt)}, {sr(s_nx2)}"); a(f"s_mov_b32 {sr(s_nx2)}, 0")
    a(f"s_cmp_lg_u32 {sr(s_cur)}, 0"); a(f"s_cbranch_scc1 {name}_tile")
    a("s_waitcnt vmcnt(0) lgkmcnt(0)")
    a(signal())
    a("s_barrier")

def phase_g3(a, name="g3"):
    cfg = GemmCfg(128, 128, 2, 2, native_a=True, swap=False, stages=4, ms=16)
    V = RegAlloc(4, 256, "v"); S = RegAlloc(36, 100, "s")
    core = GemmCore3(a, cfg, V, S, False)
    accH = core.accbase; accA = V.alloc("acc2", 64, 4)
    vw = V.alloc("vw", 4, 2)
    vlane = V.alloc("lane"); vt = [V.alloc(f"t{i}") for i in range(4)]
    vout = V.alloc("vout"); vg = V.alloc("g", 4); vpart = V.alloc("vpart")
    vpa = V.alloc("vpa"); vpw = V.alloc("vpw"); vdum = V.alloc("vdum"); vflag = V.alloc("vflag"); vfa = V.alloc("vfa")
    s_wave = S_WAVE; s_wt = S.alloc("wt"); s_wn = S.alloc("wn")
    s_tm = S.alloc("tm"); s_tn = S.alloc("tn"); s_half = S.alloc("half")
    s_ab = S.alloc("ab"); s_lda = S.alloc("lda"); s_bb = S.alloc("bb"); s_ldw = S.alloc("ldw"); s_fo = S.alloc("fo"); s_pid = S.alloc("pid")
    s_dA = S.alloc("dA"); s_dB = S.alloc("dB")
    sO = S.alloc("srdO", 4, 4); sG = S.alloc("srdG", 4, 4); sP = S.alloc("srdP", 4, 4); sF = S.alloc("srdF", 4, 4); sBT = S.alloc("srdBT", 4, 4)
    PA, PB, SS = cfg.PA, cfg.PB, cfg.S
    a("s_load_dwordx16 s[8:23], s[0:1], 0")
    a("s_load_dwordx8 s[24:31], s[0:1], 64")
    a("s_load_dwordx4 s[32:35], s[0:1], 96")
    lane_id(a, vlane)
    a(f"s_lshr_b32 {sr(s_wt)}, {sr(s_wave)}, 1"); a(f"s_and_b32 {sr(s_wn)}, {sr(s_wave)}, 1")
    a(f"s_and_b32 {sr(s_half)}, s2, 1")
    a("s_lshr_b32 s4, s2, 3")
    a("s_bfe_u32 s5, s2, 0x10002"); a("s_lshl_b32 s5, s5, 3"); a("s_and_b32 s6, s4, 7"); a(f"s_add_u32 {sr(s_tm)}, s5, s6")
    a("s_bfe_u32 s5, s2, 0x10001"); a("s_lshl_b32 s5, s5, 2"); a("s_lshr_b32 s6, s4, 3"); a(f"s_add_u32 {sr(s_tn)}, s5, s6")
    a("s_waitcnt lgkmcnt(0)")
    srd(a, sF, 34, 35, FLAG_BYTES, WS_FLAG)
    a(f"s_lshr_b32 {sr(s_fo)}, {sr(s_tm)}, 1"); a(f"s_lshl_b32 {sr(s_fo)}, {sr(s_fo)}, 9"); a(f"s_add_u32 {sr(s_fo)}, {sr(s_fo)}, {F_GU}")
    wait_flags(a, f"{name}_w0", sF, sr(s_fo), 56, True, vlane, vw)
    srd(a, core.sA, 34, 35, 128 * Z_KB * 1024, WS_Z)
    srd(a, core.sB, 26, 27, 3584 * 2048); srd(a, sBT, 26, 27, 3584 * 2048)
    a(f"s_mov_b32 {sr(s_lda)}, {Z_KB*1024}"); a(f"s_mov_b32 {sr(s_ldw)}, 2048")
    a(f"s_mul_i32 {sr(s_ab)}, {sr(s_tm)}, {8*Z_KB*1024}")
    a(f"s_mul_i32 s3, {sr(s_half)}, {28*2048}"); a(f"s_add_u32 {sr(s_ab)}, {sr(s_ab)}, s3")
    a(f"s_mul_i32 s5, {sr(s_half)}, {28*64*2048}")
    a(f"s_lshl_b32 s6, {sr(s_tn)}, 8"); a("s_add_u32 s7, s5, s6")
    a(f"s_lshl_b32 s3, {sr(s_wt)}, 7"); a(f"s_add_u32 {sr(s_bb)}, s7, s3")
    core.setup_src(vlane, s_wave, s_ab, s_lda, s_bb, s_ldw, vt)
    core.setup_lane_consts(vlane, s_wave, s_wt, s_wn, vt)
    core.prologue_dma()
    a(f"s_mul_i32 {sr(s_dA)}, {sr(s_half)}, {4*2048}"); a(f"s_add_u32 {sr(s_dA)}, {sr(s_dA)}, {112*1024 - 28*2048}")
    a(f"s_mul_i32 {sr(s_dB)}, {sr(s_half)}, {4*64*2048}"); a(f"s_sub_u32 {sr(s_dB)}, {sr(s_dB)}, {28*64*2048}")
    srd(a, sO, 30, 31, 2048 * 1024 * 2); srd(a, sG, 34, 35, 8192, WS_G); srd(a, sP, 34, 35, 128 * 65536, WS_PART)
    a(f"s_and_b32 s3, {sr(s_tn)}, 3"); a("s_lshl_b32 s3, s3, 1"); a(f"s_add_u32 s3, s3, {sr(s_wt)}")
    a(f"s_mul_i32 s3, s3, {sr(s_lda)}"); a(f"s_add_u32 s3, s3, {sr(s_ab)}")
    a(f"s_lshl_b32 s4, {sr(s_wn)}, 12"); a("s_add_u32 s3, s3, s4")
    a(f"v_lshlrev_b32 {vr(vpa)}, 7, {vr(vlane)}"); a(f"v_add_u32 {vr(vpa)}, s3, {vr(vpa)}")
    a(f"v_bfrev_b32 {vr(vt[3])}, 1")
    a(f"v_cmp_gt_u32 vcc, 32, {vr(vlane)}"); a("s_nop 1")
    a(f"v_cndmask_b32 {vr(vpa)}, {vr(vt[3])}, {vr(vpa)}, vcc")
    a(f"s_and_b32 s3, {sr(s_tm)}, 7"); a("s_lshl_b32 s3, s3, 3"); a(f"s_lshl_b32 s4, {sr(s_wave)}, 6"); a("s_add_u32 s3, s3, s4")
    a(f"v_lshrrev_b32 {vr(vpw)}, 1, {vr(vlane)}"); a(f"v_add_u32 {vr(vpw)}, s3, {vr(vpw)}")
    a(f"v_lshlrev_b32 {vr(vpw)}, 11, {vr(vpw)}")
    a(f"v_and_b32 {vr(vt[2])}, 1, {vr(vlane)}"); a(f"v_lshl_add_u32 {vr(vpw)}, {vr(vt[2])}, 7, {vr(vpw)}")
    a(f"v_add_u32 {vr(vpw)}, s7, {vr(vpw)}")
    a(f"v_cmp_gt_u32 vcc, 16, {vr(vlane)}"); a("s_nop 1")
    a(f"v_cndmask_b32 {vr(vpw)}, {vr(vt[3])}, {vr(vpw)}, vcc")
    tA = [f"buffer_load_dword {vr(vdum)}, {vr(vpa)}, {sr(core.sA,4)}, 0 offen", f"v_add_u32 {vr(vpa)}, 0x2000, {vr(vpa)}"]
    tW = [f"buffer_load_dword {vr(vdum)}, {vr(vpw)}, {sr(sBT,4)}, 0 offen", f"v_add_u32 {vr(vpw)}, {4*64*2048}, {vr(vpw)}"]
    a(tA[1]); a(tW[1]); a(tA); a(tW)
    a(f"s_lshl_b32 {sr(s_fo)}, {sr(s_tm)}, 1"); a(f"s_add_u32 {sr(s_fo)}, {sr(s_fo)}, {sr(s_half)}"); a(f"s_lshl_b32 {sr(s_fo)}, {sr(s_fo)}, 8")
    a(f"s_add_u32 {sr(s_fo)}, {sr(s_fo)}, {F_CTX}")
    a(f"v_lshlrev_b32 {vr(vfa)}, 2, {vr(vlane)}")
    tF = [f"buffer_load_dword {vr(vflag)}, {vr(vfa)}, {sr(sF,4)}, {sr(s_fo)} offen sc1"]
    a(f"s_lshl_b32 s3, {sr(s_tm)}, 7"); a(f"s_lshl_b32 s4, {sr(s_wt)}, 6"); a("s_add_u32 s3, s3, s4")
    a(f"v_and_b32 {vr(vt[0])}, 15, {vr(vlane)}"); a(f"v_add_u32 {vr(vt[0])}, s3, {vr(vt[0])}")
    a(f"v_lshlrev_b32 {vr(vt[1])}, 2, {vr(vt[0])}")
    for j in range(4): a(f"buffer_load_dword {vr(vg+j)}, {vr(vt[1])}, {sr(sG,4)}, 0 offen offset:{j*64}")
    a(f"v_lshlrev_b32 {vr(vout)}, 11, {vr(vt[0])}")
    a(f"v_lshrrev_b32 {vr(vt[2])}, 4, {vr(vlane)}")
    a(f"v_lshl_add_u32 {vr(vout)}, {vr(vt[2])}, 3, {vr(vout)}")
    a(f"s_lshl_b32 s3, {sr(s_tn)}, 8"); a(f"s_lshl_b32 s4, {sr(s_wn)}, 7"); a("s_add_u32 s3, s3, s4")
    a(f"v_add_u32 {vr(vout)}, s3, {vr(vout)}")
    a(f"s_lshl_b32 s3, {sr(s_tm)}, 3"); a(f"s_add_u32 s3, s3, {sr(s_tn)}"); a("s_lshl_b32 s3, s3, 2"); a(f"s_add_u32 {sr(s_pid)}, s3, {sr(s_wave)}")
    a(f"s_lshl_b32 s3, {sr(s_pid)}, 14"); a(f"s_lshl_b32 s4, {sr(s_half)}, 13"); a("s_add_u32 s3, s3, s4")
    a(f"v_lshlrev_b32 {vr(vpart)}, 4, {vr(vlane)}"); a(f"v_add_u32 {vr(vpart)}, s3, {vr(vpart)}")
    core.accbase = accH; core.zero_acc(); core.accbase = accA; core.zero_acc()
    a(f"s_waitcnt vmcnt({(SS-2)*(PA+PB) + PB + 6})")
    a("s_barrier")
    a(core.xreads(0)); a(core.wreads(0, 0)); a(core.wreads(0, 1))
    a("s_waitcnt lgkmcnt(0)")
    a("s_barrier")
    core._hist = [(4, 0), (4, 0)]
    def trip(extras):
        cnt = {t: sum(1 for x in e if x.startswith("buffer_")) for t, e in extras.items()}
        for t in range(4):
            nx = sum(cnt.get(u % 4, 0) for u in range(t + 2 - SS, t + 1))
            core.step3(t, True, True, True, True, (SS - 2) * (PA + PB) + nx, extra=extras.get(t))
    core.accbase = accH
    a(f"s_mov_b32 {sr(core.sLoop)}, 7")
    a.label(f"{name}_l1")
    trip({0: tA + tF, 2: tW})
    a(f"s_sub_u32 {sr(core.sLoop)}, {sr(core.sLoop)}, 1")
    a(f"s_cmp_gt_u32 {sr(core.sLoop)}, 2"); a(f"s_cbranch_scc1 {name}_l1")
    a(f"s_cmp_eq_u32 {sr(core.sLoop)}, 0"); a(f"s_cbranch_scc1 {name}_l2s")
    a(f"s_cmp_eq_u32 {sr(core.sLoop)}, 1"); a(f"s_cbranch_scc1 {name}_swd")
    a(f"v_cmp_eq_u32 vcc, 0, {vr(vflag)}")
    a(f"s_cbranch_vccz {name}_w1_ok")
    wait_flags(a, f"{name}_w1", sF, sr(s_fo), 64, False, vlane, vw)
    a(f"v_add_u32 {vr(vpa)}, {sr(s_dA)}, {vr(vpa)}"); a(f"v_add_u32 {vr(vpw)}, {sr(s_dB)}, {vr(vpw)}")
    srd(a, sBT, 18, 19, 4096 * 2048)
    a(f"s_branch {name}_l1")
    a.label(f"{name}_swd")
    a(f"v_add_u32 {vr(core.vAsrc[0])}, {sr(s_dA)}, {vr(core.vAsrc[0])}"); a(f"v_add_u32 {vr(core.vBsrc[0])}, {sr(s_dB)}, {vr(core.vBsrc[0])}")
    srd(a, core.sB, 18, 19, 4096 * 2048)
    a(f"s_branch {name}_l1")
    a.label(f"{name}_l2s")
    core.accbase = accA
    a(f"s_mov_b32 {sr(core.sLoop)}, 6")
    a.label(f"{name}_l2")
    trip({0: tA, 2: tW})
    a(f"s_sub_u32 {sr(core.sLoop)}, {sr(core.sLoop)}, 1")
    a(f"s_cmp_lg_u32 {sr(core.sLoop)}, 0"); a(f"s_cbranch_scc1 {name}_l2")
    core.tail()
    stamp(a, 4)
    a("s_nop 7")
    a("s_mov_b32 s6, 4096")
    R = core.xf[0][0][0]; W = core.wf[0][0]
    def comb(blk):
        o = blk * 4; j = blk % 4
        for r in range(4): a(f"v_sub_f32 {vr(accA+o+r)}, {vr(accA+o+r)}, {vr(accH+o+r)}")
        for r in range(4): a(f"v_fma_f32 {vr(accA+o+r)}, {vr(accA+o+r)}, {vr(vg+j)}, {vr(accH+o+r)}")
    def fin(h):
        for k in range(8):
            blk = (1 - h) * 8 + k
            comb(blk)
            a(f"buffer_store_dwordx4 {vr(accA+4*blk,4)}, {vr(vpart)}, {sr(sP,4)}, {'0' if k < 4 else 's6'} offen offset:{(k%4)*1024} sc1")
        a(f"s_lshl_b32 s3, {sr(s_pid)}, 3"); a(f"s_add_u32 {sr(s_fo)}, s3, {F_EX + 4*h}")
        for k in range(8): comb(h * 8 + k)
        a("s_waitcnt vmcnt(0)")
        a("s_mov_b64 exec, 1"); a(f"buffer_store_dword {vr(vt[3])}, {vr(vlane)}, {sr(sF,4)}, {sr(s_fo)} offen sc1"); a("s_mov_b64 exec, -1")
        a(f"s_xor_b32 {sr(s_fo)}, {sr(s_fo)}, 4")
        wait_flags(a, f"{name}_wx{h}", sF, sr(s_fo), 1, False, vlane, vw, sleep=1)
        a(f"v_xor_b32 {vr(vpart)}, 0x2000, {vr(vpart)}")
        for k in range(8):
            a(f"buffer_load_dwordx4 {vr(R+4*k,4)}, {vr(vpart)}, {sr(sP,4)}, {'0' if k < 4 else 's6'} offen offset:{(k%4)*1024} sc1")
        for k in range(8):
            blk = h * 8 + k; i, j = blk // 4, blk % 4
            a("s_waitcnt vmcnt(7)")
            b = W + (k % 4) * 8
            for r in range(4): a(f"v_add_f32 {vr(b+2+r)}, {vr(accA+4*blk+r)}, {vr(R+4*k+r)}")
            a(f"v_cvt_pk_bf16_f32 {vr(b)}, {vr(b+2)}, {vr(b+3)}"); a(f"v_cvt_pk_bf16_f32 {vr(b+1)}, {vr(b+4)}, {vr(b+5)}")
            a(f"s_mov_b32 s3, {j*16*2048}")
            a(f"buffer_store_dwordx2 {vr(b,2)}, {vr(vout)}, {sr(sO,4)}, s3 offen offset:{i*32}")
    a(f"s_cmp_lg_u32 {sr(s_half)}, 0"); a(f"s_cbranch_scc1 {name}_fin1")
    fin(0); a(f"s_branch {name}_end")
    a.label(f"{name}_fin1"); fin(1)
    a.label(f"{name}_end")

def gen_mega(a, name="mega_kernel"):
    import sys
    from k2_gen import gen_k2
    mg = sys.modules[__name__]
    kernel_header(a, name)
    a("s_cmp_ge_u32 s2, 256"); a(f"s_cbranch_scc1 {name}_end")
    if STAMPS:
        a("v_lshrrev_b32 v1, 6, v0"); a("s_nop 0"); a(f"v_readfirstlane_b32 s{S_WAVE}, v1"); a("s_nop 3")
        stamp(a, 0)
    phase_g1(a)
    stamp(a, 1)
    gen_k2(a, "a2", mg=mg)
    stamp(a, 2)
    phase_g3(a)
    stamp(a, 5)
    a.label(f"{name}_end"); a("s_endpgm")
    a.label("mega_code_end")
    return dict(name=name, nv=512, acc_off=256, grid=256, block=256, lds=131072)

if __name__ == "__main__":
    import sys
    from gen_all import HEADER
    body = Asm()
    infos = [gen_k0(body), gen_mega(body)]
    out = HEADER
    for i in infos: out += f"; @launch kernel={i['name']} grid=({i['grid']},1,1) block=({i['block']},1,1) lds={i['lds']}\n"
    out += '.amdgcn_target "amdgcn-amd-amdhsa--gfx950"\n' + body.text()
    d = Asm()
    for i in infos: kernel_desc(d, i["name"], i["nv"], i["acc_off"])
    open(sys.argv[1], "w").write(out + d.text())
```

```python
from asmb import *
from gemm_gen import GemmCfg
from gemm3 import GemmCore3
from k1v2_gen import Core4
from k1_gen import srd, f32, WS_Q, WS_K, WS_V, WS_Z, WS_G, WS_CNT, WS_PART, Z_KB, QSCALE
from k2_gen import RD, WAIT, resolve, flat, MF, BIAS, NEG
import codepf, math, os, struct
KNAME = "gated_mix__compressed_kv_cla__geglu_ffn__prompt_kernel"

STAMPS = bool(os.environ.get("STAMPS"))
WS_FLAG = WS_CNT
F_QKV, F_GU, F_CTX, F_EX = 0, 8192, 12288, 20480
FLAG_BYTES = 32768
WS_STAMP = 96 << 20
SPIN_MAX = 100000
ST = " sc1"
S_WAVE = 101
ATT_JOBS = [[14, 0], [13, 1], [12, 2], [11, 3], [10, 4], [9, 5], [8, 6], [15, 7]]

def stamp(a, idx):
    if not STAMPS: return
    a("s_memrealtime s[4:5]")
    a("s_load_dwordx2 s[6:7], s[0:1], 104")
    a("s_waitcnt lgkmcnt(0)")
    a(f"s_add_u32 s8, s6, {WS_STAMP}"); a("s_addc_u32 s9, s7, 0"); a("s_mov_b32 s10, 0x40000"); a("s_mov_b32 s11, 0x20000")
    a("s_lshl_b32 s6, s2, 8"); a(f"s_lshl_b32 s7, s{S_WAVE}, 6"); a("s_add_u32 s6, s6, s7"); a(f"s_add_u32 s6, s6, {idx*4}")
    a("v_mov_b32 v1, s6"); a("v_mov_b32 v2, s4")
    a("buffer_store_dword v2, v1, s[8:11], 0 offen")
    a("s_waitcnt vmcnt(0)")

def lane_id(a, v):
    a(f"v_mbcnt_lo_u32_b32 {vr(v)}, -1, 0")
    a(f"v_mbcnt_hi_u32_b32 {vr(v)}, -1, {vr(v)}")

def wait_flags(a, lab, sF, s_off, nlanes, x2, vlane, t0, sleep=8):
    a(f"v_lshlrev_b32 {vr(t0+2)}, {3 if x2 else 2}, {vr(vlane)}")
    a("s_mov_b32 s3, 0")
    a.label(lab)
    if x2: a(f"buffer_load_dwordx2 {vr(t0,2)}, {vr(t0+2)}, {sr(sF,4)}, {s_off} offen sc1")
    else: a(f"buffer_load_dword {vr(t0)}, {vr(t0+2)}, {sr(sF,4)}, {s_off} offen sc1")
    a("s_waitcnt vmcnt(0)")
    if x2: a(f"v_min_u32 {vr(t0)}, {vr(t0)}, {vr(t0+1)}")
    a(f"v_cmp_eq_u32 vcc, 0, {vr(t0)}")
    if nlanes < 64:
        a(f"s_mov_b32 s4, {((1 << nlanes) - 1) & 0xffffffff}"); a(f"s_mov_b32 s5, {((1 << nlanes) - 1) >> 32}")
        a("s_and_b64 vcc, vcc, s[4:5]")
    else:
        a("s_or_b64 vcc, vcc, vcc")
    a(f"s_cbranch_scc0 {lab}_ok")
    a(f"s_sleep {sleep}")
    a("s_add_u32 s3, s3, 1"); a(f"s_cmp_lt_u32 s3, {SPIN_MAX}")
    a(f"s_cbranch_scc1 {lab}")
    a.label(f"{lab}_ok")

def sig_regs(a, vsig, vone, vlane, tmp):
    a(f"v_bfrev_b32 {vr(tmp)}, 1")
    a(f"v_cmp_eq_u32 vcc, 0, {vr(vlane)}")
    a(f"v_mov_b32 {vr(vone)}, 1")
    a("s_nop 0")
    a(f"v_cndmask_b32 {vr(vsig)}, {vr(tmp)}, {vr(vlane)}, vcc")

def gen_k0(a, name="k0_kernel"):
    kernel_header(a, name)
    a("s_cmp_ge_u32 s2, 256"); a(f"s_cbranch_scc1 {name}_end")
    a("s_load_dwordx4 s[8:11], s[0:1], 0")
    a("s_load_dwordx2 s[28:29], s[0:1], 80")
    a("s_load_dwordx2 s[34:35], s[0:1], 104")
    a("v_and_b32 v1, 63, v0")
    a("v_lshrrev_b32 v2, 6, v0"); a("s_nop 0"); a("v_readfirstlane_b32 s36, v2"); a("s_nop 3")
    a("s_lshl_b32 s37, s2, 2"); a("s_add_u32 s37, s37, s36")
    a("s_waitcnt lgkmcnt(0)")
    srd(a, 12, 8, 9, 2048 * 2048); srd(a, 16, 28, 29, 2048); srd(a, 20, 34, 35, 8192, WS_G); srd(a, 24, 34, 35, FLAG_BYTES, WS_FLAG)
    srd(a, 40, 10, 11, 2048 * 1024)
    a("v_lshlrev_b32 v2, 5, v1")
    a("s_lshl_b32 s3, s37, 12"); a("v_add_u32 v3, s3, v2")
    a("buffer_load_dwordx4 v[8:11], v2, s[16:19], 0 offen"); a("buffer_load_dwordx4 v[12:15], v2, s[16:19], 0 offen offset:16")
    for t in range(2):
        a(f"buffer_load_dwordx4 v[{32+8*t}:{35+8*t}], v3, s[12:15], 0 offen offset:{t*2048}")
        a(f"buffer_load_dwordx4 v[{36+8*t}:{39+8*t}], v3, s[12:15], 0 offen offset:{t*2048+16}")
    a("v_lshlrev_b32 v4, 2, v1"); a("s_lshl_b32 s3, s37, 5"); a("v_add_u32 v4, s3, v4"); a("v_mov_b32 v5, 0")
    a("v_cmp_gt_u32 vcc, 8, v1"); a("s_and_saveexec_b64 s[38:39], vcc")
    a("buffer_store_dword v5, v4, s[24:27], 0 offen")
    a("s_mov_b64 exec, s[38:39]")
    a("v_lshlrev_b32 v4, 7, v1"); a("s_lshl_b32 s3, s37, 11"); a("v_add_u32 v4, s3, v4")
    a("v_cmp_gt_u32 vcc, 16, v1"); a("s_and_saveexec_b64 s[38:39], vcc")
    a("buffer_load_dword v50, v4, s[40:43], 0 offen")
    a("s_mov_b64 exec, s[38:39]")
    a("s_lshr_b32 s31, s2, 3"); a("s_lshl_b32 s31, s31, 2"); a("s_add_u32 s31, s31, s36")
    codepf.code_touch(a, "mega_kernel", "mega_code_end", 1, 4, 51, "s31", "k0a")
    a("s_waitcnt vmcnt(3)")
    for r in range(8):
        a(f"v_lshlrev_b32 v{16+2*r}, 16, v{8+r}"); a(f"v_and_b32 v{17+2*r}, 0xffff0000, v{8+r}")
    a("v_mov_b32 v6, 0")
    for t in range(2):
        for r in range(8):
            x = 32 + 8 * t + r
            a(f"v_lshlrev_b32 v5, 16, v{x}")
            a(f"v_mul_f32 v4, v5, v{16+2*r}" if r == 0 else f"v_fmac_f32 v4, v5, v{16+2*r}")
            a(f"v_and_b32 v5, 0xffff0000, v{x}"); a(f"v_fmac_f32 v4, v5, v{17+2*r}")
        for m in ("quad_perm:[1,0,3,2]", "quad_perm:[2,3,0,1]", "row_half_mirror", "row_mirror"):
            a("s_nop 1"); a(f"v_add_f32_dpp v4, v4, v4 {m} row_mask:0xf bank_mask:0xf")
        a("s_nop 1")
        for q in range(4): a(f"v_readlane_b32 s{4+q}, v4, {16*q}")
        a("s_nop 1")
        a("v_mov_b32 v5, s4"); a("v_add_f32 v5, s5, v5"); a("v_add_f32 v5, s6, v5"); a("v_add_f32 v5, s7, v5")
        a(f"v_cmp_eq_u32 vcc, {t}, v1"); a("s_nop 1"); a("v_cndmask_b32 v6, v6, v5, vcc")
    a(f"v_mul_f32 v6, {f32(-math.log2(math.e))}, v6")
    a("v_exp_f32 v6, v6"); a("s_nop 0"); a("v_add_f32 v6, 1.0, v6"); a("v_rcp_f32 v6, v6")
    a("s_lshl_b32 s3, s37, 1"); a("v_add_u32 v7, s3, v1"); a("v_lshlrev_b32 v7, 2, v7")
    a("v_cmp_gt_u32 vcc, 2, v1"); a("s_and_saveexec_b64 s[38:39], vcc")
    a("buffer_store_dword v6, v7, s[20:23], 0 offen")
    a.label(f"{name}_end"); a("s_endpgm")
    return dict(name=name, nv=56, acc_off=56, grid=256, block=256, lds=0)

def phase_g1(a, name="g1"):
    cfgN = GemmCfg(256, 256, 2, 2, native_a=False, swap=False, stages=2, ms=16)
    cfgS = GemmCfg(256, 256, 2, 2, native_a=False, swap=True, stages=2, ms=16)
    V = RegAlloc(0, 256, "v"); S = RegAlloc(36, 100, "s")
    vT = V.alloc("T", 16, 4)
    core = Core4(a, cfgN, V, S)
    vlane = V.alloc("lane"); vout = V.alloc("vout"); vc1 = V.alloc("c1", 2, 2)
    vpf = V.alloc("vpf"); vdum = V.alloc("vdum")
    A = RegAlloc(core.NA, 256, "a")
    vt = [vT + 4, vT + 5, vT + 6, vT + 7]
    s_wave = S_WAVE; s_wt = S.alloc("wt"); s_wn = S.alloc("wn")
    s_cur = S.alloc("cur"); s_nxt = S.alloc("nxt"); s_nx2 = S.alloc("nx2"); s_sig = S.alloc("sig")
    s_ab, s_lda, s_bb, s_ldw = 21, 26, 27, 30
    sO = S.alloc("srdO", 4, 4); sPF = S.alloc("srdPF", 4, 4); sF = S.alloc("srdF", 4, 4)
    s_pf2 = 20; s_c = 18
    sD = S.alloc("srdD", 4, 4); s_ok = S.alloc("initok"); s_dw = S.alloc("dbgw")
    aI = A.alloc("init")
    a("s_load_dwordx16 s[8:23], s[0:1], 0")
    a("s_load_dwordx8 s[24:31], s[0:1], 64")
    a("s_load_dwordx4 s[32:35], s[0:1], 96")
    a(f"v_and_b32 {vr(vlane)}, 63, v0")
    a(f"v_lshrrev_b32 {vr(vt[0])}, 6, v0")
    a("s_nop 0")
    a(f"v_readfirstlane_b32 {sr(s_wave)}, {vr(vt[0])}")
    a("s_nop 3")
    a(f"s_lshr_b32 {sr(s_wt)}, {sr(s_wave)}, 1")
    a(f"s_and_b32 {sr(s_wn)}, {sr(s_wave)}, 1")
    a("s_and_b32 s3, s2, 7"); a("s_lshr_b32 s4, s2, 3")
    a("s_lshr_b32 s5, s4, 3"); a("s_and_b32 s6, s4, 7")
    a("s_lshl_b32 s7, s3, 1"); a(f"s_and_b32 {sr(s_cur)}, s5, 1"); a(f"s_add_u32 s7, s7, {sr(s_cur)}")
    a("s_lshl_b32 s7, s7, 3"); a("s_add_u32 s7, s7, s6"); a("s_add_u32 s7, s7, 0x400")
    a(f"s_mul_i32 {sr(s_nx2)}, s3, 28"); a(f"s_add_u32 {sr(s_nx2)}, {sr(s_nx2)}, s4"); a(f"s_add_u32 {sr(s_nx2)}, {sr(s_nx2)}, 0x700")
    a("s_cmp_lt_u32 s4, 28"); a(f"s_cselect_b32 {sr(s_nx2)}, {sr(s_nx2)}, 0")
    a("s_add_u32 s3, s7, 0x100"); a("s_add_u32 s4, s7, 0x200")
    a("s_cmp_lt_u32 s5, 2")
    a(f"s_cselect_b32 {sr(s_cur)}, s7, s3")
    a(f"s_cselect_b32 {sr(s_nxt)}, {sr(s_nx2)}, s4")
    a(f"s_cselect_b32 {sr(s_nx2)}, 0, {sr(s_nx2)}")
    a(f"s_brev_b32 {sr(s_sig)}, 1")
    c1 = -2.0 * math.sqrt(2.0 / math.pi) * math.log2(math.e); c2 = c1 * 0.044715
    uid = [0]
    def fields(code):
        a(f"s_bfe_u32 s5, {sr(code)}, 0x20008"); a(f"s_bfe_u32 s6, {sr(code)}, 0x50003")
    def decodeB(sB):
        uid[0] += 1; L = f"{name}_db{uid[0]}"
        a("s_cmp_eq_u32 s5, 3"); a(f"s_cbranch_scc1 {L}_gu")
        a(f"s_mov_b32 {sr(sB)}, s12"); a(f"s_mov_b32 {sr(sB+1)}, s13"); a(f"s_mov_b32 {sr(sB+2)}, {1024*8192}")
        a("s_cmp_eq_u32 s5, 1")
        a(f"s_cselect_b32 {sr(sB)}, s14, {sr(sB)}"); a(f"s_cselect_b32 {sr(sB+1)}, s15, {sr(sB+1)}")
        a(f"s_cselect_b32 {sr(sB+2)}, {512*8192}, {sr(sB+2)}")
        a("s_cmp_eq_u32 s5, 2")
        a(f"s_cselect_b32 {sr(sB)}, s16, {sr(sB)}"); a(f"s_cselect_b32 {sr(sB+1)}, s17, {sr(sB+1)}")
        a(f"s_cselect_b32 {sr(sB+2)}, {512*8192}, {sr(sB+2)}")
        a(f"s_mov_b32 {sr(s_ldw)}, 8192")
        a(f"s_lshl_b32 {sr(s_bb)}, s6, 9"); a(f"s_lshl_b32 s3, {sr(s_wave)}, 7"); a(f"s_add_u32 {sr(s_bb)}, {sr(s_bb)}, s3")
        a(f"s_branch {L}_src")
        a.label(f"{L}_gu")
        a(f"s_cmp_eq_u32 {sr(s_wn)}, 0")
        a(f"s_cselect_b32 {sr(sB)}, s22, s24"); a(f"s_cselect_b32 {sr(sB+1)}, s23, s25")
        a(f"s_mov_b32 {sr(sB+2)}, {1024*7168}")
        a(f"s_mov_b32 {sr(s_ldw)}, 7168")
        a(f"s_lshl_b32 {sr(s_bb)}, s6, 8"); a(f"s_lshl_b32 s3, {sr(s_wt)}, 7"); a(f"s_add_u32 {sr(s_bb)}, {sr(s_bb)}, s3")
        a.label(f"{L}_src")
        a(f"s_mov_b32 {sr(sB+3)}, 0x20000")
    def set_pf(code):
        fields(code); decodeB(sPF)
        a(f"s_cmp_eq_u32 {sr(code)}, 0"); a(f"s_cselect_b32 {sr(sPF+2)}, 0, {sr(sPF+2)}")
        a(f"v_lshrrev_b32 {vr(vpf)}, 3, {vr(vlane)}"); a(f"v_lshlrev_b32 {vr(vpf)}, 6, {vr(vpf)}")
        a(f"v_and_b32 {vr(vt[3])}, 7, {vr(vlane)}")
        a(f"s_and_b32 s3, {sr(code)}, 7"); a("s_lshl_b32 s3, s3, 3")
        a(f"v_add3_u32 {vr(vpf)}, {vr(vpf)}, {vr(vt[3])}, s3")
        a(f"v_mul_lo_u32 {vr(vpf)}, {vr(vpf)}, {sr(s_ldw)}")
        a(f"v_add_u32 {vr(vpf)}, {sr(s_bb)}, {vr(vpf)}")
        a(f"v_bfrev_b32 {vr(vt[3])}, 1")
        a(f"v_cmp_gt_u32 vcc, 16, {vr(vlane)}")
        a(f"s_lshl_b32 {sr(s_pf2)}, {sr(s_ldw)}, 7"); a("s_nop 0")
        a(f"v_cndmask_b32 {vr(vpf)}, {vr(vt[3])}, {vr(vpf)}, vcc")
    def touchW():
        return [f"buffer_load_dword {vr(vdum)}, {vr(vpf)}, {sr(sPF,4)}, 0 offen", f"v_add_u32 {vr(vpf)}, {sr(s_pf2)}, {vr(vpf)}"]
    def initload():
        return [f"buffer_load_dword {ar(aI)}, {vr(vout)}, {sr(sD,4)}, 0 offen sc1"]
    def set_dma_params(code, always=False):
        uid[0] += 1; L = f"{name}_sp{uid[0]}"
        if not always:
            a(f"s_cmp_eq_u32 {sr(code)}, 0"); a(f"s_cbranch_scc0 {L}_valid")
            a(f"s_mov_b32 {sr(core.sA+2)}, 0"); a(f"s_mov_b32 {sr(core.sB+2)}, 0")
            a(f"s_branch {L}_done")
            a.label(f"{L}_valid")
        fields(code)
        a("s_sub_u32 s7, s5, 1"); a("s_cmp_lt_u32 s7, 2")
        a(f"s_cselect_b32 {sr(core.sA)}, s10, s8"); a(f"s_cselect_b32 {sr(core.sA+1)}, s11, s9")
        a(f"s_mov_b32 s7, {2048*512*2}"); a(f"s_cselect_b32 {sr(core.sA+2)}, s7, {2048*1024*2}")
        a(f"s_mov_b32 {sr(core.sA+3)}, 0x20000")
        a("s_mov_b32 s7, 1024"); a(f"s_cselect_b32 {sr(s_lda)}, s7, 2048")
        decodeB(core.sB)
        a(f"s_and_b32 s3, {sr(code)}, 7"); a("s_lshl_b32 s3, s3, 8")
        a(f"s_mul_i32 {sr(s_ab)}, s3, {sr(s_lda)}")
        core.setup_src(vlane, s_wave, s_ab, s_lda, s_bb, s_ldw, vt)
        a.label(f"{L}_done")
    def signal():
        return ["s_mov_b64 exec, 1",
                f"buffer_store_dword {vr(vc1)}, {vr(vlane)}, {sr(sF,4)}, {sr(s_sig)} offen sc1",
                f"buffer_store_byte {vr(vc1)}, {vr(vlane)}, {sr(sD,4)}, {sr(s_dw)} offen sc1",
                "s_mov_b64 exec, -1", f"s_brev_b32 {sr(s_dw)}, 1"]
    a("s_waitcnt lgkmcnt(0)")
    set_dma_params(s_cur, True)
    core.setup_lane_consts(vlane, s_wave, s_wt, s_wn, vt)
    core.prologue_dma()
    a(f"v_mov_b32 {vr(vc1)}, {f32(c1)}"); a(f"v_mov_b32 {vr(vc1+1)}, {f32(c1)}")
    srd(a, sF, 34, 35, FLAG_BYTES, WS_FLAG)
    set_pf(s_cur)
    a(f"v_add_u32 {vr(vpf)}, {sr(s_pf2)}, {vr(vpf)}")
    a(touchW())
    srd(a, sD, 32, 33, 256)
    a(f"s_mov_b32 {sr(s_ok)}, 0")
    a(f"s_brev_b32 {sr(s_dw)}, 1"); a(f"s_cmp_eq_u32 {sr(s_wave)}, 0"); a(f"s_cselect_b32 {sr(s_dw)}, s2, {sr(s_dw)}")
    assert struct.pack("<f", c1)[0] != 0
    a("s_lshl_b32 s3, s2, 2"); a(f"s_add_u32 s3, s3, {sr(s_wave)}"); a("s_lshl_b32 s3, s3, 5")
    a(f"v_lshlrev_b32 {vr(vout)}, 2, {vr(vlane)}"); a(f"v_mov_b32 {vr(vt[1])}, 0")
    a("s_mov_b64 exec, 0xff")
    a(f"buffer_store_dword {vr(vt[1])}, {vr(vout)}, {sr(sF,4)}, s3 offen sc1")
    a("s_mov_b64 exec, -1")
    a("s_and_b32 s3, s2, 7"); a("s_lshl_b32 s3, s3, 2"); a("s_lshr_b32 s4, s2, 6"); a("s_add_u32 s3, s3, s4")
    a("s_lshl_b32 s3, s3, 2"); a(f"s_add_u32 s3, s3, {sr(s_wave)}"); a("s_lshl_b32 s3, s3, 1")
    a("s_bfe_u32 s4, s2, 0x30003"); a("s_lshl_b32 s4, s4, 8"); a("s_add_u32 s3, s3, s4")
    a(f"v_lshlrev_b32 {vr(vt[0])}, 7, {vr(vlane)}")
    a("s_lshl_b32 s4, s3, 11")
    a(f"s_add_u32 {sr(sO)}, s8, s4"); a(f"s_addc_u32 {sr(sO+1)}, s9, 0"); a(f"s_mov_b32 {sr(sO+2)}, 4096"); a(f"s_mov_b32 {sr(sO+3)}, 0x20000")
    a(f"buffer_load_dword {vr(vdum)}, {vr(vt[0])}, {sr(sO,4)}, 0 offen")
    a("s_lshl_b32 s4, s3, 10")
    a(f"s_add_u32 {sr(sO)}, s10, s4"); a(f"s_addc_u32 {sr(sO+1)}, s11, 0"); a(f"s_mov_b32 {sr(sO+2)}, 2048")
    a(f"buffer_load_dword {vr(vdum)}, {vr(vt[0])}, {sr(sO,4)}, 0 offen")
    a(touchW())
    a("s_bfe_u32 s31, s2, 0x20003"); a("s_lshl_b32 s31, s31, 2"); a(f"s_add_u32 s31, s31, {sr(s_wave)}")
    codepf.BACK["mg"] = True
    codepf.code_touch(a, KNAME, "mega_code_end", vlane, vt[0], vdum, "s31", "mg")
    a(f"s_waitcnt vmcnt({cfgN.PB + 6})")
    a("s_barrier")
    a(core.xreads(0)); a(core.wreads(0, 0)); a(core.wreads(0, 1))
    a("s_waitcnt lgkmcnt(0)")
    a("s_barrier")
    a.label(f"{name}_tile")
    a(f"v_lshlrev_b32 {vr(vout)}, 2, {vr(vlane)}")
    a(f"s_bfe_u32 s5, {sr(s_cur)}, 0x20008")
    a("s_sub_u32 s7, s5, 1"); a("s_cmp_lt_u32 s7, 2")
    a(f"s_cselect_b32 {sr(core.sLoop)}, 3, 7")
    a("s_cmp_eq_u32 s5, 2")
    a(f"s_cbranch_scc1 {name}_S_first")
    def body(var, cfg):
        core.c = cfg
        def trip(first):
            core.step3(0, True, True, True, True, 2, extra=touchW() + initload(), post=signal() if first else None)
            core.step3(1, True, True, True, True, 0)
        a.label(f"{name}_{var}_first")
        core.zero_first = True; core._hist = [(4, 0), (4, 0)]
        trip(True)
        core.zero_first = False
        a(f"s_branch {name}_{var}_ctl")
        a.label(f"{name}_{var}_loop")
        trip(False)
        a(f"s_sub_u32 {sr(core.sLoop)}, {sr(core.sLoop)}, 1")
        a.label(f"{name}_{var}_ctl")
        a(f"s_cmp_gt_u32 {sr(core.sLoop)}, 3"); a(f"s_cbranch_scc1 {name}_{var}_loop")
        a(f"s_cmp_eq_u32 {sr(core.sLoop)}, 2"); a(f"s_cbranch_scc1 {name}_{var}_loop")
        a(f"s_cmp_eq_u32 {sr(core.sLoop)}, 0"); a(f"s_cbranch_scc1 {name}_{var}_epi")
        a(f"s_cmp_eq_u32 {sr(core.sLoop)}, 1"); a(f"s_cbranch_scc1 {name}_{var}_sw")
        set_pf(s_nxt)
        a(f"s_branch {name}_{var}_loop")
        a.label(f"{name}_{var}_sw")
        set_dma_params(s_nxt)
        a(f"s_branch {name}_{var}_loop")
        a.label(f"{name}_{var}_epi")
        core.c = cfgN
    def src_regs(blocks, tmp):
        regs = []
        for n_, (i, j) in enumerate(blocks):
            for r in range(4):
                if core.in_v(i): regs.append(core.accidx(i, j, r))
                else:
                    a(f"v_accvgpr_read_b32 {vr(tmp + n_*4 + r)}, {ar(core.accidx(i, j, r))}")
                    regs.append(tmp + n_ * 4 + r)
        return regs
    def head_base():
        fields(s_cur)
        a("s_lshl_b32 s3, s6, 1"); a(f"s_add_u32 s3, s3, {sr(s_wn)}"); a("s_lshl_b32 s3, s3, 19")
        a(f"s_and_b32 s7, {sr(s_cur)}, 7"); a("s_lshl_b32 s4, s7, 16"); a("s_add_u32 s3, s3, s4")
        a(f"s_lshl_b32 s4, {sr(s_wt)}, 15"); a("s_add_u32 s3, s3, s4")
        a(f"v_lshlrev_b32 {vr(vout)}, 4, {vr(vlane)}"); a(f"v_add_u32 {vr(vout)}, s3, {vr(vout)}")
        a("s_lshl_b32 s4, s5, 24")
        a(f"s_add_u32 {sr(sO)}, s34, s4"); a(f"s_addc_u32 {sr(sO+1)}, s35, 0")
        a(f"s_mov_b32 {sr(sO+2)}, {16<<20}"); a(f"s_mov_b32 {sr(sO+3)}, 0x20000")
        a("s_lshl_b32 s3, s5, 3"); a("s_add_u32 s3, s3, s7"); a("s_lshl_b32 s3, s3, 2"); a(f"s_add_u32 s3, s3, {sr(s_wave)}"); a("s_lshl_b32 s3, s3, 2")
        a("s_lshl_b32 s4, s6, 9"); a(f"s_add_u32 {sr(s_sig)}, s3, s4")
    body("N", cfgN)
    a(f"s_bfe_u32 s5, {sr(s_cur)}, 0x20008")
    a("s_cmp_eq_u32 s5, 3"); a(f"s_cbranch_scc1 {name}_epi_gu")
    head_base()
    a("s_cmp_eq_u32 s5, 1"); a(f"s_cbranch_scc1 {name}_epi_k")
    def epi_qk(scale):
        cnt = 0
        if scale: a(f"s_mov_b32 {sr(s_c)}, {f32(QSCALE)}"); a(f"s_mov_b32 {sr(s_c+1)}, {f32(QSCALE)}")
        for u in range(4):
            for j in range(8):
                b = vT + (cnt % 2) * 4; cnt += 1
                R = src_regs([(2 * u, j), (2 * u + 1, j)], vT + 8)
                if scale:
                    for p in range(4): a(f"v_pk_mul_f32 {vr(R[2*p],2)}, {vr(R[2*p],2)}, {sr(s_c,2)}")
                for p in range(4): a(f"v_cvt_pk_bf16_f32 {vr(b+p)}, {vr(R[2*p])}, {vr(R[2*p+1])}")
                a(f"s_mov_b32 s3, {j*4096}")
                a(f"buffer_store_dwordx4 {vr(b,4)}, {vr(vout)}, {sr(sO,4)}, s3 offen offset:{u*1024}{ST}")
    epi_qk(True); a(f"s_branch {name}_next")
    a.label(f"{name}_epi_k"); epi_qk(False); a(f"s_branch {name}_next")
    a.label(f"{name}_epi_gu")
    fields(s_cur)
    a(f"s_and_b32 s7, {sr(s_cur)}, 7")
    a("s_lshl_b32 s3, s7, 4"); a(f"s_lshl_b32 s4, {sr(s_wt)}, 3"); a("s_add_u32 s3, s3, s4")
    a(f"s_mul_i32 s3, s3, {Z_KB*1024}")
    a("s_lshl_b32 s4, s6, 12"); a("s_add_u32 s3, s3, s4")
    a(f"s_lshl_b32 s4, {sr(s_wn)}, 11"); a("s_add_u32 s3, s3, s4")
    a(f"v_lshlrev_b32 {vr(vout)}, 4, {vr(vlane)}"); a(f"v_add_u32 {vr(vout)}, s3, {vr(vout)}")
    srd(a, sO, 34, 35, 128 * Z_KB * 1024, WS_Z)
    a("s_lshl_b32 s3, s6, 2"); a(f"s_add_u32 s3, s3, {sr(s_wave)}"); a("s_lshl_b32 s3, s3, 2")
    a("s_lshl_b32 s4, s7, 9"); a("s_add_u32 s3, s3, s4"); a(f"s_add_u32 {sr(s_sig)}, s3, {F_GU}")
    a(f"s_mov_b32 {sr(s_c)}, {f32(c2)}"); a(f"s_mov_b32 {sr(s_c+1)}, {f32(c2)}")
    cnt = 0
    for u in range(2):
        for j in range(8):
            b = vT + (cnt % 2) * 4; cnt += 1
            X = src_regs([(2 * u, j), (2 * u + 1, j)], None)
            E = vT + 8
            for p in range(4): a(f"v_pk_mul_f32 {vr(E+2*p,2)}, {vr(X[2*p],2)}, {vr(X[2*p],2)}")
            for p in range(4): a(f"v_pk_fma_f32 {vr(E+2*p,2)}, {vr(E+2*p,2)}, {sr(s_c,2)}, {vr(vc1,2)}")
            for p in range(4): a(f"v_pk_mul_f32 {vr(E+2*p,2)}, {vr(E+2*p,2)}, {vr(X[2*p],2)}")
            for e in range(8): a(f"v_exp_f32 {vr(E+e)}, {vr(E+e)}")
            for n_, ib in enumerate((4 + 2 * u, 5 + 2 * u)):
                if core.in_v(ib):
                    for p in range(2): a(f"v_pk_mul_f32 {vr(X[n_*4+2*p],2)}, {vr(X[n_*4+2*p],2)}, {vr(core.accidx(ib,j,2*p),2)}")
                else:
                    tmp = core.accidx(4 + 2 * u, j, 0)
                    for r in range(4): a(f"v_accvgpr_read_b32 {vr(tmp+r)}, {ar(core.accidx(ib,j,r))}")
                    for p in range(2): a(f"v_pk_mul_f32 {vr(X[n_*4+2*p],2)}, {vr(X[n_*4+2*p],2)}, {vr(tmp+2*p,2)}")
            for p in range(4): a(f"v_pk_add_f32 {vr(E+2*p,2)}, {vr(E+2*p,2)}, 1.0 op_sel_hi:[1,0]")
            for e in range(8): a(f"v_rcp_f32 {vr(E+e)}, {vr(E+e)}")
            a(f"s_mov_b32 s3, {j*Z_KB*1024}")
            for p in range(4): a(f"v_pk_mul_f32 {vr(X[2*p],2)}, {vr(X[2*p],2)}, {vr(E+2*p,2)}")
            for p in range(4): a(f"v_cvt_pk_bf16_f32 {vr(b+p)}, {vr(X[2*p])}, {vr(X[2*p+1])}")
            a(f"buffer_store_dwordx4 {vr(b,4)}, {vr(vout)}, {sr(sO,4)}, s3 offen offset:{u*1024}{ST}")
    a(f"s_branch {name}_next")
    body("S", cfgS)
    head_base()
    cnt = 0
    for i in range(8):
        for uu in range(4):
            b = vT + (cnt % 2) * 4; cnt += 1
            R = src_regs([(i, 2 * uu), (i, 2 * uu + 1)], vT + 8)
            for p in range(4): a(f"v_cvt_pk_bf16_f32 {vr(b+p)}, {vr(R[2*p])}, {vr(R[2*p+1])}")
            a(f"s_mov_b32 s3, {uu*8192 + (i//4)*4096}")
            a(f"buffer_store_dwordx4 {vr(b,4)}, {vr(vout)}, {sr(sO,4)}, s3 offen offset:{(i%4)*1024}{ST}")
    a.label(f"{name}_next")
    a(f"s_cmp_lg_u32 {sr(s_ok)}, 0"); a(f"s_cbranch_scc1 {name}_iok")
    a(f"v_accvgpr_read_b32 {vr(vT+8)}, {ar(aI)}")
    a("s_mov_b32 s3, 0")
    a.label(f"{name}_ichk")
    a(f"v_subrev_u32 {vr(vT+9)}, 0x01010101, {vr(vT+8)}")
    a(f"v_not_b32 {vr(vT+8)}, {vr(vT+8)}")
    a(f"v_and_b32 {vr(vT+8)}, {vr(vT+8)}, {vr(vT+9)}")
    a(f"v_and_b32 {vr(vT+8)}, 0x80808080, {vr(vT+8)}")
    a(f"v_cmp_ne_u32 vcc, 0, {vr(vT+8)}")
    a(f"s_cbranch_vccz {name}_iset")
    a("s_sleep 4")
    a(f"v_lshlrev_b32 {vr(vT+9)}, 2, {vr(vlane)}")
    a(f"buffer_load_dword {vr(vT+8)}, {vr(vT+9)}, {sr(sD,4)}, 0 offen sc1")
    a("s_waitcnt vmcnt(0)")
    a("s_add_u32 s3, s3, 1"); a(f"s_cmp_lt_u32 s3, {SPIN_MAX}"); a(f"s_cbranch_scc1 {name}_ichk")
    a.label(f"{name}_iset")
    a(f"s_mov_b32 {sr(s_ok)}, 1"); a(f"s_mov_b32 {sr(sD+2)}, 0")
    a.label(f"{name}_iok")
    a(f"s_mov_b32 {sr(s_cur)}, {sr(s_nxt)}"); a(f"s_mov_b32 {sr(s_nxt)}, {sr(s_nx2)}"); a(f"s_mov_b32 {sr(s_nx2)}, 0")
    a(f"s_cmp_lg_u32 {sr(s_cur)}, 0"); a(f"s_cbranch_scc1 {name}_tile")
    a("s_waitcnt vmcnt(0) lgkmcnt(0)")
    a(signal())
    a("s_lshr_b32 s4, s2, 3"); a("s_cmp_lt_u32 s4, 28"); a(f"s_cbranch_scc1 {name}_nog")
    a("s_and_b32 s3, s2, 7"); a("s_sub_u32 s4, s4, 28")
    a("s_lshl_b32 s5, s4, 2"); a(f"s_add_u32 s5, s5, {sr(s_wave)}"); a("s_add_u32 s5, s5, 112"); a("s_lshl_b32 s5, s5, 2")
    a("s_lshl_b32 s6, s3, 9"); a("s_add_u32 s5, s5, s6"); a(f"s_add_u32 {sr(s_sig)}, s5, {F_GU}")
    a("s_lshl_b32 s3, s3, 2"); a("s_add_u32 s3, s3, s4"); a("s_lshl_b32 s3, s3, 6")
    a(f"s_lshl_b32 s4, {sr(s_wave)}, 4"); a("s_add_u32 s3, s3, s4")
    srd(a, core.sA, 8, 9, 2048 * 1024 * 2); srd(a, core.sB, 28, 29, 2048); srd(a, sO, 34, 35, 8192, WS_G)
    G = 8; XB = 32
    a(f"v_lshlrev_b32 v2, 5, {vr(vlane)}")
    a(f"buffer_load_dwordx4 v[{G}:{G+3}], v2, {sr(core.sB,4)}, 0 offen"); a(f"buffer_load_dwordx4 v[{G+4}:{G+7}], v2, {sr(core.sB,4)}, 0 offen offset:16")
    a("s_lshl_b32 s4, s3, 11"); a("v_add_u32 v3, s4, v2")
    for t in range(16):
        a(f"s_mov_b32 s5, {t*2048}")
        a(f"buffer_load_dwordx4 v[{XB+8*t}:{XB+8*t+3}], v3, {sr(core.sA,4)}, s5 offen")
        a(f"buffer_load_dwordx4 v[{XB+8*t+4}:{XB+8*t+7}], v3, {sr(core.sA,4)}, s5 offen offset:16")
    a("s_waitcnt vmcnt(32)")
    for r in range(8):
        a(f"v_lshlrev_b32 v{16+2*r}, 16, v{G+r}"); a(f"v_and_b32 v{17+2*r}, 0xffff0000, v{G+r}")
    a("v_mov_b32 v6, 0")
    for t in range(16):
        a(f"s_waitcnt vmcnt({2*(15-t)})")
        for r in range(8):
            x = XB + 8 * t + r
            a(f"v_lshlrev_b32 v5, 16, v{x}")
            a(f"v_mul_f32 v4, v5, v{16+2*r}" if r == 0 else f"v_fmac_f32 v4, v5, v{16+2*r}")
            a(f"v_and_b32 v5, 0xffff0000, v{x}"); a(f"v_fmac_f32 v4, v5, v{17+2*r}")
        for m in ("quad_perm:[1,0,3,2]", "quad_perm:[2,3,0,1]", "row_half_mirror", "row_mirror"):
            a("s_nop 1"); a(f"v_add_f32_dpp v4, v4, v4 {m} row_mask:0xf bank_mask:0xf")
        a("s_nop 1")
        for q in range(4): a(f"v_readlane_b32 s{4+q}, v4, {16*q}")
        a("s_nop 1")
        a("v_mov_b32 v5, s4"); a("v_add_f32 v5, s5, v5"); a("v_add_f32 v5, s6, v5"); a("v_add_f32 v5, s7, v5")
        a(f"v_cmp_eq_u32 vcc, {t}, {vr(vlane)}"); a("s_nop 1"); a("v_cndmask_b32 v6, v6, v5, vcc")
    a(f"v_mul_f32 v6, {f32(-math.log2(math.e))}, v6")
    a("v_exp_f32 v6, v6"); a("s_nop 0"); a("v_add_f32 v6, 1.0, v6"); a("v_rcp_f32 v6, v6")
    a(f"v_add_u32 v7, s3, {vr(vlane)}"); a("v_lshlrev_b32 v7, 2, v7")
    a("s_mov_b64 exec, 0xffff")
    a(f"buffer_store_dword v6, v7, {sr(sO,4)}, 0 offen sc1")
    a("s_mov_b64 exec, -1")
    a("s_waitcnt vmcnt(0)")
    a(signal())
    a.label(f"{name}_nog")
    a("s_barrier")

def phase_g3(a, name="g3"):
    cfg = GemmCfg(128, 128, 2, 2, native_a=True, swap=False, stages=4, ms=16)
    V = RegAlloc(4, 256, "v"); S = RegAlloc(36, 100, "s")
    core = GemmCore3(a, cfg, V, S, False)
    accH = core.accbase; accA = V.alloc("acc2", 64, 4)
    vw = V.alloc("vw", 4, 2)
    vlane = V.alloc("lane"); vt = [V.alloc(f"t{i}") for i in range(4)]
    vout = V.alloc("vout"); vg = V.alloc("g", 4); vpart = V.alloc("vpart")
    vpa = V.alloc("vpa"); vpw = V.alloc("vpw"); vdum = V.alloc("vdum"); vflag = V.alloc("vflag"); vfa = V.alloc("vfa")
    s_wave = S_WAVE; s_wt = S.alloc("wt"); s_wn = S.alloc("wn")
    s_tm = S.alloc("tm"); s_tn = S.alloc("tn"); s_half = S.alloc("half")
    s_ab = S.alloc("ab"); s_lda = S.alloc("lda"); s_bb = S.alloc("bb"); s_ldw = S.alloc("ldw"); s_fo = S.alloc("fo"); s_pid = S.alloc("pid")
    s_dA = S.alloc("dA"); s_dB = S.alloc("dB")
    sO = S.alloc("srdO", 4, 4); sG = S.alloc("srdG", 4, 4); sP = S.alloc("srdP", 4, 4); sF = S.alloc("srdF", 4, 4); sBT = S.alloc("srdBT", 4, 4)
    PA, PB, SS = cfg.PA, cfg.PB, cfg.S
    a("s_load_dwordx16 s[8:23], s[0:1], 0")
    a("s_load_dwordx8 s[24:31], s[0:1], 64")
    a("s_load_dwordx4 s[32:35], s[0:1], 96")
    lane_id(a, vlane)
    a(f"s_lshr_b32 {sr(s_wt)}, {sr(s_wave)}, 1"); a(f"s_and_b32 {sr(s_wn)}, {sr(s_wave)}, 1")
    a(f"s_and_b32 {sr(s_half)}, s2, 1")
    a("s_lshr_b32 s4, s2, 3")
    a("s_bfe_u32 s5, s2, 0x10002"); a("s_lshl_b32 s5, s5, 3"); a("s_and_b32 s6, s4, 7"); a(f"s_add_u32 {sr(s_tm)}, s5, s6")
    a("s_bfe_u32 s5, s2, 0x10001"); a("s_lshl_b32 s5, s5, 2"); a("s_lshr_b32 s6, s4, 3"); a(f"s_add_u32 {sr(s_tn)}, s5, s6")
    a("s_waitcnt lgkmcnt(0)")
    srd(a, sF, 34, 35, FLAG_BYTES, WS_FLAG)
    a(f"s_lshr_b32 {sr(s_fo)}, {sr(s_tm)}, 1"); a(f"s_lshl_b32 {sr(s_fo)}, {sr(s_fo)}, 9"); a(f"s_add_u32 {sr(s_fo)}, {sr(s_fo)}, {F_GU}")
    wait_flags(a, f"{name}_w0", sF, sr(s_fo), 64, True, vlane, vw)
    srd(a, core.sA, 34, 35, 128 * Z_KB * 1024, WS_Z)
    srd(a, core.sB, 26, 27, 3584 * 2048); srd(a, sBT, 26, 27, 3584 * 2048)
    a(f"s_mov_b32 {sr(s_lda)}, {Z_KB*1024}"); a(f"s_mov_b32 {sr(s_ldw)}, 2048")
    a(f"s_mul_i32 {sr(s_ab)}, {sr(s_tm)}, {8*Z_KB*1024}")
    a(f"s_mul_i32 s3, {sr(s_half)}, {28*2048}"); a(f"s_add_u32 {sr(s_ab)}, {sr(s_ab)}, s3")
    a(f"s_mul_i32 s5, {sr(s_half)}, {28*64*2048}")
    a(f"s_lshl_b32 s6, {sr(s_tn)}, 8"); a("s_add_u32 s7, s5, s6")
    a(f"s_lshl_b32 s3, {sr(s_wt)}, 7"); a(f"s_add_u32 {sr(s_bb)}, s7, s3")
    core.setup_src(vlane, s_wave, s_ab, s_lda, s_bb, s_ldw, vt)
    core.setup_lane_consts(vlane, s_wave, s_wt, s_wn, vt)
    core.prologue_dma()
    a(f"s_mul_i32 {sr(s_dA)}, {sr(s_half)}, {4*2048}"); a(f"s_add_u32 {sr(s_dA)}, {sr(s_dA)}, {112*1024 - 28*2048}")
    a(f"s_mul_i32 {sr(s_dB)}, {sr(s_half)}, {4*64*2048}"); a(f"s_sub_u32 {sr(s_dB)}, {sr(s_dB)}, {28*64*2048}")
    srd(a, sO, 30, 31, 2048 * 1024 * 2); srd(a, sG, 34, 35, 8192, WS_G); srd(a, sP, 34, 35, 128 * 65536, WS_PART)
    a(f"s_and_b32 s3, {sr(s_tn)}, 3"); a("s_lshl_b32 s3, s3, 1"); a(f"s_add_u32 s3, s3, {sr(s_wt)}")
    a(f"s_mul_i32 s3, s3, {sr(s_lda)}"); a(f"s_add_u32 s3, s3, {sr(s_ab)}")
    a(f"s_lshl_b32 s4, {sr(s_wn)}, 12"); a("s_add_u32 s3, s3, s4")
    a(f"v_lshlrev_b32 {vr(vpa)}, 7, {vr(vlane)}"); a(f"v_add_u32 {vr(vpa)}, s3, {vr(vpa)}")
    a(f"v_bfrev_b32 {vr(vt[3])}, 1")
    a(f"v_cmp_gt_u32 vcc, 32, {vr(vlane)}"); a("s_nop 1")
    a(f"v_cndmask_b32 {vr(vpa)}, {vr(vt[3])}, {vr(vpa)}, vcc")
    a(f"s_and_b32 s3, {sr(s_tm)}, 7"); a("s_lshl_b32 s3, s3, 3"); a(f"s_lshl_b32 s4, {sr(s_wave)}, 6"); a("s_add_u32 s3, s3, s4")
    a(f"v_lshrrev_b32 {vr(vpw)}, 1, {vr(vlane)}"); a(f"v_add_u32 {vr(vpw)}, s3, {vr(vpw)}")
    a(f"v_lshlrev_b32 {vr(vpw)}, 11, {vr(vpw)}")
    a(f"v_and_b32 {vr(vt[2])}, 1, {vr(vlane)}"); a(f"v_lshl_add_u32 {vr(vpw)}, {vr(vt[2])}, 7, {vr(vpw)}")
    a(f"v_add_u32 {vr(vpw)}, s7, {vr(vpw)}")
    a(f"v_cmp_gt_u32 vcc, 16, {vr(vlane)}"); a("s_nop 1")
    a(f"v_cndmask_b32 {vr(vpw)}, {vr(vt[3])}, {vr(vpw)}, vcc")
    tA = [f"buffer_load_dword {vr(vdum)}, {vr(vpa)}, {sr(core.sA,4)}, 0 offen", f"v_add_u32 {vr(vpa)}, 0x2000, {vr(vpa)}"]
    tW = [f"buffer_load_dword {vr(vdum)}, {vr(vpw)}, {sr(sBT,4)}, 0 offen", f"v_add_u32 {vr(vpw)}, {4*64*2048}, {vr(vpw)}"]
    a(tA[1]); a(tW[1]); a(tA); a(tW)
    a(f"s_lshl_b32 {sr(s_fo)}, {sr(s_tm)}, 1"); a(f"s_add_u32 {sr(s_fo)}, {sr(s_fo)}, {sr(s_half)}"); a(f"s_lshl_b32 {sr(s_fo)}, {sr(s_fo)}, 8")
    a(f"s_add_u32 {sr(s_fo)}, {sr(s_fo)}, {F_CTX}")
    a(f"v_lshlrev_b32 {vr(vfa)}, 2, {vr(vlane)}")
    tF = [f"buffer_load_dword {vr(vflag)}, {vr(vfa)}, {sr(sF,4)}, {sr(s_fo)} offen sc1"]
    a(f"s_lshl_b32 s3, {sr(s_tm)}, 7"); a(f"s_lshl_b32 s4, {sr(s_wt)}, 6"); a("s_add_u32 s3, s3, s4")
    a(f"v_and_b32 {vr(vt[0])}, 15, {vr(vlane)}"); a(f"v_add_u32 {vr(vt[0])}, s3, {vr(vt[0])}")
    a(f"v_lshlrev_b32 {vr(vt[1])}, 2, {vr(vt[0])}")
    for j in range(4): a(f"buffer_load_dword {vr(vg+j)}, {vr(vt[1])}, {sr(sG,4)}, 0 offen offset:{j*64}")
    a(f"v_lshlrev_b32 {vr(vout)}, 11, {vr(vt[0])}")
    a(f"v_lshrrev_b32 {vr(vt[2])}, 4, {vr(vlane)}")
    a(f"v_lshl_add_u32 {vr(vout)}, {vr(vt[2])}, 3, {vr(vout)}")
    a(f"s_lshl_b32 s3, {sr(s_tn)}, 8"); a(f"s_lshl_b32 s4, {sr(s_wn)}, 7"); a("s_add_u32 s3, s3, s4")
    a(f"v_add_u32 {vr(vout)}, s3, {vr(vout)}")
    a(f"s_lshl_b32 s3, {sr(s_tm)}, 3"); a(f"s_add_u32 s3, s3, {sr(s_tn)}"); a("s_lshl_b32 s3, s3, 2"); a(f"s_add_u32 {sr(s_pid)}, s3, {sr(s_wave)}")
    a(f"s_lshl_b32 s3, {sr(s_pid)}, 14"); a(f"s_lshl_b32 s4, {sr(s_half)}, 13"); a("s_add_u32 s3, s3, s4")
    a(f"v_lshlrev_b32 {vr(vpart)}, 4, {vr(vlane)}"); a(f"v_add_u32 {vr(vpart)}, s3, {vr(vpart)}")
    core.accbase = accH; core.zero_acc(); core.accbase = accA; core.zero_acc()
    a(f"s_waitcnt vmcnt({(SS-2)*(PA+PB) + PB + 6})")
    a("s_barrier")
    a(core.xreads(0)); a(core.wreads(0, 0)); a(core.wreads(0, 1))
    a("s_waitcnt lgkmcnt(0)")
    a("s_barrier")
    core._hist = [(4, 0), (4, 0)]
    def trip(extras):
        cnt = {t: sum(1 for x in e if x.startswith("buffer_")) for t, e in extras.items()}
        for t in range(4):
            nx = sum(cnt.get(u % 4, 0) for u in range(t + 2 - SS, t + 1))
            core.step3(t, True, True, True, True, (SS - 2) * (PA + PB) + nx, extra=extras.get(t))
    core.accbase = accH
    a(f"s_mov_b32 {sr(core.sLoop)}, 7")
    a.label(f"{name}_l1")
    trip({0: tA + tF, 2: tW})
    a(f"s_sub_u32 {sr(core.sLoop)}, {sr(core.sLoop)}, 1")
    a(f"s_cmp_gt_u32 {sr(core.sLoop)}, 2"); a(f"s_cbranch_scc1 {name}_l1")
    a(f"s_cmp_eq_u32 {sr(core.sLoop)}, 0"); a(f"s_cbranch_scc1 {name}_l2s")
    a(f"s_cmp_eq_u32 {sr(core.sLoop)}, 1"); a(f"s_cbranch_scc1 {name}_swd")
    a(f"v_cmp_eq_u32 vcc, 0, {vr(vflag)}")
    a(f"s_cbranch_vccz {name}_w1_ok")
    wait_flags(a, f"{name}_w1", sF, sr(s_fo), 64, False, vlane, vw)
    a(f"v_add_u32 {vr(vpa)}, {sr(s_dA)}, {vr(vpa)}"); a(f"v_add_u32 {vr(vpw)}, {sr(s_dB)}, {vr(vpw)}")
    srd(a, sBT, 18, 19, 4096 * 2048)
    a(f"s_branch {name}_l1")
    a.label(f"{name}_swd")
    a(f"v_add_u32 {vr(core.vAsrc[0])}, {sr(s_dA)}, {vr(core.vAsrc[0])}"); a(f"v_add_u32 {vr(core.vBsrc[0])}, {sr(s_dB)}, {vr(core.vBsrc[0])}")
    srd(a, core.sB, 18, 19, 4096 * 2048)
    a(f"s_branch {name}_l1")
    a.label(f"{name}_l2s")
    core.accbase = accA
    a(f"s_mov_b32 {sr(core.sLoop)}, 6")
    a.label(f"{name}_l2")
    trip({0: tA, 2: tW})
    a(f"s_sub_u32 {sr(core.sLoop)}, {sr(core.sLoop)}, 1")
    a(f"s_cmp_lg_u32 {sr(core.sLoop)}, 0"); a(f"s_cbranch_scc1 {name}_l2")
    core.tail()
    stamp(a, 4)
    a("s_nop 7")
    a("s_mov_b32 s6, 4096")
    R = core.xf[0][0][0]; W = core.wf[0][0]
    def comb(blk):
        o = blk * 4; j = blk % 4
        for r in range(4): a(f"v_sub_f32 {vr(accA+o+r)}, {vr(accA+o+r)}, {vr(accH+o+r)}")
        for r in range(4): a(f"v_fma_f32 {vr(accA+o+r)}, {vr(accA+o+r)}, {vr(vg+j)}, {vr(accH+o+r)}")
    def fin(h):
        for k in range(8):
            blk = (1 - h) * 8 + k
            comb(blk)
            a(f"buffer_store_dwordx4 {vr(accA+4*blk,4)}, {vr(vpart)}, {sr(sP,4)}, {'0' if k < 4 else 's6'} offen offset:{(k%4)*1024} sc1")
        a(f"s_lshl_b32 s3, {sr(s_pid)}, 3"); a(f"s_add_u32 {sr(s_fo)}, s3, {F_EX + 4*h}")
        for k in range(8): comb(h * 8 + k)
        a("s_waitcnt vmcnt(0)")
        a("s_mov_b64 exec, 1"); a(f"buffer_store_dword {vr(vt[3])}, {vr(vlane)}, {sr(sF,4)}, {sr(s_fo)} offen sc1"); a("s_mov_b64 exec, -1")
        a(f"s_xor_b32 {sr(s_fo)}, {sr(s_fo)}, 4")
        wait_flags(a, f"{name}_wx{h}", sF, sr(s_fo), 1, False, vlane, vw, sleep=1)
        a(f"v_xor_b32 {vr(vpart)}, 0x2000, {vr(vpart)}")
        for k in range(8):
            a(f"buffer_load_dwordx4 {vr(R+4*k,4)}, {vr(vpart)}, {sr(sP,4)}, {'0' if k < 4 else 's6'} offen offset:{(k%4)*1024} sc1")
        for k in range(8):
            blk = h * 8 + k; i, j = blk // 4, blk % 4
            a("s_waitcnt vmcnt(7)")
            b = W + (k % 4) * 8
            for r in range(4): a(f"v_add_f32 {vr(b+2+r)}, {vr(accA+4*blk+r)}, {vr(R+4*k+r)}")
            a(f"v_cvt_pk_bf16_f32 {vr(b)}, {vr(b+2)}, {vr(b+3)}"); a(f"v_cvt_pk_bf16_f32 {vr(b+1)}, {vr(b+4)}, {vr(b+5)}")
            a(f"s_mov_b32 s3, {j*16*2048}")
            a(f"buffer_store_dwordx2 {vr(b,2)}, {vr(vout)}, {sr(sO,4)}, s3 offen offset:{i*32}")
    a(f"s_cmp_lg_u32 {sr(s_half)}, 0"); a(f"s_cbranch_scc1 {name}_fin1")
    fin(0); a(f"s_branch {name}_end")
    a.label(f"{name}_fin1"); fin(1)
    a.label(f"{name}_end")

def gen_mega(a, name=KNAME):
    import sys
    from k2_gen import gen_k2
    mg = sys.modules[__name__]
    kernel_header(a, name)
    a("s_cmp_ge_u32 s2, 256"); a(f"s_cbranch_scc1 {name}_end")
    if STAMPS:
        a("v_lshrrev_b32 v1, 6, v0"); a("s_nop 0"); a(f"v_readfirstlane_b32 s{S_WAVE}, v1"); a("s_nop 3")
        stamp(a, 0)
    phase_g1(a)
    stamp(a, 1)
    gen_k2(a, "a2", mg=mg)
    stamp(a, 2)
    phase_g3(a)
    stamp(a, 5)
    a.label(f"{name}_end"); a("s_endpgm")
    a.label("mega_code_end")
    return dict(name=name, nv=512, acc_off=256, grid=256, block=256, lds=131072)

if __name__ == "__main__":
    import sys
    from gen_all import HEADER
    body = Asm()
    infos = [gen_mega(body)]
    out = HEADER
    for i in infos:
        if os.environ.get("LIST"): out += f"; @launch kernel={i['name']} grid=({i['grid']},1,1) block=({i['block']},1,1) lds={i['lds']}\n"
        else: out += f"; @launch grid=({i['grid']},1,1) block=({i['block']},1,1) lds={i['lds']}\n"
    out += '.amdgcn_target "amdgcn-amd-amdhsa--gfx950"\n' + body.text()
    d = Asm()
    for i in infos: kernel_desc(d, i["name"], i["nv"], i["acc_off"])
    open(sys.argv[1], "w").write(out + d.text())
```

```python
from asmb import *
from gemm_gen import GemmCfg
from gemm3 import GemmCore3
from k1v2_gen import Core4
from k1_gen import srd, f32, WS_Q, WS_K, WS_V, WS_Z, WS_G, WS_CNT, WS_PART, Z_KB, QSCALE
from k2_gen import RD, WAIT, resolve, flat, MF, BIAS, NEG
import codepf, math, os, struct
KNAME = "gated_mix__compressed_kv_cla__geglu_ffn__prompt_kernel"

STAMPS = bool(os.environ.get("STAMPS"))
WS_FLAG = WS_CNT
F_QKV, F_GU, F_CTX, F_EX = 0, 8192, 12288, 20480
FLAG_BYTES = 32768
WS_STAMP = 96 << 20
SPIN_MAX = 100000
ST = " sc1"
S_WAVE = 101
ATT_JOBS = [[14, 0], [13, 1], [12, 2], [11, 3], [10, 4], [9, 5], [8, 6], [15, 7]]

def stamp(a, idx):
    if not STAMPS: return
    a("s_memrealtime s[4:5]")
    a("s_load_dwordx2 s[6:7], s[0:1], 104")
    a("s_waitcnt lgkmcnt(0)")
    a(f"s_add_u32 s8, s6, {WS_STAMP}"); a("s_addc_u32 s9, s7, 0"); a("s_mov_b32 s10, 0x40000"); a("s_mov_b32 s11, 0x20000")
    a("s_lshl_b32 s6, s2, 8"); a(f"s_lshl_b32 s7, s{S_WAVE}, 6"); a("s_add_u32 s6, s6, s7"); a(f"s_add_u32 s6, s6, {idx*4}")
    a("v_mov_b32 v1, s6"); a("v_mov_b32 v2, s4")
    a("buffer_store_dword v2, v1, s[8:11], 0 offen")
    a("s_waitcnt vmcnt(0)")

def lane_id(a, v):
    a(f"v_mbcnt_lo_u32_b32 {vr(v)}, -1, 0")
    a(f"v_mbcnt_hi_u32_b32 {vr(v)}, -1, {vr(v)}")

def wait_flags(a, lab, sF, s_off, nlanes, x2, vlane, t0, sleep=8):
    a(f"v_lshlrev_b32 {vr(t0+2)}, {3 if x2 else 2}, {vr(vlane)}")
    a("s_mov_b32 s3, 0")
    a.label(lab)
    if x2: a(f"buffer_load_dwordx2 {vr(t0,2)}, {vr(t0+2)}, {sr(sF,4)}, {s_off} offen sc1")
    else: a(f"buffer_load_dword {vr(t0)}, {vr(t0+2)}, {sr(sF,4)}, {s_off} offen sc1")
    a("s_waitcnt vmcnt(0)")
    if x2: a(f"v_min_u32 {vr(t0)}, {vr(t0)}, {vr(t0+1)}")
    a(f"v_cmp_eq_u32 vcc, 0, {vr(t0)}")
    if nlanes < 64:
        a(f"s_mov_b32 s4, {((1 << nlanes) - 1) & 0xffffffff}"); a(f"s_mov_b32 s5, {((1 << nlanes) - 1) >> 32}")
        a("s_and_b64 vcc, vcc, s[4:5]")
    else:
        a("s_or_b64 vcc, vcc, vcc")
    a(f"s_cbranch_scc0 {lab}_ok")
    a(f"s_sleep {sleep}")
    a("s_add_u32 s3, s3, 1"); a(f"s_cmp_lt_u32 s3, {SPIN_MAX}")
    a(f"s_cbranch_scc1 {lab}")
    a.label(f"{lab}_ok")

def sig_regs(a, vsig, vone, vlane, tmp):
    a(f"v_bfrev_b32 {vr(tmp)}, 1")
    a(f"v_cmp_eq_u32 vcc, 0, {vr(vlane)}")
    a(f"v_mov_b32 {vr(vone)}, 1")
    a("s_nop 0")
    a(f"v_cndmask_b32 {vr(vsig)}, {vr(tmp)}, {vr(vlane)}, vcc")

def gen_k0(a, name="k0_kernel"):
    kernel_header(a, name)
    a("s_cmp_ge_u32 s2, 256"); a(f"s_cbranch_scc1 {name}_end")
    a("s_load_dwordx4 s[8:11], s[0:1], 0")
    a("s_load_dwordx2 s[28:29], s[0:1], 80")
    a("s_load_dwordx2 s[34:35], s[0:1], 104")
    a("v_and_b32 v1, 63, v0")
    a("v_lshrrev_b32 v2, 6, v0"); a("s_nop 0"); a("v_readfirstlane_b32 s36, v2"); a("s_nop 3")
    a("s_lshl_b32 s37, s2, 2"); a("s_add_u32 s37, s37, s36")
    a("s_waitcnt lgkmcnt(0)")
    srd(a, 12, 8, 9, 2048 * 2048); srd(a, 16, 28, 29, 2048); srd(a, 20, 34, 35, 8192, WS_G); srd(a, 24, 34, 35, FLAG_BYTES, WS_FLAG)
    srd(a, 40, 10, 11, 2048 * 1024)
    a("v_lshlrev_b32 v2, 5, v1")
    a("s_lshl_b32 s3, s37, 12"); a("v_add_u32 v3, s3, v2")
    a("buffer_load_dwordx4 v[8:11], v2, s[16:19], 0 offen"); a("buffer_load_dwordx4 v[12:15], v2, s[16:19], 0 offen offset:16")
    for t in range(2):
        a(f"buffer_load_dwordx4 v[{32+8*t}:{35+8*t}], v3, s[12:15], 0 offen offset:{t*2048}")
        a(f"buffer_load_dwordx4 v[{36+8*t}:{39+8*t}], v3, s[12:15], 0 offen offset:{t*2048+16}")
    a("v_lshlrev_b32 v4, 2, v1"); a("s_lshl_b32 s3, s37, 5"); a("v_add_u32 v4, s3, v4"); a("v_mov_b32 v5, 0")
    a("v_cmp_gt_u32 vcc, 8, v1"); a("s_and_saveexec_b64 s[38:39], vcc")
    a("buffer_store_dword v5, v4, s[24:27], 0 offen")
    a("s_mov_b64 exec, s[38:39]")
    a("v_lshlrev_b32 v4, 7, v1"); a("s_lshl_b32 s3, s37, 11"); a("v_add_u32 v4, s3, v4")
    a("v_cmp_gt_u32 vcc, 16, v1"); a("s_and_saveexec_b64 s[38:39], vcc")
    a("buffer_load_dword v50, v4, s[40:43], 0 offen")
    a("s_mov_b64 exec, s[38:39]")
    a("s_lshr_b32 s31, s2, 3"); a("s_lshl_b32 s31, s31, 2"); a("s_add_u32 s31, s31, s36")
    codepf.code_touch(a, "mega_kernel", "mega_code_end", 1, 4, 51, "s31", "k0a")
    a("s_waitcnt vmcnt(3)")
    for r in range(8):
        a(f"v_lshlrev_b32 v{16+2*r}, 16, v{8+r}"); a(f"v_and_b32 v{17+2*r}, 0xffff0000, v{8+r}")
    a("v_mov_b32 v6, 0")
    for t in range(2):
        for r in range(8):
            x = 32 + 8 * t + r
            a(f"v_lshlrev_b32 v5, 16, v{x}")
            a(f"v_mul_f32 v4, v5, v{16+2*r}" if r == 0 else f"v_fmac_f32 v4, v5, v{16+2*r}")
            a(f"v_and_b32 v5, 0xffff0000, v{x}"); a(f"v_fmac_f32 v4, v5, v{17+2*r}")
        for m in ("quad_perm:[1,0,3,2]", "quad_perm:[2,3,0,1]", "row_half_mirror", "row_mirror"):
            a("s_nop 1"); a(f"v_add_f32_dpp v4, v4, v4 {m} row_mask:0xf bank_mask:0xf")
        a("s_nop 1")
        for q in range(4): a(f"v_readlane_b32 s{4+q}, v4, {16*q}")
        a("s_nop 1")
        a("v_mov_b32 v5, s4"); a("v_add_f32 v5, s5, v5"); a("v_add_f32 v5, s6, v5"); a("v_add_f32 v5, s7, v5")
        a(f"v_cmp_eq_u32 vcc, {t}, v1"); a("s_nop 1"); a("v_cndmask_b32 v6, v6, v5, vcc")
    a(f"v_mul_f32 v6, {f32(-math.log2(math.e))}, v6")
    a("v_exp_f32 v6, v6"); a("s_nop 0"); a("v_add_f32 v6, 1.0, v6"); a("v_rcp_f32 v6, v6")
    a("s_lshl_b32 s3, s37, 1"); a("v_add_u32 v7, s3, v1"); a("v_lshlrev_b32 v7, 2, v7")
    a("v_cmp_gt_u32 vcc, 2, v1"); a("s_and_saveexec_b64 s[38:39], vcc")
    a("buffer_store_dword v6, v7, s[20:23], 0 offen")
    a.label(f"{name}_end"); a("s_endpgm")
    return dict(name=name, nv=56, acc_off=56, grid=256, block=256, lds=0)

def phase_g1(a, name="g1"):
    cfgN = GemmCfg(256, 256, 2, 2, native_a=False, swap=False, stages=2, ms=16)
    cfgS = GemmCfg(256, 256, 2, 2, native_a=False, swap=True, stages=2, ms=16)
    V = RegAlloc(0, 256, "v"); S = RegAlloc(36, 100, "s")
    vT = V.alloc("T", 16, 4)
    core = Core4(a, cfgN, V, S)
    vlane = V.alloc("lane"); vout = V.alloc("vout"); vc1 = V.alloc("c1", 2, 2)
    vpf = V.alloc("vpf"); vdum = V.alloc("vdum")
    A = RegAlloc(core.NA, 256, "a")
    vt = [vT + 4, vT + 5, vT + 6, vT + 7]
    s_wave = S_WAVE; s_wt = S.alloc("wt"); s_wn = S.alloc("wn")
    s_cur = S.alloc("cur"); s_nxt = S.alloc("nxt"); s_nx2 = S.alloc("nx2"); s_sig = S.alloc("sig")
    s_ab, s_lda, s_bb, s_ldw = 21, 26, 27, 30
    sO = S.alloc("srdO", 4, 4); sPF = S.alloc("srdPF", 4, 4); sF = S.alloc("srdF", 4, 4)
    s_pf2 = 20; s_c = 18
    sD = S.alloc("srdD", 4, 4); s_ok = S.alloc("initok"); s_dw = S.alloc("dbgw"); s_dl = S.alloc("dbgl")
    aI = A.alloc("init")
    a("s_load_dwordx16 s[8:23], s[0:1], 0")
    a("s_load_dwordx8 s[24:31], s[0:1], 64")
    a("s_load_dwordx4 s[32:35], s[0:1], 96")
    a(f"v_and_b32 {vr(vlane)}, 63, v0")
    a(f"v_lshrrev_b32 {vr(vt[0])}, 6, v0")
    a("s_nop 0")
    a(f"v_readfirstlane_b32 {sr(s_wave)}, {vr(vt[0])}")
    a("s_nop 3")
    a(f"s_lshr_b32 {sr(s_wt)}, {sr(s_wave)}, 1")
    a(f"s_and_b32 {sr(s_wn)}, {sr(s_wave)}, 1")
    a("s_and_b32 s3, s2, 7"); a("s_lshr_b32 s4, s2, 3")
    a("s_lshr_b32 s5, s4, 3"); a("s_and_b32 s6, s4, 7")
    a("s_lshl_b32 s7, s3, 1"); a(f"s_and_b32 {sr(s_cur)}, s5, 1"); a(f"s_add_u32 s7, s7, {sr(s_cur)}")
    a("s_lshl_b32 s7, s7, 3"); a("s_add_u32 s7, s7, s6"); a("s_add_u32 s7, s7, 0x400")
    a(f"s_mul_i32 {sr(s_nx2)}, s3, 28"); a(f"s_add_u32 {sr(s_nx2)}, {sr(s_nx2)}, s4"); a(f"s_add_u32 {sr(s_nx2)}, {sr(s_nx2)}, 0x700")
    a("s_cmp_lt_u32 s4, 28"); a(f"s_cselect_b32 {sr(s_nx2)}, {sr(s_nx2)}, 0")
    a("s_add_u32 s3, s7, 0x100"); a("s_add_u32 s4, s7, 0x200")
    a("s_cmp_lt_u32 s5, 2")
    a(f"s_cselect_b32 {sr(s_cur)}, s7, s3")
    a(f"s_cselect_b32 {sr(s_nxt)}, {sr(s_nx2)}, s4")
    a(f"s_cselect_b32 {sr(s_nx2)}, 0, {sr(s_nx2)}")
    a(f"s_brev_b32 {sr(s_sig)}, 1")
    c1 = -2.0 * math.sqrt(2.0 / math.pi) * math.log2(math.e); c2 = c1 * 0.044715
    uid = [0]
    def fields(code):
        a(f"s_bfe_u32 s5, {sr(code)}, 0x20008"); a(f"s_bfe_u32 s6, {sr(code)}, 0x50003")
    def decodeB(sB):
        uid[0] += 1; L = f"{name}_db{uid[0]}"
        a("s_cmp_eq_u32 s5, 3"); a(f"s_cbranch_scc1 {L}_gu")
        a(f"s_mov_b32 {sr(sB)}, s12"); a(f"s_mov_b32 {sr(sB+1)}, s13"); a(f"s_mov_b32 {sr(sB+2)}, {1024*8192}")
        a("s_cmp_eq_u32 s5, 1")
        a(f"s_cselect_b32 {sr(sB)}, s14, {sr(sB)}"); a(f"s_cselect_b32 {sr(sB+1)}, s15, {sr(sB+1)}")
        a(f"s_cselect_b32 {sr(sB+2)}, {512*8192}, {sr(sB+2)}")
        a("s_cmp_eq_u32 s5, 2")
        a(f"s_cselect_b32 {sr(sB)}, s16, {sr(sB)}"); a(f"s_cselect_b32 {sr(sB+1)}, s17, {sr(sB+1)}")
        a(f"s_cselect_b32 {sr(sB+2)}, {512*8192}, {sr(sB+2)}")
        a(f"s_mov_b32 {sr(s_ldw)}, 8192")
        a(f"s_lshl_b32 {sr(s_bb)}, s6, 9"); a(f"s_lshl_b32 s3, {sr(s_wave)}, 7"); a(f"s_add_u32 {sr(s_bb)}, {sr(s_bb)}, s3")
        a(f"s_branch {L}_src")
        a.label(f"{L}_gu")
        a(f"s_cmp_eq_u32 {sr(s_wn)}, 0")
        a(f"s_cselect_b32 {sr(sB)}, s22, s24"); a(f"s_cselect_b32 {sr(sB+1)}, s23, s25")
        a(f"s_mov_b32 {sr(sB+2)}, {1024*7168}")
        a(f"s_mov_b32 {sr(s_ldw)}, 7168")
        a(f"s_lshl_b32 {sr(s_bb)}, s6, 8"); a(f"s_lshl_b32 s3, {sr(s_wt)}, 7"); a(f"s_add_u32 {sr(s_bb)}, {sr(s_bb)}, s3")
        a.label(f"{L}_src")
        a(f"s_mov_b32 {sr(sB+3)}, 0x20000")
    def set_pf(code):
        fields(code); decodeB(sPF)
        a(f"s_cmp_eq_u32 {sr(code)}, 0"); a(f"s_cselect_b32 {sr(sPF+2)}, 0, {sr(sPF+2)}")
        a(f"v_lshrrev_b32 {vr(vpf)}, 3, {vr(vlane)}"); a(f"v_lshlrev_b32 {vr(vpf)}, 6, {vr(vpf)}")
        a(f"v_and_b32 {vr(vt[3])}, 7, {vr(vlane)}")
        a(f"s_and_b32 s3, {sr(code)}, 7"); a("s_lshl_b32 s3, s3, 3")
        a(f"v_add3_u32 {vr(vpf)}, {vr(vpf)}, {vr(vt[3])}, s3")
        a(f"v_mul_lo_u32 {vr(vpf)}, {vr(vpf)}, {sr(s_ldw)}")
        a(f"v_add_u32 {vr(vpf)}, {sr(s_bb)}, {vr(vpf)}")
        a(f"v_bfrev_b32 {vr(vt[3])}, 1")
        a(f"v_cmp_gt_u32 vcc, 16, {vr(vlane)}")
        a(f"s_lshl_b32 {sr(s_pf2)}, {sr(s_ldw)}, 7"); a("s_nop 0")
        a(f"v_cndmask_b32 {vr(vpf)}, {vr(vt[3])}, {vr(vpf)}, vcc")
    def touchW():
        return [f"buffer_load_dword {vr(vdum)}, {vr(vpf)}, {sr(sPF,4)}, 0 offen", f"v_add_u32 {vr(vpf)}, {sr(s_pf2)}, {vr(vpf)}"]
    def initload():
        return [f"buffer_load_dword {ar(aI)}, {vr(vout)}, {sr(sD,4)}, {sr(s_dl)} offen sc1"]
    def set_dma_params(code, always=False):
        uid[0] += 1; L = f"{name}_sp{uid[0]}"
        if not always:
            a(f"s_cmp_eq_u32 {sr(code)}, 0"); a(f"s_cbranch_scc0 {L}_valid")
            a(f"s_mov_b32 {sr(core.sA+2)}, 0"); a(f"s_mov_b32 {sr(core.sB+2)}, 0")
            a(f"s_branch {L}_done")
            a.label(f"{L}_valid")
        fields(code)
        a("s_sub_u32 s7, s5, 1"); a("s_cmp_lt_u32 s7, 2")
        a(f"s_cselect_b32 {sr(core.sA)}, s10, s8"); a(f"s_cselect_b32 {sr(core.sA+1)}, s11, s9")
        a(f"s_mov_b32 s7, {2048*512*2}"); a(f"s_cselect_b32 {sr(core.sA+2)}, s7, {2048*1024*2}")
        a(f"s_mov_b32 {sr(core.sA+3)}, 0x20000")
        a("s_mov_b32 s7, 1024"); a(f"s_cselect_b32 {sr(s_lda)}, s7, 2048")
        decodeB(core.sB)
        a(f"s_and_b32 s3, {sr(code)}, 7"); a("s_lshl_b32 s3, s3, 8")
        a(f"s_mul_i32 {sr(s_ab)}, s3, {sr(s_lda)}")
        core.setup_src(vlane, s_wave, s_ab, s_lda, s_bb, s_ldw, vt)
        a.label(f"{L}_done")
    def signal():
        return ["s_mov_b64 exec, 1",
                f"buffer_store_dword {vr(vc1)}, {vr(vlane)}, {sr(sF,4)}, {sr(s_sig)} offen sc1",
                f"buffer_store_byte {vr(vc1)}, {vr(vlane)}, {sr(sD,4)}, {sr(s_dw)} offen sc1",
                "s_mov_b64 exec, -1", f"s_brev_b32 {sr(s_dw)}, 1"]
    a("s_waitcnt lgkmcnt(0)")
    set_dma_params(s_cur, True)
    core.setup_lane_consts(vlane, s_wave, s_wt, s_wn, vt)
    core.prologue_dma()
    a(f"v_mov_b32 {vr(vc1)}, {f32(c1)}"); a(f"v_mov_b32 {vr(vc1+1)}, {f32(c1)}")
    srd(a, sF, 34, 35, FLAG_BYTES, WS_FLAG)
    set_pf(s_cur)
    a(f"v_add_u32 {vr(vpf)}, {sr(s_pf2)}, {vr(vpf)}")
    a(touchW())
    srd(a, sD, 32, 33, 256)
    a(f"s_mov_b32 {sr(s_ok)}, 0"); a(f"s_brev_b32 {sr(s_dl)}, 1")
    a(f"s_brev_b32 {sr(s_dw)}, 1"); a(f"s_cmp_eq_u32 {sr(s_wave)}, 0"); a(f"s_cselect_b32 {sr(s_dw)}, s2, {sr(s_dw)}")
    assert struct.pack("<f", c1)[0] != 0
    a("s_lshl_b32 s3, s2, 2"); a(f"s_add_u32 s3, s3, {sr(s_wave)}"); a("s_lshl_b32 s3, s3, 5")
    a(f"v_lshlrev_b32 {vr(vout)}, 2, {vr(vlane)}"); a(f"v_mov_b32 {vr(vt[1])}, 0")
    a("s_mov_b64 exec, 0xff")
    a(f"buffer_store_dword {vr(vt[1])}, {vr(vout)}, {sr(sF,4)}, s3 offen sc1")
    a("s_mov_b64 exec, -1")
    a("s_and_b32 s3, s2, 7"); a("s_lshl_b32 s3, s3, 2"); a("s_lshr_b32 s4, s2, 6"); a("s_add_u32 s3, s3, s4")
    a("s_lshl_b32 s3, s3, 2"); a(f"s_add_u32 s3, s3, {sr(s_wave)}"); a("s_lshl_b32 s3, s3, 1")
    a("s_bfe_u32 s4, s2, 0x30003"); a("s_lshl_b32 s4, s4, 8"); a("s_add_u32 s3, s3, s4")
    a(f"v_lshlrev_b32 {vr(vt[0])}, 7, {vr(vlane)}")
    a("s_lshl_b32 s4, s3, 11")
    a(f"s_add_u32 {sr(sO)}, s8, s4"); a(f"s_addc_u32 {sr(sO+1)}, s9, 0"); a(f"s_mov_b32 {sr(sO+2)}, 4096"); a(f"s_mov_b32 {sr(sO+3)}, 0x20000")
    a(f"buffer_load_dword {vr(vdum)}, {vr(vt[0])}, {sr(sO,4)}, 0 offen")
    a("s_lshl_b32 s4, s3, 10")
    a(f"s_add_u32 {sr(sO)}, s10, s4"); a(f"s_addc_u32 {sr(sO+1)}, s11, 0"); a(f"s_mov_b32 {sr(sO+2)}, 2048")
    a(f"buffer_load_dword {vr(vdum)}, {vr(vt[0])}, {sr(sO,4)}, 0 offen")
    a(touchW())
    a("s_bfe_u32 s31, s2, 0x20003"); a("s_lshl_b32 s31, s31, 2"); a(f"s_add_u32 s31, s31, {sr(s_wave)}")
    codepf.BACK["mg"] = True
    codepf.code_touch(a, KNAME, "mega_code_end", vlane, vt[0], vdum, "s31", "mg")
    a(f"s_waitcnt vmcnt({cfgN.PB + 6})")
    a("s_barrier")
    a(core.xreads(0)); a(core.wreads(0, 0)); a(core.wreads(0, 1))
    a("s_waitcnt lgkmcnt(0)")
    a("s_barrier")
    a.label(f"{name}_tile")
    a(f"v_lshlrev_b32 {vr(vout)}, 2, {vr(vlane)}")
    a(f"s_bfe_u32 s5, {sr(s_cur)}, 0x20008")
    a("s_sub_u32 s7, s5, 1"); a("s_cmp_lt_u32 s7, 2")
    a(f"s_cselect_b32 {sr(core.sLoop)}, 3, 7")
    a("s_cmp_eq_u32 s5, 2")
    a(f"s_cbranch_scc1 {name}_S_first")
    def body(var, cfg):
        core.c = cfg
        def trip(first):
            core.step3(0, True, True, True, True, 2, extra=touchW() + initload(), post=signal() if first else None)
            core.step3(1, True, True, True, True, 0)
        a.label(f"{name}_{var}_first")
        core.zero_first = True; core._hist = [(4, 0), (4, 0)]
        trip(True)
        core.zero_first = False
        a(f"s_branch {name}_{var}_ctl")
        a.label(f"{name}_{var}_loop")
        trip(False)
        a(f"s_sub_u32 {sr(core.sLoop)}, {sr(core.sLoop)}, 1")
        a.label(f"{name}_{var}_ctl")
        a(f"s_cmp_gt_u32 {sr(core.sLoop)}, 3"); a(f"s_cbranch_scc1 {name}_{var}_loop")
        a(f"s_cmp_eq_u32 {sr(core.sLoop)}, 2"); a(f"s_cbranch_scc1 {name}_{var}_loop")
        a(f"s_cmp_eq_u32 {sr(core.sLoop)}, 0"); a(f"s_cbranch_scc1 {name}_{var}_epi")
        a(f"s_cmp_eq_u32 {sr(core.sLoop)}, 1"); a(f"s_cbranch_scc1 {name}_{var}_sw")
        set_pf(s_nxt)
        a(f"s_branch {name}_{var}_loop")
        a.label(f"{name}_{var}_sw")
        a(f"s_mov_b32 {sr(s_dl)}, 0")
        set_dma_params(s_nxt)
        a(f"s_branch {name}_{var}_loop")
        a.label(f"{name}_{var}_epi")
        core.c = cfgN
    def src_regs(blocks, tmp):
        regs = []
        for n_, (i, j) in enumerate(blocks):
            for r in range(4):
                if core.in_v(i): regs.append(core.accidx(i, j, r))
                else:
                    a(f"v_accvgpr_read_b32 {vr(tmp + n_*4 + r)}, {ar(core.accidx(i, j, r))}")
                    regs.append(tmp + n_ * 4 + r)
        return regs
    def head_base():
        fields(s_cur)
        a("s_lshl_b32 s3, s6, 1"); a(f"s_add_u32 s3, s3, {sr(s_wn)}"); a("s_lshl_b32 s3, s3, 19")
        a(f"s_and_b32 s7, {sr(s_cur)}, 7"); a("s_lshl_b32 s4, s7, 16"); a("s_add_u32 s3, s3, s4")
        a(f"s_lshl_b32 s4, {sr(s_wt)}, 15"); a("s_add_u32 s3, s3, s4")
        a(f"v_lshlrev_b32 {vr(vout)}, 4, {vr(vlane)}"); a(f"v_add_u32 {vr(vout)}, s3, {vr(vout)}")
        a("s_lshl_b32 s4, s5, 24")
        a(f"s_add_u32 {sr(sO)}, s34, s4"); a(f"s_addc_u32 {sr(sO+1)}, s35, 0")
        a(f"s_mov_b32 {sr(sO+2)}, {16<<20}"); a(f"s_mov_b32 {sr(sO+3)}, 0x20000")
        a("s_lshl_b32 s3, s5, 3"); a("s_add_u32 s3, s3, s7"); a("s_lshl_b32 s3, s3, 2"); a(f"s_add_u32 s3, s3, {sr(s_wave)}"); a("s_lshl_b32 s3, s3, 2")
        a("s_lshl_b32 s4, s6, 9"); a(f"s_add_u32 {sr(s_sig)}, s3, s4")
    body("N", cfgN)
    a(f"s_bfe_u32 s5, {sr(s_cur)}, 0x20008")
    a("s_cmp_eq_u32 s5, 3"); a(f"s_cbranch_scc1 {name}_epi_gu")
    head_base()
    a("s_cmp_eq_u32 s5, 1"); a(f"s_cbranch_scc1 {name}_epi_k")
    def epi_qk(scale):
        cnt = 0
        if scale: a(f"s_mov_b32 {sr(s_c)}, {f32(QSCALE)}"); a(f"s_mov_b32 {sr(s_c+1)}, {f32(QSCALE)}")
        for u in range(4):
            for j in range(8):
                b = vT + (cnt % 2) * 4; cnt += 1
                R = src_regs([(2 * u, j), (2 * u + 1, j)], vT + 8)
                if scale:
                    for p in range(4): a(f"v_pk_mul_f32 {vr(R[2*p],2)}, {vr(R[2*p],2)}, {sr(s_c,2)}")
                for p in range(4): a(f"v_cvt_pk_bf16_f32 {vr(b+p)}, {vr(R[2*p])}, {vr(R[2*p+1])}")
                a(f"s_mov_b32 s3, {j*4096}")
                a(f"buffer_store_dwordx4 {vr(b,4)}, {vr(vout)}, {sr(sO,4)}, s3 offen offset:{u*1024}{ST}")
    epi_qk(True); a(f"s_branch {name}_next")
    a.label(f"{name}_epi_k"); epi_qk(False); a(f"s_branch {name}_next")
    a.label(f"{name}_epi_gu")
    fields(s_cur)
    a(f"s_and_b32 s7, {sr(s_cur)}, 7")
    a("s_lshl_b32 s3, s7, 4"); a(f"s_lshl_b32 s4, {sr(s_wt)}, 3"); a("s_add_u32 s3, s3, s4")
    a(f"s_mul_i32 s3, s3, {Z_KB*1024}")
    a("s_lshl_b32 s4, s6, 12"); a("s_add_u32 s3, s3, s4")
    a(f"s_lshl_b32 s4, {sr(s_wn)}, 11"); a("s_add_u32 s3, s3, s4")
    a(f"v_lshlrev_b32 {vr(vout)}, 4, {vr(vlane)}"); a(f"v_add_u32 {vr(vout)}, s3, {vr(vout)}")
    srd(a, sO, 34, 35, 128 * Z_KB * 1024, WS_Z)
    a("s_lshl_b32 s3, s6, 2"); a(f"s_add_u32 s3, s3, {sr(s_wave)}"); a("s_lshl_b32 s3, s3, 2")
    a("s_lshl_b32 s4, s7, 9"); a("s_add_u32 s3, s3, s4"); a(f"s_add_u32 {sr(s_sig)}, s3, {F_GU}")
    a(f"s_mov_b32 {sr(s_c)}, {f32(c2)}"); a(f"s_mov_b32 {sr(s_c+1)}, {f32(c2)}")
    cnt = 0
    for u in range(2):
        for j in range(8):
            b = vT + (cnt % 2) * 4; cnt += 1
            X = src_regs([(2 * u, j), (2 * u + 1, j)], None)
            E = vT + 8
            for p in range(4): a(f"v_pk_mul_f32 {vr(E+2*p,2)}, {vr(X[2*p],2)}, {vr(X[2*p],2)}")
            for p in range(4): a(f"v_pk_fma_f32 {vr(E+2*p,2)}, {vr(E+2*p,2)}, {sr(s_c,2)}, {vr(vc1,2)}")
            for p in range(4): a(f"v_pk_mul_f32 {vr(E+2*p,2)}, {vr(E+2*p,2)}, {vr(X[2*p],2)}")
            for e in range(8): a(f"v_exp_f32 {vr(E+e)}, {vr(E+e)}")
            for n_, ib in enumerate((4 + 2 * u, 5 + 2 * u)):
                if core.in_v(ib):
                    for p in range(2): a(f"v_pk_mul_f32 {vr(X[n_*4+2*p],2)}, {vr(X[n_*4+2*p],2)}, {vr(core.accidx(ib,j,2*p),2)}")
                else:
                    tmp = core.accidx(4 + 2 * u, j, 0)
                    for r in range(4): a(f"v_accvgpr_read_b32 {vr(tmp+r)}, {ar(core.accidx(ib,j,r))}")
                    for p in range(2): a(f"v_pk_mul_f32 {vr(X[n_*4+2*p],2)}, {vr(X[n_*4+2*p],2)}, {vr(tmp+2*p,2)}")
            for p in range(4): a(f"v_pk_add_f32 {vr(E+2*p,2)}, {vr(E+2*p,2)}, 1.0 op_sel_hi:[1,0]")
            for e in range(8): a(f"v_rcp_f32 {vr(E+e)}, {vr(E+e)}")
            a(f"s_mov_b32 s3, {j*Z_KB*1024}")
            for p in range(4): a(f"v_pk_mul_f32 {vr(X[2*p],2)}, {vr(X[2*p],2)}, {vr(E+2*p,2)}")
            for p in range(4): a(f"v_cvt_pk_bf16_f32 {vr(b+p)}, {vr(X[2*p])}, {vr(X[2*p+1])}")
            a(f"buffer_store_dwordx4 {vr(b,4)}, {vr(vout)}, {sr(sO,4)}, s3 offen offset:{u*1024}{ST}")
    a(f"s_branch {name}_next")
    body("S", cfgS)
    head_base()
    cnt = 0
    for i in range(8):
        for uu in range(4):
            b = vT + (cnt % 2) * 4; cnt += 1
            R = src_regs([(i, 2 * uu), (i, 2 * uu + 1)], vT + 8)
            for p in range(4): a(f"v_cvt_pk_bf16_f32 {vr(b+p)}, {vr(R[2*p])}, {vr(R[2*p+1])}")
            a(f"s_mov_b32 s3, {uu*8192 + (i//4)*4096}")
            a(f"buffer_store_dwordx4 {vr(b,4)}, {vr(vout)}, {sr(sO,4)}, s3 offen offset:{(i%4)*1024}{ST}")
    a.label(f"{name}_next")
    a(f"s_cmp_lg_u32 {sr(s_ok)}, 0"); a(f"s_cbranch_scc1 {name}_iok")
    a(f"v_accvgpr_read_b32 {vr(vT+8)}, {ar(aI)}")
    a("s_mov_b32 s3, 0")
    a.label(f"{name}_ichk")
    a(f"v_subrev_u32 {vr(vT+9)}, 0x01010101, {vr(vT+8)}")
    a(f"v_not_b32 {vr(vT+8)}, {vr(vT+8)}")
    a(f"v_and_b32 {vr(vT+8)}, {vr(vT+8)}, {vr(vT+9)}")
    a(f"v_and_b32 {vr(vT+8)}, 0x80808080, {vr(vT+8)}")
    a(f"v_cmp_ne_u32 vcc, 0, {vr(vT+8)}")
    a(f"s_cbranch_vccz {name}_iset")
    a("s_sleep 4")
    a(f"v_lshlrev_b32 {vr(vT+9)}, 2, {vr(vlane)}")
    a(f"buffer_load_dword {vr(vT+8)}, {vr(vT+9)}, {sr(sD,4)}, 0 offen sc1")
    a("s_waitcnt vmcnt(0)")
    a("s_add_u32 s3, s3, 1"); a(f"s_cmp_lt_u32 s3, {SPIN_MAX}"); a(f"s_cbranch_scc1 {name}_ichk")
    a.label(f"{name}_iset")
    a(f"s_mov_b32 {sr(s_ok)}, 1"); a(f"s_mov_b32 {sr(sD+2)}, 0")
    a.label(f"{name}_iok")
    a(f"s_mov_b32 {sr(s_cur)}, {sr(s_nxt)}"); a(f"s_mov_b32 {sr(s_nxt)}, {sr(s_nx2)}"); a(f"s_mov_b32 {sr(s_nx2)}, 0")
    a(f"s_cmp_lg_u32 {sr(s_cur)}, 0"); a(f"s_cbranch_scc1 {name}_tile")
    a("s_waitcnt vmcnt(0) lgkmcnt(0)")
    a(signal())
    a("s_lshr_b32 s4, s2, 3"); a("s_cmp_lt_u32 s4, 28"); a(f"s_cbranch_scc1 {name}_nog")
    a("s_and_b32 s3, s2, 7"); a("s_sub_u32 s4, s4, 28")
    a("s_lshl_b32 s5, s4, 2"); a(f"s_add_u32 s5, s5, {sr(s_wave)}"); a("s_add_u32 s5, s5, 112"); a("s_lshl_b32 s5, s5, 2")
    a("s_lshl_b32 s6, s3, 9"); a("s_add_u32 s5, s5, s6"); a(f"s_add_u32 {sr(s_sig)}, s5, {F_GU}")
    a("s_lshl_b32 s3, s3, 2"); a("s_add_u32 s3, s3, s4"); a("s_lshl_b32 s3, s3, 6")
    a(f"s_lshl_b32 s4, {sr(s_wave)}, 4"); a("s_add_u32 s3, s3, s4")
    srd(a, core.sA, 8, 9, 2048 * 1024 * 2); srd(a, core.sB, 28, 29, 2048); srd(a, sO, 34, 35, 8192, WS_G)
    G = 8; XB = 32
    a(f"v_lshlrev_b32 v2, 5, {vr(vlane)}")
    a(f"buffer_load_dwordx4 v[{G}:{G+3}], v2, {sr(core.sB,4)}, 0 offen"); a(f"buffer_load_dwordx4 v[{G+4}:{G+7}], v2, {sr(core.sB,4)}, 0 offen offset:16")
    a("s_lshl_b32 s4, s3, 11"); a("v_add_u32 v3, s4, v2")
    for t in range(16):
        a(f"s_mov_b32 s5, {t*2048}")
        a(f"buffer_load_dwordx4 v[{XB+8*t}:{XB+8*t+3}], v3, {sr(core.sA,4)}, s5 offen")
        a(f"buffer_load_dwordx4 v[{XB+8*t+4}:{XB+8*t+7}], v3, {sr(core.sA,4)}, s5 offen offset:16")
    a("s_waitcnt vmcnt(32)")
    for r in range(8):
        a(f"v_lshlrev_b32 v{16+2*r}, 16, v{G+r}"); a(f"v_and_b32 v{17+2*r}, 0xffff0000, v{G+r}")
    a("v_mov_b32 v6, 0")
    for t in range(16):
        a(f"s_waitcnt vmcnt({2*(15-t)})")
        for r in range(8):
            x = XB + 8 * t + r
            a(f"v_lshlrev_b32 v5, 16, v{x}")
            a(f"v_mul_f32 v4, v5, v{16+2*r}" if r == 0 else f"v_fmac_f32 v4, v5, v{16+2*r}")
            a(f"v_and_b32 v5, 0xffff0000, v{x}"); a(f"v_fmac_f32 v4, v5, v{17+2*r}")
        for m in ("quad_perm:[1,0,3,2]", "quad_perm:[2,3,0,1]", "row_half_mirror", "row_mirror"):
            a("s_nop 1"); a(f"v_add_f32_dpp v4, v4, v4 {m} row_mask:0xf bank_mask:0xf")
        a("s_nop 1")
        for q in range(4): a(f"v_readlane_b32 s{4+q}, v4, {16*q}")
        a("s_nop 1")
        a("v_mov_b32 v5, s4"); a("v_add_f32 v5, s5, v5"); a("v_add_f32 v5, s6, v5"); a("v_add_f32 v5, s7, v5")
        a(f"v_cmp_eq_u32 vcc, {t}, {vr(vlane)}"); a("s_nop 1"); a("v_cndmask_b32 v6, v6, v5, vcc")
    a(f"v_mul_f32 v6, {f32(-math.log2(math.e))}, v6")
    a("v_exp_f32 v6, v6"); a("s_nop 0"); a("v_add_f32 v6, 1.0, v6"); a("v_rcp_f32 v6, v6")
    a(f"v_add_u32 v7, s3, {vr(vlane)}"); a("v_lshlrev_b32 v7, 2, v7")
    a("s_mov_b64 exec, 0xffff")
    a(f"buffer_store_dword v6, v7, {sr(sO,4)}, 0 offen sc1")
    a("s_mov_b64 exec, -1")
    a("s_waitcnt vmcnt(0)")
    a(signal())
    a.label(f"{name}_nog")
    a("s_barrier")

def phase_g3(a, name="g3"):
    cfg = GemmCfg(128, 128, 2, 2, native_a=True, swap=False, stages=4, ms=16)
    V = RegAlloc(4, 256, "v"); S = RegAlloc(36, 100, "s")
    core = GemmCore3(a, cfg, V, S, False)
    accH = core.accbase; accA = V.alloc("acc2", 64, 4)
    vw = V.alloc("vw", 4, 2)
    vlane = V.alloc("lane"); vt = [V.alloc(f"t{i}") for i in range(4)]
    vout = V.alloc("vout"); vg = V.alloc("g", 4); vpart = V.alloc("vpart")
    vpa = V.alloc("vpa"); vpw = V.alloc("vpw"); vdum = V.alloc("vdum"); vflag = V.alloc("vflag"); vfa = V.alloc("vfa")
    s_wave = S_WAVE; s_wt = S.alloc("wt"); s_wn = S.alloc("wn")
    s_tm = S.alloc("tm"); s_tn = S.alloc("tn"); s_half = S.alloc("half")
    s_ab = S.alloc("ab"); s_lda = S.alloc("lda"); s_bb = S.alloc("bb"); s_ldw = S.alloc("ldw"); s_fo = S.alloc("fo"); s_pid = S.alloc("pid")
    s_dA = S.alloc("dA"); s_dB = S.alloc("dB")
    sO = S.alloc("srdO", 4, 4); sG = S.alloc("srdG", 4, 4); sP = S.alloc("srdP", 4, 4); sF = S.alloc("srdF", 4, 4); sBT = S.alloc("srdBT", 4, 4)
    PA, PB, SS = cfg.PA, cfg.PB, cfg.S
    a("s_load_dwordx16 s[8:23], s[0:1], 0")
    a("s_load_dwordx8 s[24:31], s[0:1], 64")
    a("s_load_dwordx4 s[32:35], s[0:1], 96")
    lane_id(a, vlane)
    a(f"s_lshr_b32 {sr(s_wt)}, {sr(s_wave)}, 1"); a(f"s_and_b32 {sr(s_wn)}, {sr(s_wave)}, 1")
    a(f"s_and_b32 {sr(s_half)}, s2, 1")
    a("s_lshr_b32 s4, s2, 3")
    a("s_bfe_u32 s5, s2, 0x10002"); a("s_lshl_b32 s5, s5, 3"); a("s_and_b32 s6, s4, 7"); a(f"s_add_u32 {sr(s_tm)}, s5, s6")
    a("s_bfe_u32 s5, s2, 0x10001"); a("s_lshl_b32 s5, s5, 2"); a("s_lshr_b32 s6, s4, 3"); a(f"s_add_u32 {sr(s_tn)}, s5, s6")
    a("s_waitcnt lgkmcnt(0)")
    srd(a, sF, 34, 35, FLAG_BYTES, WS_FLAG)
    a(f"s_lshr_b32 {sr(s_fo)}, {sr(s_tm)}, 1"); a(f"s_lshl_b32 {sr(s_fo)}, {sr(s_fo)}, 9"); a(f"s_add_u32 {sr(s_fo)}, {sr(s_fo)}, {F_GU}")
    wait_flags(a, f"{name}_w0", sF, sr(s_fo), 64, True, vlane, vw)
    srd(a, core.sA, 34, 35, 128 * Z_KB * 1024, WS_Z)
    srd(a, core.sB, 26, 27, 3584 * 2048); srd(a, sBT, 26, 27, 3584 * 2048)
    a(f"s_mov_b32 {sr(s_lda)}, {Z_KB*1024}"); a(f"s_mov_b32 {sr(s_ldw)}, 2048")
    a(f"s_mul_i32 {sr(s_ab)}, {sr(s_tm)}, {8*Z_KB*1024}")
    a(f"s_mul_i32 s3, {sr(s_half)}, {28*2048}"); a(f"s_add_u32 {sr(s_ab)}, {sr(s_ab)}, s3")
    a(f"s_mul_i32 s5, {sr(s_half)}, {28*64*2048}")
    a(f"s_lshl_b32 s6, {sr(s_tn)}, 8"); a("s_add_u32 s7, s5, s6")
    a(f"s_lshl_b32 s3, {sr(s_wt)}, 7"); a(f"s_add_u32 {sr(s_bb)}, s7, s3")
    core.setup_src(vlane, s_wave, s_ab, s_lda, s_bb, s_ldw, vt)
    core.setup_lane_consts(vlane, s_wave, s_wt, s_wn, vt)
    core.prologue_dma()
    a(f"s_mul_i32 {sr(s_dA)}, {sr(s_half)}, {4*2048}"); a(f"s_add_u32 {sr(s_dA)}, {sr(s_dA)}, {112*1024 - 28*2048}")
    a(f"s_mul_i32 {sr(s_dB)}, {sr(s_half)}, {4*64*2048}"); a(f"s_sub_u32 {sr(s_dB)}, {sr(s_dB)}, {28*64*2048}")
    srd(a, sO, 30, 31, 2048 * 1024 * 2); srd(a, sG, 34, 35, 8192, WS_G); srd(a, sP, 34, 35, 128 * 65536, WS_PART)
    a(f"s_and_b32 s3, {sr(s_tn)}, 3"); a("s_lshl_b32 s3, s3, 1"); a(f"s_add_u32 s3, s3, {sr(s_wt)}")
    a(f"s_mul_i32 s3, s3, {sr(s_lda)}"); a(f"s_add_u32 s3, s3, {sr(s_ab)}")
    a(f"s_lshl_b32 s4, {sr(s_wn)}, 12"); a("s_add_u32 s3, s3, s4")
    a(f"v_lshlrev_b32 {vr(vpa)}, 7, {vr(vlane)}"); a(f"v_add_u32 {vr(vpa)}, s3, {vr(vpa)}")
    a(f"v_bfrev_b32 {vr(vt[3])}, 1")
    a(f"v_cmp_gt_u32 vcc, 32, {vr(vlane)}"); a("s_nop 1")
    a(f"v_cndmask_b32 {vr(vpa)}, {vr(vt[3])}, {vr(vpa)}, vcc")
    a(f"s_and_b32 s3, {sr(s_tm)}, 7"); a("s_lshl_b32 s3, s3, 3"); a(f"s_lshl_b32 s4, {sr(s_wave)}, 6"); a("s_add_u32 s3, s3, s4")
    a(f"v_lshrrev_b32 {vr(vpw)}, 1, {vr(vlane)}"); a(f"v_add_u32 {vr(vpw)}, s3, {vr(vpw)}")
    a(f"v_lshlrev_b32 {vr(vpw)}, 11, {vr(vpw)}")
    a(f"v_and_b32 {vr(vt[2])}, 1, {vr(vlane)}"); a(f"v_lshl_add_u32 {vr(vpw)}, {vr(vt[2])}, 7, {vr(vpw)}")
    a(f"v_add_u32 {vr(vpw)}, s7, {vr(vpw)}")
    a(f"v_cmp_gt_u32 vcc, 16, {vr(vlane)}"); a("s_nop 1")
    a(f"v_cndmask_b32 {vr(vpw)}, {vr(vt[3])}, {vr(vpw)}, vcc")
    tA = [f"buffer_load_dword {vr(vdum)}, {vr(vpa)}, {sr(core.sA,4)}, 0 offen", f"v_add_u32 {vr(vpa)}, 0x2000, {vr(vpa)}"]
    tW = [f"buffer_load_dword {vr(vdum)}, {vr(vpw)}, {sr(sBT,4)}, 0 offen", f"v_add_u32 {vr(vpw)}, {4*64*2048}, {vr(vpw)}"]
    a(tA[1]); a(tW[1]); a(tA); a(tW)
    a(f"s_lshl_b32 {sr(s_fo)}, {sr(s_tm)}, 1"); a(f"s_add_u32 {sr(s_fo)}, {sr(s_fo)}, {sr(s_half)}"); a(f"s_lshl_b32 {sr(s_fo)}, {sr(s_fo)}, 8")
    a(f"s_add_u32 {sr(s_fo)}, {sr(s_fo)}, {F_CTX}")
    a(f"v_lshlrev_b32 {vr(vfa)}, 2, {vr(vlane)}")
    tF = [f"buffer_load_dword {vr(vflag)}, {vr(vfa)}, {sr(sF,4)}, {sr(s_fo)} offen sc1"]
    a(f"s_lshl_b32 s3, {sr(s_tm)}, 7"); a(f"s_lshl_b32 s4, {sr(s_wt)}, 6"); a("s_add_u32 s3, s3, s4")
    a(f"v_and_b32 {vr(vt[0])}, 15, {vr(vlane)}"); a(f"v_add_u32 {vr(vt[0])}, s3, {vr(vt[0])}")
    a(f"v_lshlrev_b32 {vr(vt[1])}, 2, {vr(vt[0])}")
    for j in range(4): a(f"buffer_load_dword {vr(vg+j)}, {vr(vt[1])}, {sr(sG,4)}, 0 offen offset:{j*64}")
    a(f"v_lshlrev_b32 {vr(vout)}, 11, {vr(vt[0])}")
    a(f"v_lshrrev_b32 {vr(vt[2])}, 4, {vr(vlane)}")
    a(f"v_lshl_add_u32 {vr(vout)}, {vr(vt[2])}, 3, {vr(vout)}")
    a(f"s_lshl_b32 s3, {sr(s_tn)}, 8"); a(f"s_lshl_b32 s4, {sr(s_wn)}, 7"); a("s_add_u32 s3, s3, s4")
    a(f"v_add_u32 {vr(vout)}, s3, {vr(vout)}")
    a(f"s_lshl_b32 s3, {sr(s_tm)}, 3"); a(f"s_add_u32 s3, s3, {sr(s_tn)}"); a("s_lshl_b32 s3, s3, 2"); a(f"s_add_u32 {sr(s_pid)}, s3, {sr(s_wave)}")
    a(f"s_lshl_b32 s3, {sr(s_pid)}, 14"); a(f"s_lshl_b32 s4, {sr(s_half)}, 13"); a("s_add_u32 s3, s3, s4")
    a(f"v_lshlrev_b32 {vr(vpart)}, 4, {vr(vlane)}"); a(f"v_add_u32 {vr(vpart)}, s3, {vr(vpart)}")
    core.accbase = accH; core.zero_acc(); core.accbase = accA; core.zero_acc()
    a(f"s_waitcnt vmcnt({(SS-2)*(PA+PB) + PB + 6})")
    a("s_barrier")
    a(core.xreads(0)); a(core.wreads(0, 0)); a(core.wreads(0, 1))
    a("s_waitcnt lgkmcnt(0)")
    a("s_barrier")
    core._hist = [(4, 0), (4, 0)]
    def trip(extras):
        cnt = {t: sum(1 for x in e if x.startswith("buffer_")) for t, e in extras.items()}
        for t in range(4):
            nx = sum(cnt.get(u % 4, 0) for u in range(t + 2 - SS, t + 1))
            core.step3(t, True, True, True, True, (SS - 2) * (PA + PB) + nx, extra=extras.get(t))
    core.accbase = accH
    a(f"s_mov_b32 {sr(core.sLoop)}, 7")
    a.label(f"{name}_l1")
    trip({0: tA + tF, 2: tW})
    a(f"s_sub_u32 {sr(core.sLoop)}, {sr(core.sLoop)}, 1")
    a(f"s_cmp_gt_u32 {sr(core.sLoop)}, 2"); a(f"s_cbranch_scc1 {name}_l1")
    a(f"s_cmp_eq_u32 {sr(core.sLoop)}, 0"); a(f"s_cbranch_scc1 {name}_l2s")
    a(f"s_cmp_eq_u32 {sr(core.sLoop)}, 1"); a(f"s_cbranch_scc1 {name}_swd")
    a(f"v_cmp_eq_u32 vcc, 0, {vr(vflag)}")
    a(f"s_cbranch_vccz {name}_w1_ok")
    wait_flags(a, f"{name}_w1", sF, sr(s_fo), 64, False, vlane, vw)
    a(f"v_add_u32 {vr(vpa)}, {sr(s_dA)}, {vr(vpa)}"); a(f"v_add_u32 {vr(vpw)}, {sr(s_dB)}, {vr(vpw)}")
    srd(a, sBT, 18, 19, 4096 * 2048)
    a(f"s_branch {name}_l1")
    a.label(f"{name}_swd")
    a(f"v_add_u32 {vr(core.vAsrc[0])}, {sr(s_dA)}, {vr(core.vAsrc[0])}"); a(f"v_add_u32 {vr(core.vBsrc[0])}, {sr(s_dB)}, {vr(core.vBsrc[0])}")
    srd(a, core.sB, 18, 19, 4096 * 2048)
    a(f"s_branch {name}_l1")
    a.label(f"{name}_l2s")
    core.accbase = accA
    a(f"s_mov_b32 {sr(core.sLoop)}, 6")
    a.label(f"{name}_l2")
    trip({0: tA, 2: tW})
    a(f"s_sub_u32 {sr(core.sLoop)}, {sr(core.sLoop)}, 1")
    a(f"s_cmp_lg_u32 {sr(core.sLoop)}, 0"); a(f"s_cbranch_scc1 {name}_l2")
    core.tail()
    stamp(a, 4)
    a("s_nop 7")
    a("s_mov_b32 s6, 4096")
    R = core.xf[0][0][0]; W = core.wf[0][0]
    def comb(blk):
        o = blk * 4; j = blk % 4
        for r in range(4): a(f"v_sub_f32 {vr(accA+o+r)}, {vr(accA+o+r)}, {vr(accH+o+r)}")
        for r in range(4): a(f"v_fma_f32 {vr(accA+o+r)}, {vr(accA+o+r)}, {vr(vg+j)}, {vr(accH+o+r)}")
    def fin(h):
        for k in range(8):
            blk = (1 - h) * 8 + k
            comb(blk)
            a(f"buffer_store_dwordx4 {vr(accA+4*blk,4)}, {vr(vpart)}, {sr(sP,4)}, {'0' if k < 4 else 's6'} offen offset:{(k%4)*1024} sc1")
        a(f"s_lshl_b32 s3, {sr(s_pid)}, 3"); a(f"s_add_u32 {sr(s_fo)}, s3, {F_EX + 4*h}")
        for k in range(8): comb(h * 8 + k)
        a("s_waitcnt vmcnt(0)")
        a("s_mov_b64 exec, 1"); a(f"buffer_store_dword {vr(vt[3])}, {vr(vlane)}, {sr(sF,4)}, {sr(s_fo)} offen sc1"); a("s_mov_b64 exec, -1")
        a(f"s_xor_b32 {sr(s_fo)}, {sr(s_fo)}, 4")
        wait_flags(a, f"{name}_wx{h}", sF, sr(s_fo), 1, False, vlane, vw, sleep=1)
        a(f"v_xor_b32 {vr(vpart)}, 0x2000, {vr(vpart)}")
        for k in range(8):
            a(f"buffer_load_dwordx4 {vr(R+4*k,4)}, {vr(vpart)}, {sr(sP,4)}, {'0' if k < 4 else 's6'} offen offset:{(k%4)*1024} sc1")
        for k in range(8):
            blk = h * 8 + k; i, j = blk // 4, blk % 4
            a("s_waitcnt vmcnt(7)")
            b = W + (k % 4) * 8
            for r in range(4): a(f"v_add_f32 {vr(b+2+r)}, {vr(accA+4*blk+r)}, {vr(R+4*k+r)}")
            a(f"v_cvt_pk_bf16_f32 {vr(b)}, {vr(b+2)}, {vr(b+3)}"); a(f"v_cvt_pk_bf16_f32 {vr(b+1)}, {vr(b+4)}, {vr(b+5)}")
            a(f"s_mov_b32 s3, {j*16*2048}")
            a(f"buffer_store_dwordx2 {vr(b,2)}, {vr(vout)}, {sr(sO,4)}, s3 offen offset:{i*32}")
    a(f"s_cmp_lg_u32 {sr(s_half)}, 0"); a(f"s_cbranch_scc1 {name}_fin1")
    fin(0); a(f"s_branch {name}_end")
    a.label(f"{name}_fin1"); fin(1)
    a.label(f"{name}_end")

def gen_mega(a, name=KNAME):
    import sys
    from k2_gen import gen_k2
    mg = sys.modules[__name__]
    kernel_header(a, name)
    a("s_cmp_ge_u32 s2, 256"); a(f"s_cbranch_scc1 {name}_end")
    if STAMPS:
        a("v_lshrrev_b32 v1, 6, v0"); a("s_nop 0"); a(f"v_readfirstlane_b32 s{S_WAVE}, v1"); a("s_nop 3")
        stamp(a, 0)
    phase_g1(a)
    stamp(a, 1)
    gen_k2(a, "a2", mg=mg)
    stamp(a, 2)
    phase_g3(a)
    stamp(a, 5)
    a.label(f"{name}_end"); a("s_endpgm")
    a.label("mega_code_end")
    return dict(name=name, nv=512, acc_off=256, grid=256, block=256, lds=131072)

if __name__ == "__main__":
    import sys
    from gen_all import HEADER
    body = Asm()
    infos = [gen_mega(body)]
    out = HEADER
    for i in infos:
        if os.environ.get("LIST"): out += f"; @launch kernel={i['name']} grid=({i['grid']},1,1) block=({i['block']},1,1) lds={i['lds']}\n"
        else: out += f"; @launch grid=({i['grid']},1,1) block=({i['block']},1,1) lds={i['lds']}\n"
    out += '.amdgcn_target "amdgcn-amd-amdhsa--gfx950"\n' + body.text()
    d = Asm()
    for i in infos: kernel_desc(d, i["name"], i["nv"], i["acc_off"])
    open(sys.argv[1], "w").write(out + d.text())
```

```python
from asmb import *
from k1_gen import srd, f32, WS_Q, WS_K, WS_V, WS_Z, Z_KB
from k2_gen import RD, WAIT, resolve, flat, MF, BIAS, NEG
import os
from gpack import pack, kind
ST = " sc1"
DIAG = bool(os.environ.get("DIAG"))
NOTOUCH = bool(os.environ.get("NOTOUCH"))
SPLIT = int(os.environ.get("SPLIT", "4"))
NE = int(os.environ.get("NE", "5"))
AHEAD = float(os.environ.get("AHEAD", "3"))
DMA_GAP = int(os.environ.get("DMA_GAP", "4"))
NPRE = int(os.environ.get("NPRE", "10"))
LDS_ML = 131072
def O(db, qb): return (db * 4 + qb) * 4
def L(qb): return 128 + qb * 4
def Q(qb, ks): return 144 + (qb * 4 + ks) * 4
ONES = 208
def VF(k): return 212 + (k % 8) * 4

def job_word(a, mg, s_slot, dst):
    a(f"s_mov_b32 {sr(dst)}, 0")
    for k, jl in enumerate(mg.ATT_JOBS):
        assert jl[0] > 0 and all(i_ > 0 for i_ in jl[:-1])
        val = 0
        for n_, i_ in enumerate(jl): val |= (16 | i_) << (5 * n_)
        a(f"s_cmp_eq_u32 {sr(s_slot)}, {k}"); a(f"s_cselect_b32 {sr(dst)}, {val}, {sr(dst)}")

def att_pre(a, mg, vlane, v0, v1, q0, q1, q2, ws_lo):
    W = mg.S_WAVE
    srd(a, q0, ws_lo, ws_lo + 1, 16 << 20, WS_K); srd(a, q1, ws_lo, ws_lo + 1, 16 << 20, WS_V); srd(a, q2, ws_lo, ws_lo + 1, 16 << 20, WS_Q)
    a("s_and_b32 s3, s2, 7"); a("s_lshl_b32 s3, s3, 2"); a("s_bfe_u32 s4, s2, 0x20003"); a("s_add_u32 s3, s3, s4"); a("s_lshl_b32 s3, s3, 19")
    a("s_lshr_b32 s4, s2, 5")
    job_word(a, mg, 4, 5)
    a("s_and_b32 s5, s5, 15")
    a(f"s_lshl_b32 s6, s{W}, 13")
    a(f"v_lshlrev_b32 {vr(v0)}, 4, {vr(vlane)}")
    a("s_lshl_b32 s5, s5, 15"); a(f"s_and_b32 s7, s{W}, 1"); a("s_lshl_b32 s7, s7, 14"); a("s_add_u32 s5, s5, s7"); a("s_add_u32 s5, s5, s3")
    a(f"v_add_u32 {vr(v1)}, s5, {vr(v0)}")
    a("s_add_u32 s3, s3, s6"); a(f"v_add_u32 {vr(v0)}, s3, {vr(v0)}")
    def dma(q, ldsbase, off):
        for h in range(2):
            a(f"s_add_u32 m0, s6, {ldsbase + h*4096}"); a(f"s_mov_b32 s7, {off + h*4096}")
            for k in range(4): a(f"buffer_load_dwordx4 {vr(v0)}, {sr(q,4)}, s7 offen offset:{k*1024} lds")
    dma(q0, 0, 0)
    for qb in range(4):
        a(f"s_mov_b32 s7, {qb*4096}")
        for ks in range(4): a(f"buffer_load_dwordx4 {ar(Q(qb,ks),4)}, {vr(v1)}, {sr(q2,4)}, s7 offen offset:{ks*1024}")
    dma(q1, 65536, 0)
    dma(q0, 32768, 32768)

def gen_att(a, mg, name="a2"):
    V = RegAlloc(1, 256, "v"); S = RegAlloc(12, 98, "s")
    vS = V.alloc("S", 128, 4)
    def Sb(buf, kvb, qb): return vS + ((buf * 4 + kvb) * 4 + qb) * 4
    vP = V.alloc("P", 32, 4)
    def P(u, qb): return vP + (u * 4 + qb) * 4
    vK = V.alloc("K", 32, 4)
    def KF(set_, ks): return vK + (set_ * 4 + ks) * 4
    vNM = V.alloc("negm", 16, 4); vT = V.alloc("T", 16, 4); vM = V.alloc("moff", 4, 4); vD = V.alloc("delta", 4, 4)
    vlane = V.alloc("lane"); vKrd = V.alloc("Krd"); vVrd = V.alloc("Vrd"); vsrc = V.alloc("src"); vl16 = V.alloc("l16")
    vx16 = V.alloc("x16"); vx32 = V.alloc("x32"); vneg = V.alloc("neg"); vor = V.alloc("or"); vq = V.alloc("q"); vmrg = V.alloc("mrg"); vmrgR = V.alloc("mrgR")
    vpf = V.alloc("vpf"); vdum = V.alloc("vdum"); vkv = V.alloc("vkv")
    sQ = S.alloc("srdQ", 4, 4); sK = S.alloc("srdK", 4, 4); sV = S.alloc("srdV", 4, 4); sZ = S.alloc("srdZ", 4, 4)
    sPF = S.alloc("srdPF", 4, 4); sKV = S.alloc("srdKV", 4, 4); sF = S.alloc("srdF", 4, 4)
    sMD = [S.alloc(f"maskD{r}", 2, 2) for r in range(4)]; sMB = S.alloc("maskB", 2, 2)
    s_wave = mg.S_WAVE; s_qh = S.alloc("qh"); s_par = S.alloc("par"); s_head = S.alloc("head"); s_p = S.alloc("p")
    s_i = S.alloc("i"); s_iq = S.alloc("iq"); s_n = S.alloc("n"); s_g = S.alloc("gstep"); s_m0 = S.alloc("m0w"); s_hb = S.alloc("headbase")
    sPQ = [S.alloc(f"pfq{k}", 3) for k in range(2)]; s_tog = S.alloc("pftog"); s_t = S.alloc("tmp"); s_64k = S.alloc("c64k"); s_nr = S.alloc("nr48")
    s_jobs = S.alloc("jobs"); s_sig = S.alloc("sig"); s_ret = S.alloc("ret", 2, 2)
    kst = dict(j=S.alloc("kj"), o=S.alloc("ko"), e=S.alloc("ke"), srd=sK)
    vst = dict(o=S.alloc("vo"), srd=sV)
    vsrc2 = vkv

    a("s_load_dwordx2 s[4:5], s[0:1], 104"); a("s_load_dwordx2 s[8:9], s[0:1], 40"); a("s_load_dwordx2 s[10:11], s[0:1], 72")
    mg.lane_id(a, vlane)
    a(f"s_and_b32 {sr(s_qh)}, {sr(s_wave)}, 1"); a(f"s_lshr_b32 {sr(s_par)}, {sr(s_wave)}, 1")
    a("s_and_b32 s3, s2, 7"); a("s_lshl_b32 s3, s3, 2"); a("s_bfe_u32 s6, s2, 0x20003"); a(f"s_add_u32 {sr(s_head)}, s3, s6")
    a(f"s_lshr_b32 {sr(s_p)}, s2, 5")
    job_word(a, mg, s_p, s_jobs)
    a(f"s_mov_b32 {sr(s_sig)}, s{mg.S_PSIG}")
    a(f"s_lshl_b32 {sr(s_hb)}, {sr(s_head)}, 19"); a(f"s_lshl_b32 {sr(s_m0)}, {sr(s_wave)}, 13")
    a(f"s_and_b32 {sr(s_i)}, {sr(s_jobs)}, 15")
    def adv():
        st = kst
        return [f"s_mov_b32 {sr(vst['o'])}, {sr(st['o'])}", f"s_mov_b32 {sr(sV+2)}, {sr(sK+2)}",
                f"s_add_u32 {sr(st['o'])}, {sr(st['o'])}, 32768", f"s_lshr_b32 {sr(s_t)}, {sr(st['j'])}, 5",
                ("ATOM", [f"s_cmp_gt_u32 {sr(st['o'])}, {sr(st['e'])}", f"s_cselect_b32 {sr(st['j'])}, {sr(s_t)}, {sr(st['j'])}",
                          f"s_cselect_b32 {sr(st['o'])}, 0, {sr(st['o'])}"]),
                f"s_and_b32 {sr(s_t)}, {sr(st['j'])}, 15", f"s_lshl_b32 {sr(st['e'])}, {sr(s_t)}, 15",
                ("ATOM", [f"s_cmp_eq_u32 {sr(st['j'])}, 0", f"s_cselect_b32 {sr(sK+2)}, 0, {sr(sK+2)}"])]
    def flat2(items):
        o = []
        for f in items: o += (list(f[1]) if isinstance(f, tuple) else list(f) if isinstance(f, list) else [f])
        return o
    a("s_waitcnt lgkmcnt(0)")
    srd(a, sQ, 4, 5, 16 << 20, WS_Q); srd(a, sK, 4, 5, 16 << 20, WS_K); srd(a, sV, 4, 5, 16 << 20, WS_V)
    srd(a, sZ, 4, 5, 128 * Z_KB * 1024, WS_Z); srd(a, sKV, 4, 5, 48 << 20, WS_Q); srd(a, sF, 4, 5, mg.FLAG_BYTES, mg.WS_FLAG)
    a(f"s_mov_b32 {sr(kst['j'])}, {sr(s_jobs)}"); a(f"s_mov_b32 {sr(kst['o'])}, 0"); a(f"s_lshl_b32 {sr(kst['e'])}, {sr(s_i)}, 15")
    a(flat2(adv())); a(flat2(adv()))
    a(f"s_lshr_b32 {sr(s_jobs)}, {sr(s_jobs)}, 5")
    a("s_lshl_b32 s3, s2, 2"); a(f"s_add_u32 s3, s3, {sr(s_wave)}")
    a("s_mul_i32 s6, s3, 7168"); a(f"s_add_u32 {sr(sPQ[0])}, s10, s6"); a(f"s_addc_u32 {sr(sPQ[0]+1)}, s11, 0"); a(f"s_mov_b32 {sr(sPQ[0]+2)}, {0 if NOTOUCH else 7168}")
    a("s_lshl_b32 s6, s3, 13"); a(f"s_add_u32 {sr(sPQ[1])}, s8, s6"); a(f"s_addc_u32 {sr(sPQ[1]+1)}, s9, 0"); a(f"s_mov_b32 {sr(sPQ[1]+2)}, {0 if NOTOUCH else 8192}")
    a(f"s_mov_b32 {sr(sPF+3)}, 0x20000"); a(f"s_and_b32 {sr(s_tog)}, {sr(s_wave)}, 1")
    a(f"v_lshlrev_b32 {vr(vpf)}, 7, {vr(vlane)}")
    a(f"v_lshlrev_b32 {vr(vl16)}, 4, {vr(vlane)}")
    a(f"s_lshl_b32 s3, {sr(s_par)}, 14"); a(f"v_add_u32 {vr(vKrd)}, s3, {vr(vl16)}"); a(f"v_add_u32 {vr(vVrd)}, 0x10000, {vr(vKrd)}")
    a(f"s_add_u32 s3, {sr(s_hb)}, {sr(s_m0)}"); a(f"v_add_u32 {vr(vsrc)}, s3, {vr(vl16)}"); a(f"v_add_u32 {vr(vsrc2)}, 0x1000, {vr(vsrc)}")
    a(f"v_xor_b32 {vr(vx16)}, 16, {vr(vlane)}"); a(f"v_lshlrev_b32 {vr(vx16)}, 2, {vr(vx16)}")
    a(f"v_xor_b32 {vr(vx32)}, 32, {vr(vlane)}"); a(f"v_lshlrev_b32 {vr(vx32)}, 2, {vr(vx32)}")
    a(f"v_mov_b32 {vr(vneg)}, {f32(NEG)}")
    a(f"v_lshrrev_b32 {vr(vT+1)}, 4, {vr(vlane)}"); a(f"v_lshlrev_b32 {vr(vT+1)}, 2, {vr(vT+1)}"); a(f"v_and_b32 {vr(vT+2)}, 15, {vr(vlane)}")
    for r in range(4):
        a(f"v_add_u32 {vr(vT+3)}, {r}, {vr(vT+1)}"); a(f"v_cmp_gt_u32 {sr(sMD[r],2)}, {vr(vT+3)}, {vr(vT+2)}")
    a(f"v_mov_b32 {vr(vT)}, 0x3f803f80")
    for r in range(4): a(f"v_accvgpr_write_b32 {ar(ONES+r)}, {vr(vT)}")
    a(f"s_cmp_eq_u32 {sr(s_qh)}, {sr(s_par)}")
    for r in range(4): a(f"s_cselect_b64 {sr(sMD[r],2)}, {sr(sMD[r],2)}, 0")
    a(f"s_cselect_b64 {sr(sMB,2)}, -1, 0")
    a(f"s_mov_b32 {sr(s_g)}, 0"); a(f"s_mov_b32 {sr(s_n)}, 0")
    def signal():
        return ["s_mov_b64 exec, 1", f"buffer_store_dword {vr(vneg)}, {vr(vlane)}, {sr(sF,4)}, {sr(s_sig)} offen sc1", "s_mov_b64 exec, -1", f"s_brev_b32 {sr(s_sig)}, 1"]
    def zero_state():
        o = [f"v_accvgpr_write_b32 {ar(r)}, 0" for r in range(144)]
        return o + [f"v_mov_b32 {vr(vM+qb)}, {vr(vneg)}" for qb in range(4)]

    def dma(st, ldsbase):
        out = []
        for q in range(8):
            g = []
            if q % 4 == 0: g += [f"s_add_u32 m0, {sr(s_m0)}, {ldsbase + (q//4)*4096}"]
            g.append(f"buffer_load_dwordx4 {vr(vsrc if q < 4 else vsrc2)}, {sr(st['srd'],4)}, {sr(st['o'])} offen offset:{(q%4)*1024} lds")
            out.append(g)
        return out
    def kread(stage, kvb):
        return [RD(("K", kvb, ks), f"ds_read_b128 {vr(KF(kvb%2, ks),4)}, {vr(vKrd)} offset:{stage*32768 + (kvb*4+ks)*1024}") for ks in range(4)]
    def vread(stage, k):
        return [RD(("V", k), f"ds_read_b128 {ar(VF(k),4)}, {vr(vVrd)} offset:{stage*32768 + k*1024}")]
    def qk_group(buf, kvb, czero=False):
        out = []
        for qb in range(4):
            for ks in range(4):
                d = vr(Sb(buf, kvb, qb), 4)
                c = ("0" if czero else vr(vNM + qb * 4, 4)) if ks == 0 else d
                out.append(f"{MF} {d}, {vr(KF(kvb%2, ks),4)}, {ar(Q(qb,ks),4)}, {c}")
        return out
    def pv_group(u, db):
        return [f"{MF} {ar(O(db,qb),4)}, {ar(VF(u*8+db),4)}, {vr(P(u,qb),4)}, {ar(O(db,qb),4)}" for qb in range(4)]
    def l_group(u):
        return [f"{MF} {ar(L(qb),4)}, {ar(ONES,4)}, {vr(P(u,qb),4)}, {ar(L(qb),4)}" for qb in range(4)]
    E5 = [(0, 1), (0, 2), (0, 3), (1, 2), (1, 3)]
    EARLY = E5[:NE]
    LO2 = E5[NE:] + [(0, 0), (1, 0), (1, 1)]
    HI = [(kvb, qb) for kvb in (2, 3) for qb in range(4)]
    def softmax_ops(buf, blocks, restart):
        out = []
        def exps(n):
            kvb, qb = blocks[n]; t = vT + (n % 2) * 4; s_ = Sb(buf, kvb, qb)
            return [f"v_exp_f32 {vr(t+r)}, {vr(s_+r)}" for r in range(4)]
        def packs(n):
            kvb, qb = blocks[n]; t = vT + (n % 2) * 4; p = P(kvb // 2, qb) + (kvb % 2) * 2
            return [f"v_cvt_pk_bf16_f32 {vr(p)}, {vr(t)}, {vr(t+1)}", f"v_cvt_pk_bf16_f32 {vr(p+1)}, {vr(t+2)}, {vr(t+3)}"]
        def orr(n):
            kvb, qb = blocks[n]; p = P(kvb // 2, qb) + (kvb % 2) * 2
            return [f"v_or_b32 {vr(vor)}, {vr(p)}, {vr(p+1)}" if (n == 0 and restart) else f"v_or3_b32 {vr(vor)}, {vr(vor)}, {vr(p)}, {vr(p+1)}"]
        nb = len(blocks)
        for n in range(nb + 1):
            e = exps(n) if n < nb else []
            pk = packs(n - 1) if n >= 1 else []
            o_ = orr(n - 2) if n >= 2 else []
            out += e[:2] + pk[:1] + e[2:3] + pk[1:] + e[3:] + o_
        out += orr(nb - 1)
        return out
    class Op(str):
        needs = (); gives = None
    def mk(text, needs=(), gives=None):
        o = Op(text); o.needs = tuple(needs); o.gives = gives; return o
    def softmax_q(buf, blocks, restart, chk, pre=()):
        qe, qp = [], []
        for n_, x in enumerate(pre): qp.append(mk(x, gives=("pre",) if n_ == len(pre) - 1 else None))
        for n, (kvb, qb) in enumerate(blocks):
            t = vT + (n % 4) * 4; s_ = Sb(buf, kvb, qb); p = P(kvb // 2, qb) + (kvb % 2) * 2
            for r in range(4):
                nd = []
                if n >= 4: nd.append(("p", n - 4, r // 2))
                if pre: nd.append(("pre",))
                qe.append(mk(f"v_exp_f32 {vr(t+r)}, {vr(s_+r)}", nd, ("e", n, r)))
            qp.append(mk(f"v_cvt_pk_bf16_f32 {vr(p)}, {vr(t)}, {vr(t+1)}", [("e", n, 1)], ("p", n, 0)))
            qp.append(mk(f"v_cvt_pk_bf16_f32 {vr(p+1)}, {vr(t+2)}, {vr(t+3)}", [("e", n, 3)], ("p", n, 1)))
            qp.append(mk(f"v_or_b32 {vr(vor)}, {vr(p)}, {vr(p+1)}" if (n == 0 and restart) else f"v_or3_b32 {vr(vor)}, {vr(vor)}, {vr(p)}, {vr(p+1)}"))
        if chk: qp += [mk(x) for x in chkops()]
        return [qe, qp]
    def check(label):
        return [f"s_cbranch_vccnz {label}"]
    def chkops():
        return [f"v_and_b32 {vr(vor)}, 0x40004000, {vr(vor)}", f"v_cmp_ne_u32 vcc, 0, {vr(vor)}"]
    def fixmax(buf, has_next, first):
        o = ["s_nop 7", "s_waitcnt lgkmcnt(0)"]
        for qb in range(4):
            d = vD + qb
            regs = [Sb(buf, kvb, qb) + r for kvb in range(4) for r in range(4)]
            o.append(f"v_max3_f32 {vr(d)}, {vr(regs[0])}, {vr(regs[1])}, {vr(regs[2])}")
            for k in range(3, 15, 2): o.append(f"v_max3_f32 {vr(d)}, {vr(d)}, {vr(regs[k])}, {vr(regs[k+1])}")
            o.append(f"v_max_f32 {vr(d)}, {vr(d)}, {vr(regs[15])}")
        for vx in (vx16, vx32):
            for qb in range(4): o.append(f"ds_bpermute_b32 {vr(vT+qb)}, {vr(vx)}, {vr(vD+qb)}")
            o.append("s_waitcnt lgkmcnt(0)")
            for qb in range(4): o.append(f"v_max_f32 {vr(vD+qb)}, {vr(vD+qb)}, {vr(vT+qb)}")
        for qb in range(4):
            o.append(f"v_add_f32 {vr(vD+qb)}, {f32(BIAS)}, {vr(vD+qb)}")
            if first: o.append(f"v_mov_b32 {vr(vM+qb)}, {vr(vD+qb)}")
            else:
                o.append(f"v_max_f32 {vr(vD+qb)}, 0, {vr(vD+qb)}"); o.append(f"v_add_f32 {vr(vM+qb)}, {vr(vM+qb)}, {vr(vD+qb)}")
            for r in range(4): o.append(f"v_sub_f32 {vr(vNM+qb*4+r)}, 0, {vr(vM+qb)}")
        for b in ([buf, 1 - buf] if has_next else [buf]):
            for kvb in range(4):
                for qb in range(4):
                    for r in range(4):
                        s = Sb(b, kvb, qb) + r
                        o.append(f"v_sub_f32 {vr(s)}, {vr(s)}, {vr(vD+qb)}")
        if not first:
            for qb in range(4):
                o.append(f"v_sub_f32 {vr(vT+8+qb)}, 0, {vr(vD+qb)}"); o.append(f"v_exp_f32 {vr(vT+8+qb)}, {vr(vT+8+qb)}")
            o.append("s_nop 0")
            for qb in range(4):
                regs = [O(db, qb) + r for db in range(8) for r in range(4)] + [L(qb) + r for r in range(4)]
                for k in range(0, len(regs), 4):
                    for e in range(4): o.append(f"v_accvgpr_read_b32 {vr(vT+e)}, {ar(regs[k+e])}")
                    for e in range(4): o.append(f"v_mul_f32 {vr(vT+e)}, {vr(vT+e)}, {vr(vT+8+qb)}")
                    for e in range(4): o.append(f"v_accvgpr_write_b32 {ar(regs[k+e])}, {vr(vT+e)}")
        o.append("s_nop 1")
        return o
    def spread(main, fill):
        items = []
        for f in fill:
            if isinstance(f, tuple): items.append(list(f[1]))
            elif isinstance(f, list): items += [[x] for x in f]
            else: items.append([f])
        n = len(main); m = len(items); out = []; k = 0
        for i in range(n):
            out.append(main[i])
            upto = (i + 1) * m // n
            while k < upto: out += items[k]; k += 1
        return out
    def mixq(x, y):
        if not y: return list(x)
        if not x: return list(y)
        out = []; k = 0
        for i, e in enumerate(x):
            out.append(e)
            upto = (i + 1) * len(y) // len(x)
            while k < upto: out.append(y[k]); k += 1
        return out
    rare = []
    ABL = os.environ.get("ABL", "").split(",")
    KPRE = [("K", kvb, ks) for kvb in range(2) for ks in range(4)]
    def emit(seq, abl=False, pre=()):
        prev = ""
        for x in resolve(flat(seq), pre):
            if abl:
                if "dma" in ABL and (x.endswith(" lds") or x.startswith("s_add_u32 m0")): continue
                if "exp" in ABL and x.startswith("v_exp"): continue
                if "valu" in ABL and x.startswith(("v_exp", "v_cvt", "v_or")): continue
                if "lds" in ABL and x.startswith("ds_read"): continue
                if "mfma" in ABL and x.startswith("v_mfma"): continue
                if "chk" in ABL and x.startswith("s_cbranch_vccnz"): continue
            if x.endswith(":"): a.label(x[:-1])
            else:
                if prev.startswith("s_add_u32 m0") and x.endswith(" lds"): a("s_nop 0")
                a(x); prev = x
    def mask_ops(par):
        o = []
        for kvb in range(4):
            for qb in range(4):
                if kvb < qb: continue
                for r in range(4):
                    s = Sb(par, kvb, qb) + r
                    o.append(f"v_cndmask_b32 {vr(s)}, {vr(s)}, {vr(vneg)}, {sr(sMD[r] if kvb == qb else sMB,2)}")
        return o
    def head(par):
        if DIAG:
            return ["s_memtime s[4:5]", "s_waitcnt vmcnt(0) lgkmcnt(0)", "s_memtime s[6:7]", "s_barrier", "s_memtime s[8:9]", "s_waitcnt lgkmcnt(0)",
                    "s_sub_u32 s5, s6, s4", "s_add_u32 s98, s98, s5", "s_sub_u32 s5, s8, s6", "s_add_u32 s99, s99, s5"]
        return ["s_waitcnt vmcnt(0) lgkmcnt(0)", "s_barrier"]
    NV0 = 4
    def phaseA(par, sm, czero, with_v=True, d=()):
        kstage = 1 - par
        mf = [WAIT(*[("K", 0, ks) for ks in range(4)])]
        for kvb in range(4):
            rd = []
            if 1 <= kvb <= 2: rd += kread(kstage, kvb + 1)
            if kvb == 3 and with_v:
                for k in range(NV0): rd += vread(par, k)
            for n_, x in enumerate(qk_group(1 - par, kvb, czero)):
                mf.append(x)
                if n_ % 2 == 0 and n_ // 2 < len(rd): mf.append(rd[n_ // 2])
            if kvb < 3: mf.append(WAIT(*[("K", kvb + 1, ks) for ks in range(4)]))
        return pack(mf, [q for q in [list(d)] + list(sm) if q])
    def sync_k(par):
        return head(par) + kread(par, 0) + kread(par, 1)
    def phaseB(par, u, extra_queues, sync=False):
        mf = l_group(u)
        tail = []
        for db in range(8):
            k = u * 8 + db
            tgt = tail if (sync and db >= 6) else mf
            if db % 2 == 0 and tgt is mf: mf.append(WAIT(("V", k), ("V", k + 1)))
            for n_, x in enumerate(pv_group(u, db)):
                tgt.append(x)
                if n_ == 0 and k + NV0 < 16: tgt += vread(par, k + NV0)
        if not sync: return pack(mf, [q for q in extra_queues if q])
        kr = kread(par, 0) + kread(par, 1)
        t2 = []
        for n_, x in enumerate(tail): t2 += [x, kr[n_]]
        given = set(); left = []
        p1 = pack(mf, [q for q in extra_queues if q], given, left)
        return p1 + head(par) + pack(t2, [q for q in left if q], given)
    def qload():
        o = [f"s_and_b32 s3, {sr(s_jobs)}, 15", "s_lshl_b32 s3, s3, 15", f"s_lshl_b32 s6, {sr(s_qh)}, 14", "s_add_u32 s3, s3, s6", f"s_add_u32 s3, s3, {sr(s_hb)}",
             f"v_add_u32 {vr(vq)}, s3, {vr(vl16)}"]
        for qb in range(4):
            o.append(f"s_mov_b32 s3, {qb*4096}")
            o += [f"buffer_load_dwordx4 {ar(Q(qb,ks),4)}, {vr(vq)}, {sr(sQ,4)}, s3 offen offset:{ks*1024}" for ks in range(4)]
        return o
    def dmas(par): return dma(kst, par * 32768) + dma(vst, 65536 + (1 - par) * 32768)
    A_HI = HI[:SPLIT]; B_HI = HI[SPLIT:]
    def sigchk(lab):
        return [("ATOM", [f"s_cmp_lt_i32 {sr(s_sig)}, 0", f"s_cbranch_scc1 {lab}_ns"] + signal() + [f"{lab}_ns:"])]
    def normal(par):
        lab = f"{name}_rn{par}"
        seq = phaseA(par, softmax_q(par, LO2 + A_HI, False, True), False, d=dmas(par)) + check(lab + "a") + [f"{lab}a_ret:"]
        seq += phaseB(par, 0, softmax_q(par, B_HI, True, True) + [adv()]) + check(lab + "b") + [f"{lab}b_ret:"]
        seq += [f"s_add_u32 {sr(s_n)}, {sr(s_n)}, 1", f"s_cmp_lg_u32 {sr(s_n)}, {sr(s_iq)}", f"s_cbranch_scc1 {lab}_nq"] + qload() + [f"{lab}_nq:"]
        seq += phaseB(par, 1, softmax_q(1 - par, EARLY, True, False), sync=True)
        seq += flat2(sigchk(lab))
        rare.append((lab + "a", par, True, EARLY + LO2 + A_HI)); rare.append((lab + "b", par, True, HI))
        return seq
    def lastit(par, has_next):
        tag = "b" if has_next else "f"
        lab = f"{name}_r{tag}{par}"
        seq = [f"s_cmp_eq_u32 {sr(s_wave)}, 2", f"s_cbranch_scc1 {lab}_w2"]
        pre = mask_ops(par)
        if not has_next:
            for k in range(NV0): seq += vread(par, k)
            seq += pre
            seq += [f"s_cmp_lg_u32 {sr(s_i)}, 0", f"s_cbranch_scc1 {lab}_nf"] + fixmax(par, False, True) + softmax_ops(par, EARLY, True) + [f"{lab}_nf:"]
            seq += softmax_ops(par, LO2, False) + chkops()
        else:
            seq += phaseA(par, softmax_q(par, LO2, False, True, pre), True, d=dmas(par))
        seq += check(lab + "a") + [f"{lab}a_ret:"]
        seq += phaseB(par, 0, softmax_q(par, HI, True, True) + ([adv()] if has_next else [])) + check(lab + "b") + [f"{lab}b_ret:"]
        seq += phaseB(par, 1, [], sync=True)
        seq.append(f"s_branch {name}_merge{par}")
        emit(seq, pre=KPRE)
        a.label(f"{lab}_w2")
        if has_next:
            emit(phaseA(par, [], True, with_v=False, d=dmas(par)) + flat2(adv()), pre=KPRE)
        emit(sync_k(par))
        a(f"s_branch {name}_merge{par}")
        rare.append((lab + "a", par, False, EARLY + LO2)); rare.append((lab + "b", par, False, HI))
    def set_iq():
        return [f"s_cmp_eq_u32 {sr(s_jobs)}, 0", f"s_cselect_b32 {sr(s_iq)}, 99, {sr(s_i)}"]
    def wtouch():
        return [f"s_mov_b32 {sr(sPF)}, {sr(sPQ[0])}", f"s_mov_b32 {sr(sPF+1)}, {sr(sPQ[0]+1)}", f"s_mov_b32 {sr(sPF+2)}, {sr(sPQ[0]+2)}",
                f"buffer_load_dword {vr(vdum)}, {vr(vpf)}, {sr(sPF,4)}, 0 offen"] + \
               [f"s_mov_b32 {sr(sPQ[0]+e)}, {sr(sPQ[1]+e)}" for e in range(3)] + [f"s_mov_b32 {sr(sPQ[1]+2)}, 0"]

    if DIAG: a("s_mov_b32 s98, 0"); a("s_mov_b32 s99, 0")
    if DIAG: a("s_mov_b32 s98, 0"); a("s_mov_b32 s99, 0")
    a(zero_state()); a(set_iq())
    a("s_waitcnt vmcnt(16)")
    a("s_barrier")
    a(wtouch())
    emit(kread(0, 0) + kread(0, 1) + phaseA(1, [], True, with_v=False))
    emit(sync_k(1))
    emit(fixmax(0, False, True) + softmax_ops(0, EARLY, True))
    a.label(f"{name}_it0")
    a(f"s_cmp_eq_u32 {sr(s_n)}, {sr(s_i)}"); a(f"s_cbranch_scc1 {name}_l0")
    emit(normal(0), True, KPRE)
    a.label(f"{name}_it1")
    a(f"s_cmp_eq_u32 {sr(s_n)}, {sr(s_i)}"); a(f"s_cbranch_scc1 {name}_l1")
    emit(normal(1), True, KPRE)
    a(f"s_branch {name}_it0")
    for par in range(2):
        a.label(f"{name}_l{par}")
        a(f"s_cmp_eq_u32 {sr(s_jobs)}, 0"); a(f"s_cbranch_scc1 {name}_lf{par}")
        lastit(par, True)
        a.label(f"{name}_lf{par}")
        lastit(par, False)
    for par in range(2):
        a.label(f"{name}_merge{par}")
        a(signal())
        a(wtouch())
        baseV, baseK = 65536 + par * 32768, (1 - par) * 32768
        a(f"s_lshl_b32 s3, {sr(s_qh)}, 14")
        a(f"s_add_u32 s6, s3, {baseV}"); a(f"s_add_u32 s7, s3, {baseK}")
        a(f"s_cmp_eq_u32 {sr(s_par)}, 0")
        a("s_cselect_b32 s3, s6, s7"); a("s_cselect_b32 s6, s7, s6")
        a(f"v_add_u32 {vr(vmrg)}, s3, {vr(vl16)}"); a(f"v_add_u32 {vr(vmrgR)}, s6, {vr(vl16)}")
        a(f"s_cbranch_scc0 {name}_send1_{par}")
        def send(dbs):
            k = 0
            for db in dbs:
                for qb in range(4):
                    a(f"ds_write_b128 {vr(vmrg)}, {ar(O(db,qb),4)} offset:{k*1024}"); k += 1
        send(range(4, 8)); a(f"s_branch {name}_sent_{par}")
        a.label(f"{name}_send1_{par}"); send(range(0, 4))
        a.label(f"{name}_sent_{par}")
        for qb in range(4): a(f"v_accvgpr_read_b32 {vr(vD+qb)}, {ar(L(qb))}")
        a(f"s_lshl_b32 s3, {sr(s_wave)}, 11"); a(f"s_add_u32 s3, s3, {LDS_ML}"); a(f"v_add_u32 {vr(vmrg)}, s3, {vr(vl16)}")
        a(f"ds_write_b128 {vr(vmrg)}, {vr(vM,4)}"); a(f"ds_write_b128 {vr(vmrg)}, {vr(vD,4)} offset:1024")
        a(f"v_xor_b32 {vr(vmrg)}, 0x1000, {vr(vmrg)}")
        a("s_waitcnt lgkmcnt(0)"); a("s_barrier")
        R = Sb(par, 0, 0)
        a(f"ds_read_b128 {vr(vT,4)}, {vr(vmrg)}"); a(f"ds_read_b128 {vr(vT+4,4)}, {vr(vmrg)} offset:1024")
        for k in range(16): a(f"ds_read_b128 {vr(R+4*k,4)}, {vr(vmrgR)} offset:{k*1024}")
        a(f"s_lshl_b32 s3, {sr(s_i)}, 3"); a(f"s_lshl_b32 s6, {sr(s_qh)}, 2"); a("s_add_u32 s3, s3, s6"); a(f"s_mul_i32 s3, s3, {Z_KB*1024}")
        a(f"s_lshl_b32 s6, {sr(s_head)}, 12"); a("s_add_u32 s3, s3, s6"); a(f"s_lshl_b32 s6, {sr(s_par)}, 11"); a("s_add_u32 s3, s3, s6")
        a(f"s_add_u32 s3, s3, {112*1024}"); a(f"v_add_u32 {vr(vq)}, s3, {vr(vl16)}")
        a("s_waitcnt lgkmcnt(15)"); a("s_waitcnt lgkmcnt(14)") if False else None
        a("s_waitcnt lgkmcnt(0)")
        a("s_barrier")
        CA, CB = vNM, vNM + 4
        for qb in range(4):
            mm = vT + 8 + qb
            a(f"v_max_f32 {vr(mm)}, {vr(vM+qb)}, {vr(vT+qb)}")
            a(f"v_sub_f32 {vr(CA+qb)}, {vr(vM+qb)}, {vr(mm)}"); a(f"v_sub_f32 {vr(CB+qb)}, {vr(vT+qb)}, {vr(mm)}")
            a(f"v_exp_f32 {vr(CA+qb)}, {vr(CA+qb)}"); a(f"v_exp_f32 {vr(CB+qb)}, {vr(CB+qb)}"); a("s_nop 0")
            a(f"v_mul_f32 {vr(mm)}, {vr(vD+qb)}, {vr(CA+qb)}"); a(f"v_fmac_f32 {vr(mm)}, {vr(vT+4+qb)}, {vr(CB+qb)}")
            a(f"v_rcp_f32 {vr(mm)}, {vr(mm)}"); a("s_nop 0")
            a(f"v_mul_f32 {vr(CA+qb)}, {vr(CA+qb)}, {vr(mm)}"); a(f"v_mul_f32 {vr(CB+qb)}, {vr(CB+qb)}, {vr(mm)}")
        a(f"s_cmp_eq_u32 {sr(s_par)}, 0"); a(f"s_cbranch_scc0 {name}_fin1_{par}")
        def fin(db0):
            cnt = 0
            for qb in range(4):
                a(f"s_mov_b32 s3, {qb*Z_KB*1024}")
                for uu in range(2):
                    b = vP + (cnt % 2) * 12; cnt += 1
                    for e in range(8): a(f"v_accvgpr_read_b32 {vr(b+4+e)}, {ar(O(db0 + 2*uu + e//4, qb) + e%4)}")
                    for e in range(8): a(f"v_mul_f32 {vr(b+4+e)}, {vr(b+4+e)}, {vr(CA+qb)}")
                    for e in range(8):
                        k = (2 * uu + e // 4) * 4 + qb
                        a(f"v_fmac_f32 {vr(b+4+e)}, {vr(R+4*k+e%4)}, {vr(CB+qb)}")
                    for p in range(4): a(f"v_cvt_pk_bf16_f32 {vr(b+p)}, {vr(b+4+2*p)}, {vr(b+5+2*p)}")
                    a(f"buffer_store_dwordx4 {vr(b,4)}, {vr(vq)}, {sr(sZ,4)}, s3 offen offset:{uu*1024}{ST}")
        fin(0); a(f"s_branch {name}_fin_{par}")
        a.label(f"{name}_fin1_{par}"); fin(4)
        a.label(f"{name}_fin_{par}")
        a(f"s_lshl_b32 s3, {sr(s_i)}, 1"); a(f"s_lshr_b32 s6, {sr(s_head)}, 4"); a("s_add_u32 s3, s3, s6"); a("s_lshl_b32 s3, s3, 6")
        a(f"s_and_b32 s6, {sr(s_head)}, 15"); a("s_lshl_b32 s6, s6, 2"); a("s_add_u32 s3, s3, s6"); a(f"s_add_u32 s3, s3, {mg.F_CTX}")
        a(f"s_cmp_eq_u32 {sr(s_wave)}, 0"); a(f"s_cselect_b32 {sr(s_sig)}, s3, {sr(s_sig)}")
        a(f"s_cmp_eq_u32 {sr(s_jobs)}, 0"); a(f"s_cbranch_scc1 {name}_done")
        a(f"s_and_b32 {sr(s_i)}, {sr(s_jobs)}, 15"); a(f"s_lshr_b32 {sr(s_jobs)}, {sr(s_jobs)}, 5"); a(f"s_mov_b32 {sr(s_n)}, 0")
        a(zero_state()); a(set_iq())
        a(f"s_cmp_eq_u32 {sr(s_i)}, 0"); a(f"s_cbranch_scc1 {name}_it{1-par}")
        emit(fixmax(1 - par, False, True) + softmax_ops(1 - par, EARLY, True))
        a(f"s_branch {name}_it{1-par}")
    a.label(f"{name}_done")
    a("s_waitcnt vmcnt(0)"); a("s_barrier")
    a(signal())
    def cold():
        for lab, par, has_next, blocks in rare:
            a.label(lab)
            a(f"s_call_b64 {sr(s_ret,2)}, {name}_fix{par}{int(has_next)}")
            emit(softmax_ops(par, blocks, True))
            a("s_nop 1"); a(f"s_branch {lab}_ret")
        for par in range(2):
            for hn in (False, True):
                a.label(f"{name}_fix{par}{int(hn)}")
                emit(fixmax(par, hn, False))
                a(f"s_setpc_b64 {sr(s_ret,2)}")
    return cold
```

```python
from asmb import *
from gemm_gen import GemmCfg, GemmCore
from gemm2 import GemmCore2
from gpack import pack
from k2_gen import RD, WAIT, resolve, flat
import os
NEWSTEP = not os.environ.get('OLDSTEP')

class GemmCore3(GemmCore2):
    def __init__(self, a, cfg, V, S, acc_in_agpr):
        s_saved = cfg.S
        cfg.S = 2
        super().__init__(a, cfg, V, S, acc_in_agpr)
        cfg.S = s_saved
        self.U = cfg.S if cfg.S % 2 == 0 else 2 * cfg.S

    def xreads(self, t):
        c = self.c
        out = []
        st = t % c.S
        for j in range(c.TJ):
            for k in range(2):
                if c.native_a:
                    off = c.A_BASE + st * c.A_STAGE + (j * 2 + k) * 1024
                    v = self.vXrd[0]
                else:
                    off = c.A_BASE + st * c.A_STAGE + j * 16 * 128
                    v = self.vXrd[k]
                assert off < 65536
                out.append(f"ds_read_b128 {vr(self.xf[t%2][j][k],4)}, {vr(v)} offset:{off}")
        return out
    def wreads(self, t, i):
        c = self.c
        out = []
        for k in range(2):
            for half in range(2):
                hoff = half * (16 * 128 if c.native_a else 512)
                off = (t % c.S) * c.B_STAGE + (i // c.BPP) * 8192 + k * 32 * 128 + hoff
                assert off < 65536
                out.append(f"ds_read_b64_tr_b16 {vr(self.wf[i%self.NWB][k]+2*half,2)}, {vr(self.vWrd[i%c.BPP])} offset:{off}")
        return out

    def zero_acc(self):
        c = self.c
        for i in range(c.TI):
            for j in range(c.TJ):
                for r in range(c.AR):
                    if self.acc_in_agpr: self.a(f"v_accvgpr_write_b32 {self.accreg(i,j,r)}, 0")
                    else: self.a(f"v_mov_b32 {self.accreg(i,j,r)}, 0")

    def step3(self, t, dX, dW, rdX, rdW, vm, barrier=True, extra=None, post=None):
        if NEWSTEP and getattr(self, "use_step4", False):
            return self.step4(t, dX, dW, rdX, rdW, vm, barrier, extra, post)
        a, c = self.a, self.c
        TI, S = c.TI, c.S
        nm = 2 * c.TJ
        xr = self.xreads(t + 1) if rdX else []
        nrx = TI - 2
        xper = [len(xr) * (r + 1) // nrx - len(xr) * r // nrx for r in range(nrx)]
        dx = self.dmaA(t % S) if dX else []
        if extra: dx = dx + [list(extra)]
        dxper = [len(dx) * (r + 1) // nrx - len(dx) * r // nrx for r in range(nrx)] if c.TI <= 4 else \
                [min(5, max(0, len(dx) - 5 * r)) for r in range(nrx)]
        dw = self.dmaB(t % S) if dW else []
        hist = self._hist
        for i in range(TI):
            w2, x2 = hist[-2]; w1, x1 = hist[-1]
            if i == TI - 2:
                if barrier:
                    a(f"s_waitcnt vmcnt({vm}) lgkmcnt(0)")
                    a("s_barrier")
                    if post: a(post)
                else:
                    a("s_waitcnt lgkmcnt(0)")
            elif i == TI - 1:
                pass
            else:
                a(f"s_waitcnt lgkmcnt({min(15, x2 + w1 + x1)})")
            if i + 2 < TI: wr = self.wreads(t, i + 2)
            elif rdW: wr = self.wreads(t + 1, i + 2 - TI)
            else: wr = []
            xs = []; ds = []
            if i < nrx:
                xs = xr[:xper[i]]; xr = xr[xper[i]:]
                ds = dx[:dxper[i]]; dx = dx[dxper[i]:]
            else:
                h = (len(dw) + 1) // 2 if i == TI - 2 else len(dw)
                ds = dw[:h]; dw = dw[h:]
            fill = self._mix1(wr + xs, ds)
            a(merge(self.row_mfmas(t, i), fill, 0, nm - 1))
            hist = [hist[-1], (len(wr), len(xs))]
        assert not dx and not dw and not xr
        self._hist = hist

    def step4(self, t, dX, dW, rdX, rdW, vm, barrier=True, extra=None, post=None):
        a, c = self.a, self.c
        TI, S = c.TI, c.S
        nm = 2 * c.TJ
        nrx = TI - 2
        xr = self.xreads(t + 1) if rdX else []
        xper = [len(xr) * (r + 1) // nrx - len(xr) * r // nrx for r in range(nrx)]
        def q(groups):
            o = []
            for g_ in groups: o += [x for x in g_ if x != "s_nop 0"]
            return o
        dx = q(self.dmaA(t % S)) if dX else []
        if extra: dx += list(extra)
        dw = q(self.dmaB(t % S)) if dW else []
        def wtag(i): return [("W", i, n) for n in range(4)]
        def rows(r0, r1):
            nonlocal xr
            mf = []
            for i in range(r0, r1):
                if i + 2 < TI: wr = [RD(("W", i + 2, n), x) for n, x in enumerate(self.wreads(t, i + 2))]
                elif rdW: wr = [RD(("Wn", i + 2 - TI, n), x) for n, x in enumerate(self.wreads(t + 1, i + 2 - TI))]
                else: wr = []
                xs = []
                if i < nrx:
                    xs = [RD(("X", i, n), x) for n, x in enumerate(xr[:xper[i]])]; xr = xr[xper[i]:]
                rd = wr + xs
                stepg = max(1, (nm - 2) // max(1, len(rd)))
                if i < TI - 2: mf.append(WAIT(*wtag(i)))
                for n, x in enumerate(self.row_mfmas(t, i)):
                    mf.append(x)
                    if n % stepg == 0 and n // stepg < len(rd): mf.append(rd[n // stepg])
            return mf
        ngap1 = nrx * nm
        seq = pack(rows(0, nrx), [dx] if dx else [], dma_gap=self.GX, ahead=ngap1)
        seq += [f"s_waitcnt vmcnt({vm}) lgkmcnt(0)", "s_barrier"] if barrier else ["s_waitcnt lgkmcnt(0)"]
        if barrier and post: seq += list(post)
        seq += pack(rows(nrx, TI), [dw] if dw else [], dma_gap=self.GW, ahead=2 * nm)
        prev = ""
        for x in resolve(flat(seq), wtag(0) + wtag(1)):
            if prev.startswith("s_add_u32 m0") and x.endswith(" lds"): a("s_nop 0")
            a(x); prev = x

    def prologue_dma(self):
        a, c = self.a, self.c
        for st in range(c.S):
            for g in self.dmaA(st): a(g)
            for g in self.dmaB(st): a(g)

    def tail_len(self, n=None):
        c = self.c
        T = c.S + 1
        while T % self.U: T += 1
        return T

    def mainloop(self, s_loopcount, label, st=None, sidx=1, extras=None, pro_extra=0):
        a, c = self.a, self.c
        S, PA, PB, U = c.S, c.PA, c.PB, self.U
        extras = extras or {}
        a(f"s_waitcnt vmcnt({(S-2)*(PA+PB) + PB + pro_extra})")
        a("s_barrier")
        a(self.xreads(0)); a(self.wreads(0, 0)); a(self.wreads(0, 1))
        a("s_waitcnt lgkmcnt(0)")
        a("s_barrier")
        if st: st.stamp(sidx); a("s_waitcnt lgkmcnt(0)")
        self._hist = [(4, 0), (4, 0)]
        a.label(label)
        for t in range(U):
            nx = sum(1 for u in range(t + 2 - S, t + 1) if (u % U) in extras)
            self.step3(t, True, True, True, True, (S - 2) * (PA + PB) + nx, extra=extras.get(t))
        assert self._hist == [(4, 0), (4, 0)]
        a(f"s_sub_u32 {sr(s_loopcount)}, {sr(s_loopcount)}, 1")
        a(f"s_cmp_lg_u32 {sr(s_loopcount)}, 0")
        a(f"s_cbranch_scc1 {label}")
        self.tail()

    def tail(self):
        a, c = self.a, self.c
        S, PA, PB, U = c.S, c.PA, c.PB, self.U
        T = self.tail_len()
        for k in range(T):
            r = k - T
            dX = r + S <= -1
            dW = r + S <= -1
            seq = []
            for u in range(r - 2, r + S + 1):
                if u <= -1: seq.append(("X", u))
                if u <= -1 and u <= r + S - 1: seq.append(("W", u))
            need = [x for x in (("W", r + 1), ("X", r + 2)) if x[1] <= -1]
            if need:
                last = max(seq.index(x) for x in need)
                vm = sum(PA if x[0] == "X" else PB for x in seq[last + 1:])
            else:
                vm = 0
            self.step3(k, dX, dW, r + 1 <= -1, r + 1 <= -1, vm, barrier=(r + 1 <= -1))
```

```python
from k2_gen import RD, WAIT, resolve, flat
import os
AHEAD = float(os.environ.get("AHEAD", "3"))
DMA_GAP = int(os.environ.get("DMA_GAP", "4"))
def kind(x):
    if isinstance(x, tuple): return "atom"
    if isinstance(x, RD): return "lds"
    if isinstance(x, WAIT): return "sc"
    if x.startswith("v_exp"): return "exp"
    if x.startswith("buffer_"): return "dma"
    if x.startswith("v_"): return "valu"
    return "sc"
UN = dict(exp=2, valu=1, lds=1, dma=1, sc=0, atom=0)
def pack(mf, queues, given=None, leftover=None, dma_gap=None, ahead=None):
    DG = DMA_GAP if dma_gap is None else dma_gap; AH = AHEAD if ahead is None else ahead
    gaps = []; lead = []
    for x in mf:
        if isinstance(x, str): gaps.append(dict(m=x, sc=[], mem=[], va=[], u=0))
        elif not gaps: lead.append(x)
        elif isinstance(x, WAIT): gaps[-1]["sc"].append(x)
        else: gaps[-1]["mem"].append(x); gaps[-1]["u"] += 1
    qs = []
    for items in queues:
        its = []
        for f in items:
            if isinstance(f, list): its += f
            else: its.append(f)
        qs.append(its)
    n = len(gaps)
    w = lambda x: max(UN[kind(x)], 0.5)
    tot = [sum(w(x) for x in q) for q in qs]
    done = [0.0] * len(qs); pos = [0] * len(qs)
    lastdma = -9
    given = set() if given is None else given
    for k, g in enumerate(gaps):
        blocked = set(); lastc = {}; newg = []
        CL = dict(sc=0, atom=0, lds=1, dma=1, exp=2, valu=2)
        while True:
            cand = [i for i in range(len(qs)) if pos[i] < len(qs[i]) and i not in blocked]
            if not cand: break
            PR = dict(sc=0, atom=0, dma=1, lds=1, exp=2, valu=3)
            i = min(cand, key=lambda i: (PR[kind(qs[i][pos[i]])], done[i] / tot[i]))
            it = qs[i][pos[i]]; kd = kind(it)
            force = (k == n - 1) and leftover is None
            ahead = done[i] / tot[i] > (k + AH) / n and kd in ("dma", "sc", "atom")
            nd = getattr(it, "needs", ())
            if any(x not in given for x in nd):
                if force and all(x in given or x in newg for x in nd):
                    g.setdefault("tail", []).append("s_nop 0")
                else:
                    blocked.add(i)
                    if force and all(j in blocked or pos[j] >= len(qs[j]) for j in range(len(qs))): raise Exception("dep deadlock")
                    continue
            ok = False
            if kd in ("sc", "atom"):
                nsc = sum(len(y[1]) if isinstance(y, tuple) else 1 for y in g["sc"])
                mine = len(it[1]) if kd == "atom" else 1
                ok = (nsc + mine <= (3 if g["u"] == 0 else 1)) or (kd == "atom" and nsc == 0 and g["u"] == 0)
            elif len(g["sc"]) > 1 or any(isinstance(y, tuple) for y in g["sc"]): ok = False
            elif kd == "exp": ok = g["u"] == 0
            elif kd == "valu": ok = g["u"] <= 1
            elif kd == "lds": ok = g["u"] <= 1 and not any(kind(y) == "lds" for y in g["mem"])
            elif kd == "dma": ok = g["u"] <= 1 and k - lastdma >= DG
            if CL[kd] < lastc.get(i, 0): ok = False
            lastc[i] = max(lastc.get(i, 0), CL[kd])
            if not force and (not ok or ahead):
                blocked.add(i); continue
            pos[i] += 1; done[i] += w(it); g["u"] += UN[kd]
            if getattr(it, "gives", None): newg.append(it.gives)
            if force: blocked.clear()
            if kd in ("sc", "atom"):
                g["sc"].append(it); blocked.add(i) if not force else None
            elif kd in ("lds", "dma"):
                g["mem"].append(it)
                if kd == "dma": lastdma = k
            else: g["va"].append(it)
            if force: g.setdefault("tail", []).append(it)
        given.update(newg)
    if leftover is not None: leftover[:] = [q[pos[i]:] for i, q in enumerate(qs)]
    out = list(lead)
    for k, g in enumerate(gaps):
        out.append(g["m"])
        tail = g.get("tail", [])
        for it in [x for x in g["sc"] + g["mem"] + g["va"] if not any(x is y for y in tail)] + tail:
            out += list(it[1]) if isinstance(it, tuple) else [it]
    return out
```

```python
from asmb import *
from gemm_gen import GemmCfg
from gemm3 import GemmCore3
from k1v2_gen import Core4
from k1_gen import srd, f32, WS_Q, WS_K, WS_V, WS_Z, WS_G, WS_CNT, WS_PART, Z_KB, QSCALE
from k2_gen import RD, WAIT, resolve, flat, MF, BIAS, NEG
import codepf, math, os, struct, sys
import att2
KNAME = "gated_mix__compressed_kv_cla__geglu_ffn__prompt_kernel"

STAMPS = bool(os.environ.get("STAMPS"))
WS_FLAG = WS_CNT
F_QKV, F_GU, F_CTX, F_EX = 0, 2048, 4096, 8192
FLAG_BYTES = 16384
WS_STAMP = 96 << 20
SPIN_MAX = 100000
ST = " sc1"
S_WAVE = 101
S_PSIG = 100
ATT_JOBS = [[14, 0], [13, 1], [12, 2], [11, 3], [10, 4], [9, 5], [8, 6], [15, 7]]

def stamp(a, idx):
    if not STAMPS: return
    a("s_memrealtime s[4:5]")
    a("s_memtime s[8:9]")
    a("s_load_dwordx2 s[6:7], s[0:1], 104")
    a("s_waitcnt lgkmcnt(0)")
    a("s_mov_b32 s5, s8")
    a(f"s_add_u32 s8, s6, {WS_STAMP}"); a("s_addc_u32 s9, s7, 0"); a("s_mov_b32 s10, 0x40000"); a("s_mov_b32 s11, 0x20000")
    a("s_lshl_b32 s6, s2, 8"); a(f"s_lshl_b32 s7, s{S_WAVE}, 6"); a("s_add_u32 s6, s6, s7"); a(f"s_add_u32 s6, s6, {idx*4}")
    a("v_mov_b32 v1, s6"); a("v_mov_b32 v2, s4")
    a("buffer_store_dword v2, v1, s[8:11], 0 offen")
    a("v_mov_b32 v2, s5")
    a("buffer_store_dword v2, v1, s[8:11], 0 offen offset:32")
    a("s_waitcnt vmcnt(0)")

def lane_id(a, v):
    a(f"v_mbcnt_lo_u32_b32 {vr(v)}, -1, 0")
    a(f"v_mbcnt_hi_u32_b32 {vr(v)}, -1, {vr(v)}")

def wait_flags(a, lab, sF, s_off, nlanes, x2, vlane, t0, sleep=8):
    a(f"v_lshlrev_b32 {vr(t0+2)}, {3 if x2 else 2}, {vr(vlane)}")
    a("s_mov_b32 s3, 0")
    a.label(lab)
    if x2: a(f"buffer_load_dwordx2 {vr(t0,2)}, {vr(t0+2)}, {sr(sF,4)}, {s_off} offen sc1")
    else: a(f"buffer_load_dword {vr(t0)}, {vr(t0+2)}, {sr(sF,4)}, {s_off} offen sc1")
    a("s_waitcnt vmcnt(0)")
    if x2: a(f"v_min_u32 {vr(t0)}, {vr(t0)}, {vr(t0+1)}")
    a(f"v_cmp_eq_u32 vcc, 0, {vr(t0)}")
    if nlanes < 64:
        a(f"s_mov_b32 s4, {((1 << nlanes) - 1) & 0xffffffff}"); a(f"s_mov_b32 s5, {((1 << nlanes) - 1) >> 32}")
        a("s_and_b64 vcc, vcc, s[4:5]")
    else:
        a("s_or_b64 vcc, vcc, vcc")
    a(f"s_cbranch_scc0 {lab}_ok")
    a(f"s_sleep {sleep}")
    a("s_add_u32 s3, s3, 1"); a(f"s_cmp_lt_u32 s3, {SPIN_MAX}")
    a(f"s_cbranch_scc1 {lab}")
    a.label(f"{lab}_ok")

def sig_regs(a, vsig, vone, vlane, tmp):
    a(f"v_bfrev_b32 {vr(tmp)}, 1")
    a(f"v_cmp_eq_u32 vcc, 0, {vr(vlane)}")
    a(f"v_mov_b32 {vr(vone)}, 1")
    a("s_nop 0")
    a(f"v_cndmask_b32 {vr(vsig)}, {vr(tmp)}, {vr(vlane)}, vcc")

def gen_k0(a, name="k0_kernel"):
    kernel_header(a, name)
    a("s_cmp_ge_u32 s2, 256"); a(f"s_cbranch_scc1 {name}_end")
    a("s_load_dwordx4 s[8:11], s[0:1], 0")
    a("s_load_dwordx2 s[28:29], s[0:1], 80")
    a("s_load_dwordx2 s[34:35], s[0:1], 104")
    a("v_and_b32 v1, 63, v0")
    a("v_lshrrev_b32 v2, 6, v0"); a("s_nop 0"); a("v_readfirstlane_b32 s36, v2"); a("s_nop 3")
    a("s_lshl_b32 s37, s2, 2"); a("s_add_u32 s37, s37, s36")
    a("s_waitcnt lgkmcnt(0)")
    srd(a, 12, 8, 9, 2048 * 2048); srd(a, 16, 28, 29, 2048); srd(a, 20, 34, 35, 8192, WS_G); srd(a, 24, 34, 35, FLAG_BYTES, WS_FLAG)
    srd(a, 40, 10, 11, 2048 * 1024)
    a("v_lshlrev_b32 v2, 5, v1")
    a("s_lshl_b32 s3, s37, 12"); a("v_add_u32 v3, s3, v2")
    a("buffer_load_dwordx4 v[8:11], v2, s[16:19], 0 offen"); a("buffer_load_dwordx4 v[12:15], v2, s[16:19], 0 offen offset:16")
    for t in range(2):
        a(f"buffer_load_dwordx4 v[{32+8*t}:{35+8*t}], v3, s[12:15], 0 offen offset:{t*2048}")
        a(f"buffer_load_dwordx4 v[{36+8*t}:{39+8*t}], v3, s[12:15], 0 offen offset:{t*2048+16}")
    a("v_lshlrev_b32 v4, 2, v1"); a("s_lshl_b32 s3, s37, 5"); a("v_add_u32 v4, s3, v4"); a("v_mov_b32 v5, 0")
    a("v_cmp_gt_u32 vcc, 8, v1"); a("s_and_saveexec_b64 s[38:39], vcc")
    a("buffer_store_dword v5, v4, s[24:27], 0 offen")
    a("s_mov_b64 exec, s[38:39]")
    a("v_lshlrev_b32 v4, 7, v1"); a("s_lshl_b32 s3, s37, 11"); a("v_add_u32 v4, s3, v4")
    a("v_cmp_gt_u32 vcc, 16, v1"); a("s_and_saveexec_b64 s[38:39], vcc")
    a("buffer_load_dword v50, v4, s[40:43], 0 offen")
    a("s_mov_b64 exec, s[38:39]")
    a("s_lshr_b32 s31, s2, 3"); a("s_lshl_b32 s31, s31, 2"); a("s_add_u32 s31, s31, s36")
    codepf.code_touch(a, "mega_kernel", "mega_code_end", 1, 4, 51, "s31", "k0a")
    a("s_waitcnt vmcnt(3)")
    for r in range(8):
        a(f"v_lshlrev_b32 v{16+2*r}, 16, v{8+r}"); a(f"v_and_b32 v{17+2*r}, 0xffff0000, v{8+r}")
    a("v_mov_b32 v6, 0")
    for t in range(2):
        for r in range(8):
            x = 32 + 8 * t + r
            a(f"v_lshlrev_b32 v5, 16, v{x}")
            a(f"v_mul_f32 v4, v5, v{16+2*r}" if r == 0 else f"v_fmac_f32 v4, v5, v{16+2*r}")
            a(f"v_and_b32 v5, 0xffff0000, v{x}"); a(f"v_fmac_f32 v4, v5, v{17+2*r}")
        for m in ("quad_perm:[1,0,3,2]", "quad_perm:[2,3,0,1]", "row_half_mirror", "row_mirror"):
            a("s_nop 1"); a(f"v_add_f32_dpp v4, v4, v4 {m} row_mask:0xf bank_mask:0xf")
        a("s_nop 1")
        for q in range(4): a(f"v_readlane_b32 s{4+q}, v4, {16*q}")
        a("s_nop 1")
        a("v_mov_b32 v5, s4"); a("v_add_f32 v5, s5, v5"); a("v_add_f32 v5, s6, v5"); a("v_add_f32 v5, s7, v5")
        a(f"v_cmp_eq_u32 vcc, {t}, v1"); a("s_nop 1"); a("v_cndmask_b32 v6, v6, v5, vcc")
    a(f"v_mul_f32 v6, {f32(-math.log2(math.e))}, v6")
    a("v_exp_f32 v6, v6"); a("s_nop 0"); a("v_add_f32 v6, 1.0, v6"); a("v_rcp_f32 v6, v6")
    a("s_lshl_b32 s3, s37, 1"); a("v_add_u32 v7, s3, v1"); a("v_lshlrev_b32 v7, 2, v7")
    a("v_cmp_gt_u32 vcc, 2, v1"); a("s_and_saveexec_b64 s[38:39], vcc")
    a("buffer_store_dword v6, v7, s[20:23], 0 offen")
    a.label(f"{name}_end"); a("s_endpgm")
    return dict(name=name, nv=56, acc_off=56, grid=256, block=256, lds=0)

def phase_g1(a, name="g1"):
    cfgN = GemmCfg(256, 256, 2, 2, native_a=False, swap=False, stages=2, ms=16)
    cfgS = GemmCfg(256, 256, 2, 2, native_a=False, swap=True, stages=2, ms=16)
    V = RegAlloc(0, 256, "v"); S = RegAlloc(36, 100, "s")
    cfgN.acc7_base = 208
    vT = V.alloc("T", 16, 4)
    core = Core4(a, cfgN, V, S)
    core.use_step4 = True; core.GX = int(os.environ.get("G1X", "5")); core.GW = int(os.environ.get("G1W", "4"))
    vlane = V.alloc("lane"); vout = V.alloc("vout"); vc1 = V.alloc("c1", 2, 2)
    vpf = V.alloc("vpf"); vdum = V.alloc("vdum")
    A = RegAlloc(core.NA, 256, "a")
    vt = [vT + 4, vT + 5, vT + 6, vT + 7]
    s_wave = S_WAVE; s_wt = S.alloc("wt"); s_wn = S.alloc("wn")
    s_cur = S.alloc("cur"); s_nxt = S.alloc("nxt"); s_nx2 = S.alloc("nx2"); s_sig = S.alloc("sig")
    s_ab, s_lda, s_bb, s_ldw = 21, 26, 27, 30
    sO = S.alloc("srdO", 4, 4); sPF = S.alloc("srdPF", 4, 4); sF = S.alloc("srdF", 4, 4)
    s_pf2 = 20; s_c = 18
    sD = S.alloc("srdD", 4, 4); s_ok = S.alloc("initok"); s_dw = S.alloc("dbgw"); s_dl = S.alloc("dbgl")
    aI = A.alloc("init")
    G1D = bool(os.environ.get("G1D"))
    aL = A.alloc("ls", 10) if G1D else None
    def lstamp():
        if not G1D: return
        a("s_memtime s[4:5]"); a("s_waitcnt lgkmcnt(0)")
        for k in range(9): a(f"v_accvgpr_mov_b32 {ar(aL+k)}, {ar(aL+k+1)}")
        a(f"v_accvgpr_write_b32 {ar(aL+9)}, s4")
    a("s_load_dwordx16 s[8:23], s[0:1], 0")
    a("s_load_dwordx8 s[24:31], s[0:1], 64")
    a("s_load_dwordx4 s[32:35], s[0:1], 96")
    a(f"v_and_b32 {vr(vlane)}, 63, v0")
    a(f"v_lshrrev_b32 {vr(vt[0])}, 6, v0")
    a("s_nop 0")
    a(f"v_readfirstlane_b32 {sr(s_wave)}, {vr(vt[0])}")
    a("s_nop 3")
    a(f"s_lshr_b32 {sr(s_wt)}, {sr(s_wave)}, 1")
    a(f"s_and_b32 {sr(s_wn)}, {sr(s_wave)}, 1")
    a("s_and_b32 s3, s2, 7"); a("s_lshr_b32 s4, s2, 3")
    a("s_lshr_b32 s5, s4, 3"); a("s_and_b32 s6, s4, 7")
    a("s_lshl_b32 s7, s3, 1"); a(f"s_and_b32 {sr(s_cur)}, s5, 1"); a(f"s_add_u32 s7, s7, {sr(s_cur)}")
    a("s_lshl_b32 s7, s7, 3"); a("s_add_u32 s7, s7, s6"); a("s_add_u32 s7, s7, 0x400")
    a(f"s_mul_i32 {sr(s_nx2)}, s3, 28"); a(f"s_add_u32 {sr(s_nx2)}, {sr(s_nx2)}, s4"); a(f"s_add_u32 {sr(s_nx2)}, {sr(s_nx2)}, 0x700")
    a("s_cmp_lt_u32 s4, 28"); a(f"s_cselect_b32 {sr(s_nx2)}, {sr(s_nx2)}, 0")
    a("s_add_u32 s3, s7, 0x100"); a("s_add_u32 s4, s7, 0x200")
    a("s_cmp_lt_u32 s5, 2")
    a(f"s_cselect_b32 {sr(s_cur)}, s7, s3")
    a(f"s_cselect_b32 {sr(s_nxt)}, {sr(s_nx2)}, s4")
    a(f"s_cselect_b32 {sr(s_nx2)}, 0, {sr(s_nx2)}")
    a(f"s_brev_b32 {sr(s_sig)}, 1")
    c1 = -2.0 * math.sqrt(2.0 / math.pi) * math.log2(math.e); c2 = c1 * 0.044715
    uid = [0]
    def fields(code):
        a(f"s_bfe_u32 s5, {sr(code)}, 0x20008"); a(f"s_bfe_u32 s6, {sr(code)}, 0x50003")
    def decodeB(sB):
        uid[0] += 1; L = f"{name}_db{uid[0]}"
        a("s_cmp_eq_u32 s5, 3"); a(f"s_cbranch_scc1 {L}_gu")
        a(f"s_mov_b32 {sr(sB)}, s12"); a(f"s_mov_b32 {sr(sB+1)}, s13"); a(f"s_mov_b32 {sr(sB+2)}, {1024*8192}")
        a("s_cmp_eq_u32 s5, 1")
        a(f"s_cselect_b32 {sr(sB)}, s14, {sr(sB)}"); a(f"s_cselect_b32 {sr(sB+1)}, s15, {sr(sB+1)}")
        a(f"s_cselect_b32 {sr(sB+2)}, {512*8192}, {sr(sB+2)}")
        a("s_cmp_eq_u32 s5, 2")
        a(f"s_cselect_b32 {sr(sB)}, s16, {sr(sB)}"); a(f"s_cselect_b32 {sr(sB+1)}, s17, {sr(sB+1)}")
        a(f"s_cselect_b32 {sr(sB+2)}, {512*8192}, {sr(sB+2)}")
        a(f"s_mov_b32 {sr(s_ldw)}, 8192")
        a(f"s_lshl_b32 {sr(s_bb)}, s6, 9"); a(f"s_lshl_b32 s3, {sr(s_wave)}, 7"); a(f"s_add_u32 {sr(s_bb)}, {sr(s_bb)}, s3")
        a(f"s_branch {L}_src")
        a.label(f"{L}_gu")
        a(f"s_cmp_eq_u32 {sr(s_wn)}, 0")
        a(f"s_cselect_b32 {sr(sB)}, s22, s24"); a(f"s_cselect_b32 {sr(sB+1)}, s23, s25")
        a(f"s_mov_b32 {sr(sB+2)}, {1024*7168}")
        a(f"s_mov_b32 {sr(s_ldw)}, 7168")
        a(f"s_lshl_b32 {sr(s_bb)}, s6, 8"); a(f"s_lshl_b32 s3, {sr(s_wt)}, 7"); a(f"s_add_u32 {sr(s_bb)}, {sr(s_bb)}, s3")
        a.label(f"{L}_src")
        a(f"s_mov_b32 {sr(sB+3)}, 0x20000")
    def set_pf(code):
        fields(code); decodeB(sPF)
        a(f"s_cmp_eq_u32 {sr(code)}, 0"); a(f"s_cselect_b32 {sr(sPF+2)}, 0, {sr(sPF+2)}")
        a(f"v_lshrrev_b32 {vr(vpf)}, 3, {vr(vlane)}"); a(f"v_lshlrev_b32 {vr(vpf)}, 6, {vr(vpf)}")
        a(f"v_and_b32 {vr(vt[3])}, 7, {vr(vlane)}")
        a(f"s_and_b32 s3, {sr(code)}, 7"); a("s_lshl_b32 s3, s3, 3")
        a(f"v_add3_u32 {vr(vpf)}, {vr(vpf)}, {vr(vt[3])}, s3")
        a(f"v_mul_lo_u32 {vr(vpf)}, {vr(vpf)}, {sr(s_ldw)}")
        a(f"v_add_u32 {vr(vpf)}, {sr(s_bb)}, {vr(vpf)}")
        a(f"v_bfrev_b32 {vr(vt[3])}, 1")
        a(f"v_cmp_gt_u32 vcc, 16, {vr(vlane)}")
        a(f"s_lshl_b32 {sr(s_pf2)}, {sr(s_ldw)}, 7"); a("s_nop 0")
        a(f"v_cndmask_b32 {vr(vpf)}, {vr(vt[3])}, {vr(vpf)}, vcc")
    def touchW():
        return [f"buffer_load_dword {vr(vdum)}, {vr(vpf)}, {sr(sPF,4)}, 0 offen", f"v_add_u32 {vr(vpf)}, {sr(s_pf2)}, {vr(vpf)}"]
    def initload():
        return [f"buffer_load_dword {ar(aI)}, {vr(vout)}, {sr(sD,4)}, {sr(s_dl)} offen sc1"]
    def set_dma_params(code, always=False):
        uid[0] += 1; L = f"{name}_sp{uid[0]}"
        if not always:
            a(f"s_cmp_eq_u32 {sr(code)}, 0"); a(f"s_cbranch_scc0 {L}_valid")
            a(f"s_mov_b32 {sr(core.sA+2)}, 0"); a(f"s_mov_b32 {sr(core.sB+2)}, 0")
            a(f"s_branch {L}_done")
            a.label(f"{L}_valid")
        fields(code)
        a("s_sub_u32 s7, s5, 1"); a("s_cmp_lt_u32 s7, 2")
        a(f"s_cselect_b32 {sr(core.sA)}, s10, s8"); a(f"s_cselect_b32 {sr(core.sA+1)}, s11, s9")
        a(f"s_mov_b32 s7, {2048*512*2}"); a(f"s_cselect_b32 {sr(core.sA+2)}, s7, {2048*1024*2}")
        a(f"s_mov_b32 {sr(core.sA+3)}, 0x20000")
        a("s_mov_b32 s7, 1024"); a(f"s_cselect_b32 {sr(s_lda)}, s7, 2048")
        decodeB(core.sB)
        a(f"s_and_b32 s3, {sr(code)}, 7"); a("s_lshl_b32 s3, s3, 8")
        a(f"s_mul_i32 {sr(s_ab)}, s3, {sr(s_lda)}")
        core.setup_src(vlane, s_wave, s_ab, s_lda, s_bb, s_ldw, vt)
        a.label(f"{L}_done")
    def signal():
        return ["s_mov_b64 exec, 1",
                f"buffer_store_dword {vr(vc1)}, {vr(vlane)}, {sr(sF,4)}, {sr(s_sig)} offen sc1",
                f"buffer_store_byte {vr(vc1)}, {vr(vlane)}, {sr(sD,4)}, {sr(s_dw)} offen sc1",
                "s_mov_b64 exec, -1", f"s_brev_b32 {sr(s_dw)}, 1"]
    a("s_waitcnt lgkmcnt(0)")
    lstamp()
    set_dma_params(s_cur, True)
    core.setup_lane_consts(vlane, s_wave, s_wt, s_wn, vt)
    core.prologue_dma()
    a(f"v_mov_b32 {vr(vc1)}, {f32(c1)}"); a(f"v_mov_b32 {vr(vc1+1)}, {f32(c1)}")
    srd(a, sF, 34, 35, FLAG_BYTES, WS_FLAG)
    set_pf(s_cur)
    a(f"v_add_u32 {vr(vpf)}, {sr(s_pf2)}, {vr(vpf)}")
    a(touchW())
    srd(a, sD, 32, 33, 32)
    a(f"s_mov_b32 {sr(s_ok)}, 0"); a(f"s_brev_b32 {sr(s_dl)}, 1")
    a(f"s_brev_b32 {sr(s_dw)}, 1"); a(f"s_lshl_b32 s3, {sr(s_wave)}, 8"); a("s_add_u32 s3, s3, s2"); a("s_cmp_lt_u32 s3, 32"); a(f"s_cselect_b32 {sr(s_dw)}, s2, {sr(s_dw)}")
    assert struct.pack("<f", c1)[0] != 0
    a("s_lshl_b32 s3, s2, 2"); a(f"s_add_u32 s3, s3, {sr(s_wave)}"); a("s_lshl_b32 s3, s3, 7")
    a(f"v_lshlrev_b32 {vr(vout)}, 2, {vr(vlane)}"); a(f"v_mov_b32 {vr(vt[1])}, 0")
    a("s_mov_b64 exec, 0xffffffff")
    a(f"buffer_store_dword {vr(vt[1])}, {vr(vout)}, {sr(sF,4)}, s3 offen sc1")
    a("s_mov_b64 exec, -1")
    a("s_and_b32 s3, s2, 7"); a("s_lshl_b32 s3, s3, 2"); a("s_lshr_b32 s4, s2, 6"); a("s_add_u32 s3, s3, s4")
    a("s_lshl_b32 s3, s3, 2"); a(f"s_add_u32 s3, s3, {sr(s_wave)}"); a("s_lshl_b32 s3, s3, 1")
    a("s_bfe_u32 s4, s2, 0x30003"); a("s_lshl_b32 s4, s4, 8"); a("s_add_u32 s3, s3, s4")
    a(f"v_lshlrev_b32 {vr(vt[0])}, 7, {vr(vlane)}")
    a("s_lshl_b32 s4, s3, 11")
    a(f"s_add_u32 {sr(sO)}, s8, s4"); a(f"s_addc_u32 {sr(sO+1)}, s9, 0"); a(f"s_mov_b32 {sr(sO+2)}, 4096"); a(f"s_mov_b32 {sr(sO+3)}, 0x20000")
    a(f"buffer_load_dword {vr(vdum)}, {vr(vt[0])}, {sr(sO,4)}, 0 offen")
    a("s_lshl_b32 s4, s3, 10")
    a(f"s_add_u32 {sr(sO)}, s10, s4"); a(f"s_addc_u32 {sr(sO+1)}, s11, 0"); a(f"s_mov_b32 {sr(sO+2)}, 2048")
    a(f"buffer_load_dword {vr(vdum)}, {vr(vt[0])}, {sr(sO,4)}, 0 offen")
    a(touchW())
    a("s_bfe_u32 s31, s2, 0x20003"); a("s_lshl_b32 s31, s31, 2"); a(f"s_add_u32 s31, s31, {sr(s_wave)}")
    codepf.BACK["mg"] = True
    codepf.code_touch(a, KNAME, "mega_code_end", vlane, vt[0], vdum, "s31", "mg")
    a(f"s_waitcnt vmcnt({cfgN.PB + 6})")
    a("s_barrier")
    a(core.xreads(0)); a(core.wreads(0, 0)); a(core.wreads(0, 1))
    a("s_waitcnt lgkmcnt(0)")
    a("s_barrier")
    a.label(f"{name}_tile")
    lstamp()
    a(f"v_lshlrev_b32 {vr(vout)}, 2, {vr(vlane)}")
    a(f"s_bfe_u32 s5, {sr(s_cur)}, 0x20008")
    a("s_sub_u32 s7, s5, 1"); a("s_cmp_lt_u32 s7, 2")
    a(f"s_cselect_b32 {sr(core.sLoop)}, 3, 7")
    a("s_cmp_eq_u32 s5, 2")
    a(f"s_cbranch_scc1 {name}_S_first")
    def body(var, cfg):
        core.c = cfg
        def trip(first):
            core.step3(0, True, True, True, True, 2, extra=touchW() + initload(), post=signal() if first else None)
            core.step3(1, True, True, True, True, 0)
        a.label(f"{name}_{var}_first")
        core.zero_first = True; core._hist = [(4, 0), (4, 0)]
        trip(True)
        core.zero_first = False
        a(f"s_branch {name}_{var}_ctl")
        a.label(f"{name}_{var}_loop")
        trip(False)
        a(f"s_sub_u32 {sr(core.sLoop)}, {sr(core.sLoop)}, 1")
        a.label(f"{name}_{var}_ctl")
        a(f"s_cmp_gt_u32 {sr(core.sLoop)}, 3"); a(f"s_cbranch_scc1 {name}_{var}_loop")
        a(f"s_cmp_eq_u32 {sr(core.sLoop)}, 2"); a(f"s_cbranch_scc1 {name}_{var}_loop")
        a(f"s_cmp_eq_u32 {sr(core.sLoop)}, 0"); a(f"s_cbranch_scc1 {name}_{var}_epi")
        a(f"s_cmp_eq_u32 {sr(core.sLoop)}, 1"); a(f"s_cbranch_scc1 {name}_{var}_sw")
        set_pf(s_nxt)
        a(f"s_branch {name}_{var}_loop")
        a.label(f"{name}_{var}_sw")
        a("s_and_b32 s6, s2, 7"); a("s_lshl_b32 s6, s6, 1"); a("s_bfe_u32 s7, s2, 0x10004"); a("s_add_u32 s6, s6, s7"); a("s_lshl_b32 s6, s6, 7")
        a(f"s_cmp_lg_u32 {sr(s_ok)}, 0")
        a(f"s_cselect_b32 {sr(s_dl)}, s6, 0")
        set_dma_params(s_nxt)
        a(f"s_branch {name}_{var}_loop")
        a.label(f"{name}_{var}_epi")
        lstamp()
        core.c = cfgN
    def src_regs(blocks, tmp):
        regs = []
        for n_, (i, j) in enumerate(blocks):
            for r in range(4):
                if core.in_v(i): regs.append(core.accidx(i, j, r))
                else:
                    a(f"v_accvgpr_read_b32 {vr(tmp + n_*4 + r)}, {ar(core.accidx(i, j, r))}")
                    regs.append(tmp + n_ * 4 + r)
        return regs
    def head_base():
        fields(s_cur)
        a("s_lshl_b32 s3, s6, 1"); a(f"s_add_u32 s3, s3, {sr(s_wn)}"); a("s_lshl_b32 s3, s3, 19")
        a(f"s_and_b32 s7, {sr(s_cur)}, 7"); a("s_lshl_b32 s4, s7, 16"); a("s_add_u32 s3, s3, s4")
        a(f"s_lshl_b32 s4, {sr(s_wt)}, 15"); a("s_add_u32 s3, s3, s4")
        a(f"v_lshlrev_b32 {vr(vout)}, 4, {vr(vlane)}"); a(f"v_add_u32 {vr(vout)}, s3, {vr(vout)}")
        a("s_lshl_b32 s4, s5, 24")
        a(f"s_add_u32 {sr(sO)}, s34, s4"); a(f"s_addc_u32 {sr(sO+1)}, s35, 0")
        a(f"s_mov_b32 {sr(sO+2)}, {16<<20}"); a(f"s_mov_b32 {sr(sO+3)}, 0x20000")
        a("s_lshl_b32 s3, s5, 3"); a("s_add_u32 s3, s3, s7"); a("s_lshl_b32 s3, s3, 2")
        a("s_lshl_b32 s4, s6, 7"); a("s_add_u32 s3, s3, s4")
        a(f"s_cmp_eq_u32 {sr(s_wave)}, 0"); a(f"s_cselect_b32 {sr(s_sig)}, s3, {sr(s_sig)}")
    body("N", cfgN)
    a(f"s_bfe_u32 s5, {sr(s_cur)}, 0x20008")
    a("s_cmp_eq_u32 s5, 3"); a(f"s_cbranch_scc1 {name}_epi_gu")
    head_base()
    a("s_cmp_eq_u32 s5, 1"); a(f"s_cbranch_scc1 {name}_epi_k")
    def epi_qk(scale):
        cnt = 0
        if scale: a(f"s_mov_b32 {sr(s_c)}, {f32(QSCALE)}"); a(f"s_mov_b32 {sr(s_c+1)}, {f32(QSCALE)}")
        for u in range(4):
            for j in range(8):
                b = vT + (cnt % 2) * 4; cnt += 1
                R = src_regs([(2 * u, j), (2 * u + 1, j)], vT + 8)
                if scale:
                    for p in range(4): a(f"v_pk_mul_f32 {vr(R[2*p],2)}, {vr(R[2*p],2)}, {sr(s_c,2)}")
                for p in range(4): a(f"v_cvt_pk_bf16_f32 {vr(b+p)}, {vr(R[2*p])}, {vr(R[2*p+1])}")
                a(f"s_mov_b32 s3, {j*4096}")
                a(f"buffer_store_dwordx4 {vr(b,4)}, {vr(vout)}, {sr(sO,4)}, s3 offen offset:{u*1024}{ST}")
    epi_qk(True); a(f"s_branch {name}_next")
    a.label(f"{name}_epi_k"); epi_qk(False); a(f"s_branch {name}_next")
    a.label(f"{name}_epi_gu")
    a("s_waitcnt vmcnt(0) lgkmcnt(0)")
    a("s_barrier")
    a(f"v_accvgpr_read_b32 {vr(vT)}, {ar(aI)}")
    a(f"v_cmp_eq_u32 vcc, 0, {vr(vT)}")
    a("s_and_b32 vcc_lo, vcc_lo, 0xffffff")
    a(f"s_cbranch_scc0 {name}_wq2_ok")
    wait_flags(a, f"{name}_wq2", sF, sr(s_dl), 24, False, vlane, vT)
    att2.att_pre(a, sys.modules[__name__], vlane, vT, vT + 1, core.sA, core.sB, sPF, 34)
    fields(s_cur)
    a(f"s_and_b32 s7, {sr(s_cur)}, 7")
    a("s_lshl_b32 s3, s7, 4"); a(f"s_lshl_b32 s4, {sr(s_wt)}, 3"); a("s_add_u32 s3, s3, s4")
    a(f"s_mul_i32 s3, s3, {Z_KB*1024}")
    a("s_lshl_b32 s4, s6, 12"); a("s_add_u32 s3, s3, s4")
    a(f"s_lshl_b32 s4, {sr(s_wn)}, 11"); a("s_add_u32 s3, s3, s4")
    a(f"v_lshlrev_b32 {vr(vout)}, 4, {vr(vlane)}"); a(f"v_add_u32 {vr(vout)}, s3, {vr(vout)}")
    srd(a, sO, 34, 35, 128 * Z_KB * 1024, WS_Z)
    a("s_lshl_b32 s3, s6, 2"); a("s_lshl_b32 s4, s7, 7"); a("s_add_u32 s3, s3, s4"); a(f"s_add_u32 s3, s3, {F_GU}")
    a(f"s_cmp_eq_u32 {sr(s_wave)}, 0"); a(f"s_cselect_b32 {sr(s_sig)}, s3, {sr(s_sig)}")
    a(f"s_mov_b32 {sr(s_c)}, {f32(c2)}"); a(f"s_mov_b32 {sr(s_c+1)}, {f32(c2)}")
    cnt = 0
    for u in range(2):
        for j in range(8):
            b = vT + (cnt % 2) * 4; cnt += 1
            X = src_regs([(2 * u, j), (2 * u + 1, j)], None)
            E = vT + 8
            for p in range(4): a(f"v_pk_mul_f32 {vr(E+2*p,2)}, {vr(X[2*p],2)}, {vr(X[2*p],2)}")
            for p in range(4): a(f"v_pk_fma_f32 {vr(E+2*p,2)}, {vr(E+2*p,2)}, {sr(s_c,2)}, {vr(vc1,2)}")
            for p in range(4): a(f"v_pk_mul_f32 {vr(E+2*p,2)}, {vr(E+2*p,2)}, {vr(X[2*p],2)}")
            for e in range(8): a(f"v_exp_f32 {vr(E+e)}, {vr(E+e)}")
            for n_, ib in enumerate((4 + 2 * u, 5 + 2 * u)):
                if core.in_v(ib):
                    for p in range(2): a(f"v_pk_mul_f32 {vr(X[n_*4+2*p],2)}, {vr(X[n_*4+2*p],2)}, {vr(core.accidx(ib,j,2*p),2)}")
                else:
                    tmp = core.accidx(4 + 2 * u, j, 0)
                    for r in range(4): a(f"v_accvgpr_read_b32 {vr(tmp+r)}, {ar(core.accidx(ib,j,r))}")
                    for p in range(2): a(f"v_pk_mul_f32 {vr(X[n_*4+2*p],2)}, {vr(X[n_*4+2*p],2)}, {vr(tmp+2*p,2)}")
            for p in range(4): a(f"v_pk_add_f32 {vr(E+2*p,2)}, {vr(E+2*p,2)}, 1.0 op_sel_hi:[1,0]")
            for e in range(8): a(f"v_rcp_f32 {vr(E+e)}, {vr(E+e)}")
            a(f"s_mov_b32 s3, {j*Z_KB*1024}")
            for p in range(4): a(f"v_pk_mul_f32 {vr(X[2*p],2)}, {vr(X[2*p],2)}, {vr(E+2*p,2)}")
            for p in range(4): a(f"v_cvt_pk_bf16_f32 {vr(b+p)}, {vr(X[2*p])}, {vr(X[2*p+1])}")
            a(f"buffer_store_dwordx4 {vr(b,4)}, {vr(vout)}, {sr(sO,4)}, s3 offen offset:{u*1024}{ST}")
    a(f"s_mov_b32 s{S_PSIG}, {sr(s_sig)}")
    a(f"s_branch {name}_exit")
    body("S", cfgS)
    head_base()
    cnt = 0
    for i in range(8):
        for uu in range(4):
            b = vT + (cnt % 2) * 4; cnt += 1
            R = src_regs([(i, 2 * uu), (i, 2 * uu + 1)], vT + 8)
            for p in range(4): a(f"v_cvt_pk_bf16_f32 {vr(b+p)}, {vr(R[2*p])}, {vr(R[2*p+1])}")
            a(f"s_mov_b32 s3, {uu*8192 + (i//4)*4096}")
            a(f"buffer_store_dwordx4 {vr(b,4)}, {vr(vout)}, {sr(sO,4)}, s3 offen offset:{(i%4)*1024}{ST}")
    a.label(f"{name}_next")
    a(f"s_cmp_lg_u32 {sr(s_ok)}, 0"); a(f"s_cbranch_scc1 {name}_iok")
    a(f"v_accvgpr_read_b32 {vr(vT+8)}, {ar(aI)}")
    a("s_mov_b32 s3, 0")
    a.label(f"{name}_ichk")
    a(f"v_subrev_u32 {vr(vT+9)}, 0x01010101, {vr(vT+8)}")
    a(f"v_not_b32 {vr(vT+8)}, {vr(vT+8)}")
    a(f"v_and_b32 {vr(vT+8)}, {vr(vT+8)}, {vr(vT+9)}")
    a(f"v_and_b32 {vr(vT+8)}, 0x80808080, {vr(vT+8)}")
    a(f"v_cmp_ne_u32 vcc, 0, {vr(vT+8)}")
    a("s_and_b32 vcc_lo, vcc_lo, 0xff")
    a(f"s_cbranch_scc0 {name}_iset")
    a("s_sleep 4")
    a(f"v_lshlrev_b32 {vr(vT+9)}, 2, {vr(vlane)}")
    a(f"buffer_load_dword {vr(vT+8)}, {vr(vT+9)}, {sr(sD,4)}, 0 offen sc1")
    a("s_waitcnt vmcnt(0)")
    a("s_add_u32 s3, s3, 1"); a(f"s_cmp_lt_u32 s3, {SPIN_MAX}"); a(f"s_cbranch_scc1 {name}_ichk")
    a.label(f"{name}_iset")
    a(f"s_mov_b32 {sr(s_ok)}, 1")
    a(f"s_mov_b32 {sr(sD)}, {sr(sF)}"); a(f"s_mov_b32 {sr(sD+1)}, {sr(sF+1)}"); a(f"s_mov_b32 {sr(sD+2)}, {sr(sF+2)}")
    a.label(f"{name}_iok")
    a(f"s_brev_b32 {sr(s_dl)}, 1")
    a(f"s_mov_b32 {sr(s_cur)}, {sr(s_nxt)}"); a(f"s_mov_b32 {sr(s_nxt)}, {sr(s_nx2)}"); a(f"s_mov_b32 {sr(s_nx2)}, 0")
    a(f"s_cmp_lg_u32 {sr(s_cur)}, 0"); a(f"s_cbranch_scc1 {name}_tile")
    lstamp()
    a("s_waitcnt vmcnt(0) lgkmcnt(0)")
    a("s_barrier")
    a(signal())
    lstamp()
    if G1D:
        a(f"s_add_u32 {sr(sO)}, s34, {WS_STAMP + (1<<20)}"); a(f"s_addc_u32 {sr(sO+1)}, s35, 0"); a(f"s_mov_b32 {sr(sO+2)}, 0x40000"); a(f"s_mov_b32 {sr(sO+3)}, 0x20000")
        a("s_lshl_b32 s3, s2, 8"); a(f"s_lshl_b32 s4, {sr(s_wave)}, 6"); a("s_add_u32 s3, s3, s4"); a("v_mov_b32 v1, s3")
        for k in range(10):
            a(f"buffer_store_dword {ar(aL+k)}, v1, {sr(sO,4)}, 0 offen offset:{4*k}")
    a("s_lshr_b32 s4, s2, 3")
    a("s_and_b32 s3, s2, 7"); a("s_sub_u32 s4, s4, 28")
    a("s_add_u32 s5, s4, 28"); a("s_lshl_b32 s5, s5, 2"); a("s_lshl_b32 s6, s3, 7"); a("s_add_u32 s5, s5, s6"); a(f"s_add_u32 s5, s5, {F_GU}")
    a(f"s_cmp_eq_u32 {sr(s_wave)}, 0"); a(f"s_cselect_b32 {sr(s_sig)}, s5, {sr(s_sig)}")
    a("s_lshl_b32 s3, s3, 2"); a("s_add_u32 s3, s3, s4"); a("s_lshl_b32 s3, s3, 6")
    a(f"s_lshl_b32 s4, {sr(s_wave)}, 4"); a("s_add_u32 s3, s3, s4")
    srd(a, core.sA, 8, 9, 2048 * 1024 * 2); srd(a, core.sB, 28, 29, 2048); srd(a, sO, 34, 35, 8192, WS_G)
    G = 8; XB = 32
    a(f"v_lshlrev_b32 v2, 5, {vr(vlane)}")
    a(f"buffer_load_dwordx4 v[{G}:{G+3}], v2, {sr(core.sB,4)}, 0 offen"); a(f"buffer_load_dwordx4 v[{G+4}:{G+7}], v2, {sr(core.sB,4)}, 0 offen offset:16")
    a("s_lshl_b32 s4, s3, 11"); a("v_add_u32 v3, s4, v2")
    for t in range(16):
        a(f"s_mov_b32 s5, {t*2048}")
        a(f"buffer_load_dwordx4 v[{XB+8*t}:{XB+8*t+3}], v3, {sr(core.sA,4)}, s5 offen")
        a(f"buffer_load_dwordx4 v[{XB+8*t+4}:{XB+8*t+7}], v3, {sr(core.sA,4)}, s5 offen offset:16")
    a("s_waitcnt vmcnt(32)")
    for r in range(8):
        a(f"v_lshlrev_b32 v{16+2*r}, 16, v{G+r}"); a(f"v_and_b32 v{17+2*r}, 0xffff0000, v{G+r}")
    a("v_mov_b32 v6, 0")
    for t in range(16):
        a(f"s_waitcnt vmcnt({2*(15-t)})")
        for r in range(8):
            x = XB + 8 * t + r
            a(f"v_lshlrev_b32 v5, 16, v{x}")
            a(f"v_mul_f32 v4, v5, v{16+2*r}" if r == 0 else f"v_fmac_f32 v4, v5, v{16+2*r}")
            a(f"v_and_b32 v5, 0xffff0000, v{x}"); a(f"v_fmac_f32 v4, v5, v{17+2*r}")
        for m in ("quad_perm:[1,0,3,2]", "quad_perm:[2,3,0,1]", "row_half_mirror", "row_mirror"):
            a("s_nop 1"); a(f"v_add_f32_dpp v4, v4, v4 {m} row_mask:0xf bank_mask:0xf")
        a("s_nop 1")
        for q in range(4): a(f"v_readlane_b32 s{4+q}, v4, {16*q}")
        a("s_nop 1")
        a("v_mov_b32 v5, s4"); a("v_add_f32 v5, s5, v5"); a("v_add_f32 v5, s6, v5"); a("v_add_f32 v5, s7, v5")
        a(f"v_cmp_eq_u32 vcc, {t}, {vr(vlane)}"); a("s_nop 1"); a("v_cndmask_b32 v6, v6, v5, vcc")
    a(f"v_mul_f32 v6, {f32(-math.log2(math.e))}, v6")
    a("v_exp_f32 v6, v6"); a("s_nop 0"); a("v_add_f32 v6, 1.0, v6"); a("v_rcp_f32 v6, v6")
    a(f"v_add_u32 v7, s3, {vr(vlane)}"); a("v_lshlrev_b32 v7, 2, v7")
    a("s_mov_b64 exec, 0xffff")
    a(f"buffer_store_dword v6, v7, {sr(sO,4)}, 0 offen sc1")
    a("s_mov_b64 exec, -1")
    a("s_waitcnt vmcnt(0)")
    a("s_barrier")
    a(signal())
    a.label(f"{name}_nog")
    a("s_and_b32 s6, s2, 7"); a("s_lshl_b32 s6, s6, 1"); a("s_bfe_u32 s7, s2, 0x10004"); a("s_add_u32 s6, s6, s7"); a("s_lshl_b32 s6, s6, 7")
    wait_flags(a, f"{name}_wq", sF, "s6", 24, False, vlane, vT)
    att2.att_pre(a, sys.modules[__name__], vlane, vT, vT + 1, core.sA, core.sB, sPF, 34)
    a(f"s_brev_b32 s{S_PSIG}, 1")
    a.label(f"{name}_exit")

def phase_g3(a, name="g3"):
    cfg = GemmCfg(128, 128, 2, 2, native_a=True, swap=False, stages=4, ms=16)
    V = RegAlloc(4, 256, "v"); S = RegAlloc(36, 100, "s")
    core = GemmCore3(a, cfg, V, S, False)
    core.use_step4 = True; core.GX = int(os.environ.get("G3X", "3")); core.GW = int(os.environ.get("G3W", "3"))
    accH = core.accbase; accA = V.alloc("acc2", 64, 4)
    vw = V.alloc("vw", 4, 2)
    vlane = V.alloc("lane"); vt = [V.alloc(f"t{i}") for i in range(4)]
    vout = V.alloc("vout"); vg = V.alloc("g", 4); vpart = V.alloc("vpart")
    vpa = V.alloc("vpa"); vpw = V.alloc("vpw"); vdum = V.alloc("vdum"); vflag = V.alloc("vflag"); vfa = V.alloc("vfa")
    s_wave = S_WAVE; s_wt = S.alloc("wt"); s_wn = S.alloc("wn")
    s_tm = S.alloc("tm"); s_tn = S.alloc("tn"); s_half = S.alloc("half")
    s_ab = S.alloc("ab"); s_lda = S.alloc("lda"); s_bb = S.alloc("bb"); s_ldw = S.alloc("ldw"); s_fo = S.alloc("fo"); s_pid = S.alloc("pid")
    s_dA = S.alloc("dA"); s_dB = S.alloc("dB")
    sO = S.alloc("srdO", 4, 4); sG = S.alloc("srdG", 4, 4); sP = S.alloc("srdP", 4, 4); sF = S.alloc("srdF", 4, 4); sBT = S.alloc("srdBT", 4, 4)
    PA, PB, SS = cfg.PA, cfg.PB, cfg.S
    a("s_load_dwordx16 s[8:23], s[0:1], 0")
    a("s_load_dwordx8 s[24:31], s[0:1], 64")
    a("s_load_dwordx4 s[32:35], s[0:1], 96")
    lane_id(a, vlane)
    a(f"s_lshr_b32 {sr(s_wt)}, {sr(s_wave)}, 1"); a(f"s_and_b32 {sr(s_wn)}, {sr(s_wave)}, 1")
    a(f"s_and_b32 {sr(s_half)}, s2, 1")
    a("s_lshr_b32 s4, s2, 3")
    a("s_bfe_u32 s5, s2, 0x10002"); a("s_lshl_b32 s5, s5, 3"); a("s_and_b32 s6, s4, 7"); a(f"s_add_u32 {sr(s_tm)}, s5, s6")
    a("s_bfe_u32 s5, s2, 0x10001"); a("s_lshl_b32 s5, s5, 2"); a("s_lshr_b32 s6, s4, 3"); a(f"s_add_u32 {sr(s_tn)}, s5, s6")
    a("s_waitcnt lgkmcnt(0)")
    srd(a, sF, 34, 35, FLAG_BYTES, WS_FLAG)
    a(f"s_lshr_b32 {sr(s_fo)}, {sr(s_tm)}, 1"); a(f"s_lshl_b32 {sr(s_fo)}, {sr(s_fo)}, 7"); a(f"s_add_u32 {sr(s_fo)}, {sr(s_fo)}, {F_GU}")
    wait_flags(a, f"{name}_w0", sF, sr(s_fo), 32, False, vlane, vw)
    srd(a, core.sA, 34, 35, 128 * Z_KB * 1024, WS_Z)
    srd(a, core.sB, 26, 27, 3584 * 2048); srd(a, sBT, 26, 27, 3584 * 2048)
    a(f"s_mov_b32 {sr(s_lda)}, {Z_KB*1024}"); a(f"s_mov_b32 {sr(s_ldw)}, 2048")
    a(f"s_mul_i32 {sr(s_ab)}, {sr(s_tm)}, {8*Z_KB*1024}")
    H0 = int(os.environ.get("H0", "32")); H1 = 56 - H0
    a(f"s_mul_i32 s3, {sr(s_half)}, {H0*2048}"); a(f"s_add_u32 {sr(s_ab)}, {sr(s_ab)}, s3")
    a(f"s_mul_i32 s5, {sr(s_half)}, {H0*64*2048}")
    a(f"s_lshl_b32 s6, {sr(s_tn)}, 8"); a("s_add_u32 s7, s5, s6")
    a(f"s_lshl_b32 s3, {sr(s_wt)}, 7"); a(f"s_add_u32 {sr(s_bb)}, s7, s3")
    core.setup_src(vlane, s_wave, s_ab, s_lda, s_bb, s_ldw, vt)
    core.setup_lane_consts(vlane, s_wave, s_wt, s_wn, vt)
    core.prologue_dma()
    a(f"s_cmp_eq_u32 {sr(s_half)}, 0")
    a(f"s_mov_b32 s3, {112*1024 - H0*2048}"); a(f"s_cselect_b32 {sr(s_dA)}, s3, {32*2048}")
    a(f"s_mov_b32 s3, {(-H0*64*2048) & 0xffffffff}"); a(f"s_cselect_b32 {sr(s_dB)}, s3, {((32-56)*64*2048) & 0xffffffff}")
    a(f"s_cselect_b32 {sr(core.sLoop)}, {H0//4}, {H1//4}")
    srd(a, sO, 30, 31, 2048 * 1024 * 2); srd(a, sG, 34, 35, 8192, WS_G); srd(a, sP, 34, 35, 128 * 65536, WS_PART)
    a(f"s_and_b32 s3, {sr(s_tn)}, 3"); a("s_lshl_b32 s3, s3, 1"); a(f"s_add_u32 s3, s3, {sr(s_wt)}")
    a(f"s_mul_i32 s3, s3, {sr(s_lda)}"); a(f"s_add_u32 s3, s3, {sr(s_ab)}")
    a(f"s_lshl_b32 s4, {sr(s_wn)}, 12"); a("s_add_u32 s3, s3, s4")
    a(f"v_lshlrev_b32 {vr(vpa)}, 7, {vr(vlane)}"); a(f"v_add_u32 {vr(vpa)}, s3, {vr(vpa)}")
    a(f"v_bfrev_b32 {vr(vt[3])}, 1")
    a(f"v_cmp_gt_u32 vcc, 32, {vr(vlane)}"); a("s_nop 1")
    a(f"v_cndmask_b32 {vr(vpa)}, {vr(vt[3])}, {vr(vpa)}, vcc")
    a(f"s_and_b32 s3, {sr(s_tm)}, 7"); a("s_lshl_b32 s3, s3, 3"); a(f"s_lshl_b32 s4, {sr(s_wave)}, 6"); a("s_add_u32 s3, s3, s4")
    a(f"v_lshrrev_b32 {vr(vpw)}, 1, {vr(vlane)}"); a(f"v_add_u32 {vr(vpw)}, s3, {vr(vpw)}")
    a(f"v_lshlrev_b32 {vr(vpw)}, 11, {vr(vpw)}")
    a(f"v_and_b32 {vr(vt[2])}, 1, {vr(vlane)}"); a(f"v_lshl_add_u32 {vr(vpw)}, {vr(vt[2])}, 7, {vr(vpw)}")
    a(f"v_add_u32 {vr(vpw)}, s7, {vr(vpw)}")
    a(f"v_cmp_gt_u32 vcc, 16, {vr(vlane)}"); a("s_nop 1")
    a(f"v_cndmask_b32 {vr(vpw)}, {vr(vt[3])}, {vr(vpw)}, vcc")
    tA = [f"buffer_load_dword {vr(vdum)}, {vr(vpa)}, {sr(core.sA,4)}, 0 offen", f"v_add_u32 {vr(vpa)}, 0x2000, {vr(vpa)}"]
    tW = [f"buffer_load_dword {vr(vdum)}, {vr(vpw)}, {sr(sBT,4)}, 0 offen", f"v_add_u32 {vr(vpw)}, {4*64*2048}, {vr(vpw)}"]
    a(tA[1]); a(tW[1]); a(tA); a(tW)
    a(f"s_lshl_b32 {sr(s_fo)}, {sr(s_tm)}, 1"); a(f"s_add_u32 {sr(s_fo)}, {sr(s_fo)}, {sr(s_half)}"); a(f"s_lshl_b32 {sr(s_fo)}, {sr(s_fo)}, 6")
    a(f"s_add_u32 {sr(s_fo)}, {sr(s_fo)}, {F_CTX}")
    a(f"v_and_b32 {vr(vfa)}, 15, {vr(vlane)}"); a(f"v_lshlrev_b32 {vr(vfa)}, 2, {vr(vfa)}")
    tF = [f"buffer_load_dword {vr(vflag)}, {vr(vfa)}, {sr(sF,4)}, {sr(s_fo)} offen sc1"]
    a(f"s_lshl_b32 s3, {sr(s_tm)}, 7"); a(f"s_lshl_b32 s4, {sr(s_wt)}, 6"); a("s_add_u32 s3, s3, s4")
    a(f"v_and_b32 {vr(vt[0])}, 15, {vr(vlane)}"); a(f"v_add_u32 {vr(vt[0])}, s3, {vr(vt[0])}")
    a(f"v_lshlrev_b32 {vr(vt[1])}, 2, {vr(vt[0])}")
    for j in range(4): a(f"buffer_load_dword {vr(vg+j)}, {vr(vt[1])}, {sr(sG,4)}, 0 offen offset:{j*64}")
    a(f"v_lshlrev_b32 {vr(vout)}, 11, {vr(vt[0])}")
    a(f"v_lshrrev_b32 {vr(vt[2])}, 4, {vr(vlane)}")
    a(f"v_lshl_add_u32 {vr(vout)}, {vr(vt[2])}, 3, {vr(vout)}")
    a(f"s_lshl_b32 s3, {sr(s_tn)}, 8"); a(f"s_lshl_b32 s4, {sr(s_wn)}, 7"); a("s_add_u32 s3, s3, s4")
    a(f"v_add_u32 {vr(vout)}, s3, {vr(vout)}")
    a(f"s_lshl_b32 s3, {sr(s_tm)}, 3"); a(f"s_add_u32 s3, s3, {sr(s_tn)}"); a("s_lshl_b32 s3, s3, 2"); a(f"s_add_u32 {sr(s_pid)}, s3, {sr(s_wave)}")
    a(f"s_lshl_b32 s3, {sr(s_pid)}, 14"); a(f"s_lshl_b32 s4, {sr(s_half)}, 13"); a("s_add_u32 s3, s3, s4")
    a(f"v_lshlrev_b32 {vr(vpart)}, 4, {vr(vlane)}"); a(f"v_add_u32 {vr(vpart)}, s3, {vr(vpart)}")
    core.accbase = accH; core.zero_acc(); core.accbase = accA; core.zero_acc()
    a(f"s_waitcnt vmcnt({(SS-2)*(PA+PB) + PB + 6})")
    a("s_barrier")
    a(core.xreads(0)); a(core.wreads(0, 0)); a(core.wreads(0, 1))
    a("s_waitcnt lgkmcnt(0)")
    a("s_barrier")
    core._hist = [(4, 0), (4, 0)]
    def trip(extras):
        cnt = {t: sum(1 for x in e if x.startswith("buffer_")) for t, e in extras.items()}
        for t in range(4):
            nx = sum(cnt.get(u % 4, 0) for u in range(t + 2 - SS, t + 1))
            core.step3(t, True, True, True, True, (SS - 2) * (PA + PB) + nx, extra=extras.get(t))
    core.accbase = accH
    a.label(f"{name}_l1")
    trip({0: tA + tF, 2: tW})
    a(f"s_sub_u32 {sr(core.sLoop)}, {sr(core.sLoop)}, 1")
    a(f"s_cmp_gt_u32 {sr(core.sLoop)}, 2"); a(f"s_cbranch_scc1 {name}_l1")
    a(f"s_cmp_eq_u32 {sr(core.sLoop)}, 0"); a(f"s_cbranch_scc1 {name}_l2s")
    a(f"s_cmp_eq_u32 {sr(core.sLoop)}, 1"); a(f"s_cbranch_scc1 {name}_swd")
    a(f"v_cmp_eq_u32 vcc, 0, {vr(vflag)}")
    a(f"s_cbranch_vccz {name}_w1_ok")
    wait_flags(a, f"{name}_w1", sF, sr(s_fo), 16, False, vlane, vw)
    a(f"v_add_u32 {vr(vpa)}, {sr(s_dA)}, {vr(vpa)}"); a(f"v_add_u32 {vr(vpw)}, {sr(s_dB)}, {vr(vpw)}")
    srd(a, sBT, 18, 19, 4096 * 2048)
    a(f"s_branch {name}_l1")
    a.label(f"{name}_swd")
    a(f"v_add_u32 {vr(core.vAsrc[0])}, {sr(s_dA)}, {vr(core.vAsrc[0])}"); a(f"v_add_u32 {vr(core.vBsrc[0])}, {sr(s_dB)}, {vr(core.vBsrc[0])}")
    srd(a, core.sB, 18, 19, 4096 * 2048)
    a(f"s_branch {name}_l1")
    a.label(f"{name}_l2s")
    core.accbase = accA
    a(f"s_mov_b32 {sr(core.sLoop)}, 6")
    a.label(f"{name}_l2")
    trip({0: tA, 2: tW})
    a(f"s_sub_u32 {sr(core.sLoop)}, {sr(core.sLoop)}, 1")
    a(f"s_cmp_lg_u32 {sr(core.sLoop)}, 0"); a(f"s_cbranch_scc1 {name}_l2")
    core.tail()
    stamp(a, 4)
    a("s_nop 7")
    a("s_mov_b32 s6, 4096")
    R = core.xf[0][0][0]; W = core.wf[0][0]
    def comb(blk):
        o = blk * 4; j = blk % 4
        for r in range(4): a(f"v_sub_f32 {vr(accA+o+r)}, {vr(accA+o+r)}, {vr(accH+o+r)}")
        for r in range(4): a(f"v_fma_f32 {vr(accA+o+r)}, {vr(accA+o+r)}, {vr(vg+j)}, {vr(accH+o+r)}")
    def fin(h):
        for k in range(8):
            blk = (1 - h) * 8 + k
            comb(blk)
            a(f"buffer_store_dwordx4 {vr(accA+4*blk,4)}, {vr(vpart)}, {sr(sP,4)}, {'0' if k < 4 else 's6'} offen offset:{(k%4)*1024} sc1")
        a(f"s_lshl_b32 s3, {sr(s_pid)}, 3"); a(f"s_add_u32 {sr(s_fo)}, s3, {F_EX + 4*h}")
        for k in range(8): comb(h * 8 + k)
        a("s_waitcnt vmcnt(0)")
        a("s_mov_b64 exec, 1"); a(f"buffer_store_dword {vr(vt[3])}, {vr(vlane)}, {sr(sF,4)}, {sr(s_fo)} offen sc1"); a("s_mov_b64 exec, -1")
        a(f"s_xor_b32 {sr(s_fo)}, {sr(s_fo)}, 4")
        wait_flags(a, f"{name}_wx{h}", sF, sr(s_fo), 1, False, vlane, vw, sleep=1)
        a(f"v_xor_b32 {vr(vpart)}, 0x2000, {vr(vpart)}")
        for k in range(8):
            a(f"buffer_load_dwordx4 {vr(R+4*k,4)}, {vr(vpart)}, {sr(sP,4)}, {'0' if k < 4 else 's6'} offen offset:{(k%4)*1024} sc1")
        for k in range(8):
            blk = h * 8 + k; i, j = blk // 4, blk % 4
            a("s_waitcnt vmcnt(7)")
            b = W + (k % 4) * 8
            for r in range(4): a(f"v_add_f32 {vr(b+2+r)}, {vr(accA+4*blk+r)}, {vr(R+4*k+r)}")
            a(f"v_cvt_pk_bf16_f32 {vr(b)}, {vr(b+2)}, {vr(b+3)}"); a(f"v_cvt_pk_bf16_f32 {vr(b+1)}, {vr(b+4)}, {vr(b+5)}")
            a(f"s_mov_b32 s3, {j*16*2048}")
            a(f"buffer_store_dwordx2 {vr(b,2)}, {vr(vout)}, {sr(sO,4)}, s3 offen offset:{i*32}")
    a(f"s_cmp_lg_u32 {sr(s_half)}, 0"); a(f"s_cbranch_scc1 {name}_fin1")
    fin(0); a(f"s_branch {name}_end")
    a.label(f"{name}_fin1"); fin(1)
    a.label(f"{name}_end")

def gen_mega(a, name=KNAME):
    import sys
    from k2_gen import gen_k2
    mg = sys.modules[__name__]
    kernel_header(a, name)
    a("s_cmp_ge_u32 s2, 256"); a(f"s_cbranch_scc1 {name}_end")
    if STAMPS:
        a("v_lshrrev_b32 v1, 6, v0"); a("s_nop 0"); a(f"v_readfirstlane_b32 s{S_WAVE}, v1"); a("s_nop 3")
        stamp(a, 0)
    phase_g1(a)
    stamp(a, 1)
    cold = att2.gen_att(a, mg)
    stamp(a, 2)
    if os.environ.get("DIAG"):
        a("v_mov_b32 v2, s98"); a("buffer_store_dword v2, v1, s[8:11], 0 offen offset:48")
        a("v_mov_b32 v2, s99"); a("buffer_store_dword v2, v1, s[8:11], 0 offen offset:52")
        a("s_waitcnt vmcnt(0)")
    phase_g3(a)
    stamp(a, 5)
    a.label(f"{name}_end"); a("s_endpgm")
    a.label("mega_code_end")
    cold()
    return dict(name=name, nv=512, acc_off=256, grid=256, block=256, lds=131072 + 8192)

if __name__ == "__main__":
    import sys
    from gen_all import HEADER
    body = Asm()
    infos = [gen_mega(body)]
    out = HEADER
    for i in infos:
        if os.environ.get("LIST"): out += f"; @launch kernel={i['name']} grid=({i['grid']},1,1) block=({i['block']},1,1) lds={i['lds']}\n"
        else: out += f"; @launch grid=({i['grid']},1,1) block=({i['block']},1,1) lds={i['lds']}\n"
    out += '.amdgcn_target "amdgcn-amd-amdhsa--gfx950"\n' + body.text()
    d = Asm()
    for i in infos: kernel_desc(d, i["name"], i["nv"], i["acc_off"])
    open(sys.argv[1], "w").write(out + d.text())
```

```python
from asmb import *
from k1_gen import srd, f32, WS_Q, WS_K, WS_V, WS_Z, Z_KB
from k2_gen import RD, WAIT, resolve, flat, MF, BIAS, NEG
import os
from gpack import pack, kind
ST = " sc1"
DIAG = bool(os.environ.get("DIAG"))
NOTOUCH = bool(os.environ.get("NOTOUCH"))
SPLIT = int(os.environ.get("SPLIT", "4"))
NE = int(os.environ.get("NE", "5"))
AHEAD = float(os.environ.get("AHEAD", "3"))
DMA_GAP = int(os.environ.get("DMA_GAP", "4"))
NPRE = int(os.environ.get("NPRE", "10"))
LDS_ML = 131072
def O(db, qb): return (db * 4 + qb) * 4
def L(qb): return 128 + qb * 4
def Q(qb, ks): return 144 + (qb * 4 + ks) * 4
ONES = 208
ZERO = 244
def VF(k): return 212 + (k % 8) * 4

def job_word(a, mg, s_slot, dst):
    a(f"s_mov_b32 {sr(dst)}, 0")
    for k, jl in enumerate(mg.ATT_JOBS):
        assert len(jl) >= 2 and all(i_ > 0 for i_ in jl[:-1])
        val = 0
        for n_, i_ in enumerate(jl): val |= (16 | i_) << (5 * n_)
        a(f"s_cmp_eq_u32 {sr(s_slot)}, {k}"); a(f"s_cselect_b32 {sr(dst)}, {val}, {sr(dst)}")

def att_pre(a, mg, vlane, v0, v1, q0, q1, q2, ws_lo):
    W = mg.S_WAVE
    srd(a, q0, ws_lo, ws_lo + 1, 16 << 20, WS_K); srd(a, q1, ws_lo, ws_lo + 1, 16 << 20, WS_V); srd(a, q2, ws_lo, ws_lo + 1, 16 << 20, WS_Q)
    a("s_and_b32 s3, s2, 7"); a("s_lshl_b32 s3, s3, 2"); a("s_bfe_u32 s4, s2, 0x20003"); a("s_add_u32 s3, s3, s4"); a("s_lshl_b32 s3, s3, 19")
    a("s_lshr_b32 s4, s2, 5")
    job_word(a, mg, 4, 5)
    a("s_and_b32 s5, s5, 15")
    a(f"s_lshl_b32 s6, s{W}, 13")
    a(f"v_lshlrev_b32 {vr(v0)}, 4, {vr(vlane)}")
    a("s_lshl_b32 s5, s5, 15"); a(f"s_and_b32 s7, s{W}, 1"); a("s_lshl_b32 s7, s7, 14"); a("s_add_u32 s5, s5, s7"); a("s_add_u32 s5, s5, s3")
    a(f"v_add_u32 {vr(v1)}, s5, {vr(v0)}")
    a("s_add_u32 s3, s3, s6"); a(f"v_add_u32 {vr(v0)}, s3, {vr(v0)}")
    def dma(q, ldsbase, off):
        for h in range(2):
            a(f"s_add_u32 m0, s6, {ldsbase + h*4096}"); a(f"s_mov_b32 s7, {off + h*4096}")
            for k in range(4): a(f"buffer_load_dwordx4 {vr(v0)}, {sr(q,4)}, s7 offen offset:{k*1024} lds")
    dma(q0, 0, 0)
    for qb in range(4):
        a(f"s_mov_b32 s7, {qb*4096}")
        for ks in range(4): a(f"buffer_load_dwordx4 {ar(Q(qb,ks),4)}, {vr(v1)}, {sr(q2,4)}, s7 offen offset:{ks*1024}")
    dma(q1, 65536, 0)
    dma(q0, 32768, 32768)

def gen_att(a, mg, name="a2"):
    V = RegAlloc(1, 256, "v"); S = RegAlloc(12, 98, "s")
    vS = V.alloc("S", 128, 4)
    def Sb(buf, kvb, qb): return vS + ((buf * 4 + kvb) * 4 + qb) * 4
    vP = V.alloc("P", 32, 4)
    def P(u, qb): return vP + (u * 4 + qb) * 4
    vK = V.alloc("K", 32, 4)
    def KF(set_, ks): return vK + (set_ * 4 + ks) * 4
    vNM = V.alloc("negm", 16, 4); vT = V.alloc("T", 16, 4); vM = V.alloc("moff", 4, 4); vD = V.alloc("delta", 4, 4)
    vlane = V.alloc("lane"); vKrd = V.alloc("Krd"); vVrd = V.alloc("Vrd"); vsrc = V.alloc("src"); vl16 = V.alloc("l16")
    vx16 = V.alloc("x16"); vx32 = V.alloc("x32"); vneg = V.alloc("neg"); vor = V.alloc("or"); vq = V.alloc("q"); vmrg = V.alloc("mrg"); vmrgR = V.alloc("mrgR")
    vpf = V.alloc("vpf"); vdum = V.alloc("vdum"); vkv = V.alloc("vkv")
    sQ = S.alloc("srdQ", 4, 4); sK = S.alloc("srdK", 4, 4); sV = S.alloc("srdV", 4, 4); sZ = S.alloc("srdZ", 4, 4)
    sPF = S.alloc("srdPF", 4, 4); sKV = S.alloc("srdKV", 4, 4); sF = S.alloc("srdF", 4, 4)
    sMD = [S.alloc(f"maskD{r}", 2, 2) for r in range(4)]; sMB = S.alloc("maskB", 2, 2)
    s_wave = mg.S_WAVE; s_qh = S.alloc("qh"); s_par = S.alloc("par"); s_head = S.alloc("head"); s_p = S.alloc("p")
    s_i = S.alloc("i"); s_iq = S.alloc("iq"); s_n = S.alloc("n"); s_g = S.alloc("gstep"); s_m0 = S.alloc("m0w"); s_hb = S.alloc("headbase")
    sPQ = [S.alloc(f"pfq{k}", 3) for k in range(2)]; s_tog = S.alloc("pftog"); s_t = S.alloc("tmp"); s_64k = S.alloc("c64k"); s_nr = S.alloc("nr48")
    s_jobs = S.alloc("jobs"); s_sig = S.alloc("sig"); s_ret = S.alloc("ret", 2, 2)
    kst = dict(j=S.alloc("kj"), o=S.alloc("ko"), e=S.alloc("ke"), srd=sK)
    vst = dict(o=S.alloc("vo"), srd=sV)
    vsrc2 = vkv

    a("s_load_dwordx2 s[4:5], s[0:1], 104"); a("s_load_dwordx2 s[8:9], s[0:1], 40"); a("s_load_dwordx2 s[10:11], s[0:1], 72")
    mg.lane_id(a, vlane)
    a(f"s_and_b32 {sr(s_qh)}, {sr(s_wave)}, 1"); a(f"s_lshr_b32 {sr(s_par)}, {sr(s_wave)}, 1")
    a("s_and_b32 s3, s2, 7"); a("s_lshl_b32 s3, s3, 2"); a("s_bfe_u32 s6, s2, 0x20003"); a(f"s_add_u32 {sr(s_head)}, s3, s6")
    a(f"s_lshr_b32 {sr(s_p)}, s2, 5")
    job_word(a, mg, s_p, s_jobs)
    a(f"s_mov_b32 {sr(s_sig)}, s{mg.S_PSIG}")
    a(f"s_lshl_b32 {sr(s_hb)}, {sr(s_head)}, 19"); a(f"s_lshl_b32 {sr(s_m0)}, {sr(s_wave)}, 13")
    a(f"s_and_b32 {sr(s_i)}, {sr(s_jobs)}, 15")
    def adv():
        st = kst
        return [f"s_mov_b32 {sr(vst['o'])}, {sr(st['o'])}", f"s_mov_b32 {sr(sV+2)}, {sr(sK+2)}",
                f"s_add_u32 {sr(st['o'])}, {sr(st['o'])}, 32768", f"s_lshr_b32 {sr(s_t)}, {sr(st['j'])}, 5",
                ("ATOM", [f"s_cmp_gt_u32 {sr(st['o'])}, {sr(st['e'])}", f"s_cselect_b32 {sr(st['j'])}, {sr(s_t)}, {sr(st['j'])}",
                          f"s_cselect_b32 {sr(st['o'])}, 0, {sr(st['o'])}"]),
                f"s_and_b32 {sr(s_t)}, {sr(st['j'])}, 15", f"s_lshl_b32 {sr(st['e'])}, {sr(s_t)}, 15",
                ("ATOM", [f"s_cmp_eq_u32 {sr(st['j'])}, 0", f"s_cselect_b32 {sr(sK+2)}, 0, {sr(sK+2)}"])]
    def flat2(items):
        o = []
        for f in items: o += (list(f[1]) if isinstance(f, tuple) else list(f) if isinstance(f, list) else [f])
        return o
    a("s_waitcnt lgkmcnt(0)")
    srd(a, sQ, 4, 5, 16 << 20, WS_Q); srd(a, sK, 4, 5, 16 << 20, WS_K); srd(a, sV, 4, 5, 16 << 20, WS_V)
    srd(a, sZ, 4, 5, 128 * Z_KB * 1024, WS_Z); srd(a, sKV, 4, 5, 48 << 20, WS_Q); srd(a, sF, 4, 5, mg.FLAG_BYTES, mg.WS_FLAG)
    a(f"s_mov_b32 {sr(kst['j'])}, {sr(s_jobs)}"); a(f"s_mov_b32 {sr(kst['o'])}, 0"); a(f"s_lshl_b32 {sr(kst['e'])}, {sr(s_i)}, 15")
    a(flat2(adv())); a(flat2(adv()))
    a(f"s_lshr_b32 {sr(s_jobs)}, {sr(s_jobs)}, 5")
    a("s_lshl_b32 s3, s2, 2"); a(f"s_add_u32 s3, s3, {sr(s_wave)}")
    a("s_mul_i32 s6, s3, 7168"); a(f"s_add_u32 {sr(sPQ[0])}, s10, s6"); a(f"s_addc_u32 {sr(sPQ[0]+1)}, s11, 0"); a(f"s_mov_b32 {sr(sPQ[0]+2)}, {0 if NOTOUCH else 7168}")
    a("s_lshl_b32 s6, s3, 13"); a(f"s_add_u32 {sr(sPQ[1])}, s8, s6"); a(f"s_addc_u32 {sr(sPQ[1]+1)}, s9, 0"); a(f"s_mov_b32 {sr(sPQ[1]+2)}, {0 if NOTOUCH else 8192}")
    a(f"s_mov_b32 {sr(sPF+3)}, 0x20000"); a(f"s_and_b32 {sr(s_tog)}, {sr(s_wave)}, 1")
    a(f"v_lshlrev_b32 {vr(vpf)}, 7, {vr(vlane)}")
    a(f"v_lshlrev_b32 {vr(vl16)}, 4, {vr(vlane)}")
    a(f"s_lshl_b32 s3, {sr(s_par)}, 14"); a(f"v_add_u32 {vr(vKrd)}, s3, {vr(vl16)}"); a(f"v_add_u32 {vr(vVrd)}, 0x10000, {vr(vKrd)}")
    a(f"s_add_u32 s3, {sr(s_hb)}, {sr(s_m0)}"); a(f"v_add_u32 {vr(vsrc)}, s3, {vr(vl16)}"); a(f"v_add_u32 {vr(vsrc2)}, 0x1000, {vr(vsrc)}")
    a(f"v_xor_b32 {vr(vx16)}, 16, {vr(vlane)}"); a(f"v_lshlrev_b32 {vr(vx16)}, 2, {vr(vx16)}")
    a(f"v_xor_b32 {vr(vx32)}, 32, {vr(vlane)}"); a(f"v_lshlrev_b32 {vr(vx32)}, 2, {vr(vx32)}")
    a(f"v_mov_b32 {vr(vneg)}, {f32(NEG)}")
    a(f"v_lshrrev_b32 {vr(vT+1)}, 4, {vr(vlane)}"); a(f"v_lshlrev_b32 {vr(vT+1)}, 2, {vr(vT+1)}"); a(f"v_and_b32 {vr(vT+2)}, 15, {vr(vlane)}")
    for r in range(4):
        a(f"v_add_u32 {vr(vT+3)}, {r}, {vr(vT+1)}"); a(f"v_cmp_gt_u32 {sr(sMD[r],2)}, {vr(vT+3)}, {vr(vT+2)}")
    a(f"v_mov_b32 {vr(vT)}, 0x3f803f80")
    for r in range(4): a(f"v_accvgpr_write_b32 {ar(ONES+r)}, {vr(vT)}")
    for r in range(4): a(f"v_accvgpr_write_b32 {ar(ZERO+r)}, 0")
    a(f"s_cmp_eq_u32 {sr(s_qh)}, {sr(s_par)}")
    for r in range(4): a(f"s_cselect_b64 {sr(sMD[r],2)}, {sr(sMD[r],2)}, 0")
    a(f"s_cselect_b64 {sr(sMB,2)}, -1, 0")
    a(f"s_mov_b32 {sr(s_g)}, 0"); a(f"s_mov_b32 {sr(s_n)}, 0")
    def signal():
        return ["s_mov_b64 exec, 1", f"buffer_store_dword {vr(vneg)}, {vr(vlane)}, {sr(sF,4)}, {sr(s_sig)} offen sc1", "s_mov_b64 exec, -1", f"s_brev_b32 {sr(s_sig)}, 1"]
    def zero_mfma():
        if os.environ.get("NO_ZM"): return [f"v_accvgpr_write_b32 {ar(r)}, 0" for r in range(144)]
        return [f"{MF} {ar(4*k,4)}, {ar(ZERO,4)}, {ar(ZERO,4)}, 0" for k in range(36)]
    def weave(valu, mf):
        out = []; mf = list(mf); c = 0
        for x in valu:
            out.append(x)
            if isinstance(x, str) and x.startswith("v_") and mf:
                c += 1
                if c % 2 == 0: out.append(mf.pop(0))
        return out + mf
    def zero_state():
        o = [f"v_accvgpr_write_b32 {ar(r)}, 0" for r in range(144)]
        return o + [f"v_mov_b32 {vr(vM+qb)}, {vr(vneg)}" for qb in range(4)]

    def dma(st, ldsbase):
        out = []
        for q in range(8):
            g = []
            if q % 4 == 0: g += [f"s_add_u32 m0, {sr(s_m0)}, {ldsbase + (q//4)*4096}"]
            g.append(f"buffer_load_dwordx4 {vr(vsrc if q < 4 else vsrc2)}, {sr(st['srd'],4)}, {sr(st['o'])} offen offset:{(q%4)*1024} lds")
            out.append(g)
        return out
    def kread(stage, kvb):
        return [RD(("K", kvb, ks), f"ds_read_b128 {vr(KF(kvb%2, ks),4)}, {vr(vKrd)} offset:{stage*32768 + (kvb*4+ks)*1024}") for ks in range(4)]
    def vread(stage, k):
        return [RD(("V", k), f"ds_read_b128 {ar(VF(k),4)}, {vr(vVrd)} offset:{stage*32768 + k*1024}")]
    def qk_group(buf, kvb, czero=False):
        out = []
        for qb in range(4):
            for ks in range(4):
                d = vr(Sb(buf, kvb, qb), 4)
                c = ("0" if czero else vr(vNM + qb * 4, 4)) if ks == 0 else d
                out.append(f"{MF} {d}, {vr(KF(kvb%2, ks),4)}, {ar(Q(qb,ks),4)}, {c}")
        return out
    def pv_group(u, db):
        return [f"{MF} {ar(O(db,qb),4)}, {ar(VF(u*8+db),4)}, {vr(P(u,qb),4)}, {ar(O(db,qb),4)}" for qb in range(4)]
    def l_group(u):
        return [f"{MF} {ar(L(qb),4)}, {ar(ONES,4)}, {vr(P(u,qb),4)}, {ar(L(qb),4)}" for qb in range(4)]
    E5 = [(0, 1), (0, 2), (0, 3), (1, 2), (1, 3)]
    EARLY = E5[:NE]
    LO2 = E5[NE:] + [(0, 0), (1, 0), (1, 1)]
    HI = [(kvb, qb) for kvb in (2, 3) for qb in range(4)]
    def softmax_ops(buf, blocks, restart):
        out = []
        def exps(n):
            kvb, qb = blocks[n]; t = vT + (n % 2) * 4; s_ = Sb(buf, kvb, qb)
            return [f"v_exp_f32 {vr(t+r)}, {vr(s_+r)}" for r in range(4)]
        def packs(n):
            kvb, qb = blocks[n]; t = vT + (n % 2) * 4; p = P(kvb // 2, qb) + (kvb % 2) * 2
            return [f"v_cvt_pk_bf16_f32 {vr(p)}, {vr(t)}, {vr(t+1)}", f"v_cvt_pk_bf16_f32 {vr(p+1)}, {vr(t+2)}, {vr(t+3)}"]
        def orr(n):
            kvb, qb = blocks[n]; p = P(kvb // 2, qb) + (kvb % 2) * 2
            return [f"v_or_b32 {vr(vor)}, {vr(p)}, {vr(p+1)}" if (n == 0 and restart) else f"v_or3_b32 {vr(vor)}, {vr(vor)}, {vr(p)}, {vr(p+1)}"]
        nb = len(blocks)
        for n in range(nb + 1):
            e = exps(n) if n < nb else []
            pk = packs(n - 1) if n >= 1 else []
            o_ = orr(n - 2) if n >= 2 else []
            out += e[:2] + pk[:1] + e[2:3] + pk[1:] + e[3:] + o_
        out += orr(nb - 1)
        return out
    class Op(str):
        needs = (); gives = None
    def mk(text, needs=(), gives=None):
        o = Op(text); o.needs = tuple(needs); o.gives = gives; return o
    def softmax_q(buf, blocks, restart, chk, pre=()):
        qe, qp = [], []
        for n_, x in enumerate(pre): qp.append(mk(x, gives=("pre",) if n_ == len(pre) - 1 else None))
        for n, (kvb, qb) in enumerate(blocks):
            t = vT + (n % 4) * 4; s_ = Sb(buf, kvb, qb); p = P(kvb // 2, qb) + (kvb % 2) * 2
            for r in range(4):
                nd = []
                if n >= 4: nd.append(("p", n - 4, r // 2))
                if pre: nd.append(("pre",))
                qe.append(mk(f"v_exp_f32 {vr(t+r)}, {vr(s_+r)}", nd, ("e", n, r)))
            qp.append(mk(f"v_cvt_pk_bf16_f32 {vr(p)}, {vr(t)}, {vr(t+1)}", [("e", n, 1)], ("p", n, 0)))
            qp.append(mk(f"v_cvt_pk_bf16_f32 {vr(p+1)}, {vr(t+2)}, {vr(t+3)}", [("e", n, 3)], ("p", n, 1)))
            qp.append(mk(f"v_or_b32 {vr(vor)}, {vr(p)}, {vr(p+1)}" if (n == 0 and restart) else f"v_or3_b32 {vr(vor)}, {vr(vor)}, {vr(p)}, {vr(p+1)}"))
        if chk: qp += [mk(x) for x in chkops()]
        return [qe, qp]
    def check(label):
        return [f"s_cbranch_vccnz {label}"]
    def chkops():
        return [f"v_and_b32 {vr(vor)}, 0x40004000, {vr(vor)}", f"v_cmp_ne_u32 vcc, 0, {vr(vor)}"]
    def fixmax(buf, has_next, first, pk=True):
        o = ["s_nop 7", "s_waitcnt lgkmcnt(0)"]
        for qb in range(4):
            d = vD + qb
            regs = [Sb(buf, kvb, qb) + r for kvb in range(4) for r in range(4)]
            o.append(f"v_max3_f32 {vr(d)}, {vr(regs[0])}, {vr(regs[1])}, {vr(regs[2])}")
            for k in range(3, 15, 2): o.append(f"v_max3_f32 {vr(d)}, {vr(d)}, {vr(regs[k])}, {vr(regs[k+1])}")
            o.append(f"v_max_f32 {vr(d)}, {vr(d)}, {vr(regs[15])}")
        for vx in (vx16, vx32):
            for qb in range(4): o.append(f"ds_bpermute_b32 {vr(vT+qb)}, {vr(vx)}, {vr(vD+qb)}")
            o.append("s_waitcnt lgkmcnt(0)")
            for qb in range(4): o.append(f"v_max_f32 {vr(vD+qb)}, {vr(vD+qb)}, {vr(vT+qb)}")
        for qb in range(4):
            o.append(f"v_add_f32 {vr(vD+qb)}, {f32(BIAS)}, {vr(vD+qb)}")
            if first: o.append(f"v_mov_b32 {vr(vM+qb)}, {vr(vD+qb)}")
            else:
                o.append(f"v_max_f32 {vr(vD+qb)}, 0, {vr(vD+qb)}"); o.append(f"v_add_f32 {vr(vM+qb)}, {vr(vM+qb)}, {vr(vD+qb)}")
            for r in range(4): o.append(f"v_sub_f32 {vr(vNM+qb*4+r)}, 0, {vr(vM+qb)}")
        for b in ([buf, 1 - buf] if has_next else [buf]):
            for kvb in range(4):
                for qb in range(4):
                    if not pk:
                        for r in range(4): o.append(f"v_sub_f32 {vr(Sb(b, kvb, qb) + r)}, {vr(Sb(b, kvb, qb) + r)}, {vr(vD+qb)}")
                        continue
                    for r in (0, 2):
                        s = Sb(b, kvb, qb) + r
                        dp = vD + (qb & ~1); hi = qb & 1
                        o.append(f"v_pk_add_f32 {vr(s,2)}, {vr(s,2)}, {vr(dp,2)} op_sel:[0,{hi}] op_sel_hi:[1,{hi}] neg_lo:[0,1] neg_hi:[0,1]")
        if not first:
            for qb in range(4):
                o.append(f"v_sub_f32 {vr(vT+8+qb)}, 0, {vr(vD+qb)}"); o.append(f"v_exp_f32 {vr(vT+8+qb)}, {vr(vT+8+qb)}")
            o.append("s_nop 0")
            for qb in range(4):
                regs = [O(db, qb) + r for db in range(8) for r in range(4)] + [L(qb) + r for r in range(4)]
                for k in range(0, len(regs), 4):
                    for e in range(4): o.append(f"v_accvgpr_read_b32 {vr(vT+e)}, {ar(regs[k+e])}")
                    for e in range(4): o.append(f"v_mul_f32 {vr(vT+e)}, {vr(vT+e)}, {vr(vT+8+qb)}")
                    for e in range(4): o.append(f"v_accvgpr_write_b32 {ar(regs[k+e])}, {vr(vT+e)}")
        o.append("s_nop 1")
        return o
    def spread(main, fill):
        items = []
        for f in fill:
            if isinstance(f, tuple): items.append(list(f[1]))
            elif isinstance(f, list): items += [[x] for x in f]
            else: items.append([f])
        n = len(main); m = len(items); out = []; k = 0
        for i in range(n):
            out.append(main[i])
            upto = (i + 1) * m // n
            while k < upto: out += items[k]; k += 1
        return out
    def mixq(x, y):
        if not y: return list(x)
        if not x: return list(y)
        out = []; k = 0
        for i, e in enumerate(x):
            out.append(e)
            upto = (i + 1) * len(y) // len(x)
            while k < upto: out.append(y[k]); k += 1
        return out
    rare = []
    ABL = os.environ.get("ABL", "").split(",")
    KPRE = [("K", kvb, ks) for kvb in range(2) for ks in range(4)]
    def emit(seq, abl=False, pre=()):
        prev = ""
        for x in resolve(flat(seq), pre):
            if abl:
                if "dma" in ABL and (x.endswith(" lds") or x.startswith("s_add_u32 m0")): continue
                if "exp" in ABL and x.startswith("v_exp"): continue
                if "valu" in ABL and x.startswith(("v_exp", "v_cvt", "v_or")): continue
                if "lds" in ABL and x.startswith("ds_read"): continue
                if "mfma" in ABL and x.startswith("v_mfma"): continue
                if "chk" in ABL and x.startswith("s_cbranch_vccnz"): continue
            if x.endswith(":"): a.label(x[:-1])
            else:
                if prev.startswith("s_add_u32 m0") and x.endswith(" lds"): a("s_nop 0")
                a(x); prev = x
    def mask_ops(par):
        o = []
        for kvb in range(4):
            for qb in range(4):
                if kvb < qb: continue
                for r in range(4):
                    s = Sb(par, kvb, qb) + r
                    o.append(f"v_cndmask_b32 {vr(s)}, {vr(s)}, {vr(vneg)}, {sr(sMD[r] if kvb == qb else sMB,2)}")
        return o
    def head(par):
        if DIAG:
            return ["s_memtime s[4:5]", "s_waitcnt vmcnt(0) lgkmcnt(0)", "s_memtime s[6:7]", "s_barrier", "s_memtime s[8:9]", "s_waitcnt lgkmcnt(0)",
                    "s_sub_u32 s5, s6, s4", "s_add_u32 s98, s98, s5", "s_sub_u32 s5, s8, s6", "s_add_u32 s99, s99, s5"]
        return ["s_waitcnt vmcnt(0) lgkmcnt(0)", "s_barrier"]
    NV0 = 4
    def phaseA(par, sm, czero, with_v=True, d=()):
        kstage = 1 - par
        mf = [WAIT(*[("K", 0, ks) for ks in range(4)])]
        for kvb in range(4):
            rd = []
            if 1 <= kvb <= 2: rd += kread(kstage, kvb + 1)
            if kvb == 3 and with_v:
                for k in range(NV0): rd += vread(par, k)
            for n_, x in enumerate(qk_group(1 - par, kvb, czero)):
                mf.append(x)
                if n_ % 2 == 0 and n_ // 2 < len(rd): mf.append(rd[n_ // 2])
            if kvb < 3: mf.append(WAIT(*[("K", kvb + 1, ks) for ks in range(4)]))
        return pack(mf, [q for q in [list(d)] + list(sm) if q])
    def sync_k(par):
        return head(par) + kread(par, 0) + kread(par, 1)
    def phaseB(par, u, extra_queues, sync=False):
        mf = l_group(u)
        tail = []
        for db in range(8):
            k = u * 8 + db
            tgt = tail if (sync and db >= 6) else mf
            if db % 2 == 0 and tgt is mf: mf.append(WAIT(("V", k), ("V", k + 1)))
            for n_, x in enumerate(pv_group(u, db)):
                tgt.append(x)
                if n_ == 0 and k + NV0 < 16: tgt += vread(par, k + NV0)
        if not sync: return pack(mf, [q for q in extra_queues if q])
        kr = kread(par, 0) + kread(par, 1)
        t2 = []
        for n_, x in enumerate(tail): t2 += [x, kr[n_]]
        given = set(); left = []
        p1 = pack(mf, [q for q in extra_queues if q], given, left)
        return p1 + head(par) + pack(t2, [q for q in left if q], given)
    def qload():
        o = [f"s_and_b32 s3, {sr(s_jobs)}, 15", "s_lshl_b32 s3, s3, 15", f"s_lshl_b32 s6, {sr(s_qh)}, 14", "s_add_u32 s3, s3, s6", f"s_add_u32 s3, s3, {sr(s_hb)}",
             f"v_add_u32 {vr(vq)}, s3, {vr(vl16)}"]
        for qb in range(4):
            o.append(f"s_mov_b32 s3, {qb*4096}")
            o += [f"buffer_load_dwordx4 {ar(Q(qb,ks),4)}, {vr(vq)}, {sr(sQ,4)}, s3 offen offset:{ks*1024}" for ks in range(4)]
        return o
    def dmas(par): return dma(kst, par * 32768) + dma(vst, 65536 + (1 - par) * 32768)
    A_HI = HI[:SPLIT]; B_HI = HI[SPLIT:]
    def sigchk(lab):
        return [("ATOM", [f"s_cmp_lt_i32 {sr(s_sig)}, 0", f"s_cbranch_scc1 {lab}_ns"] + signal() + [f"{lab}_ns:"])]
    def normal(par):
        lab = f"{name}_rn{par}"
        seq = phaseA(par, softmax_q(par, LO2 + A_HI, False, True), False, d=dmas(par)) + check(lab + "a") + [f"{lab}a_ret:"]
        seq += phaseB(par, 0, softmax_q(par, B_HI, True, True) + [adv()]) + check(lab + "b") + [f"{lab}b_ret:"]
        seq += [f"s_add_u32 {sr(s_n)}, {sr(s_n)}, 1", f"s_cmp_lg_u32 {sr(s_n)}, {sr(s_iq)}", f"s_cbranch_scc1 {lab}_nq"] + qload() + [f"{lab}_nq:"]
        seq += phaseB(par, 1, softmax_q(1 - par, EARLY, True, False), sync=True)
        seq += flat2(sigchk(lab))
        rare.append((lab + "a", par, True, EARLY + LO2 + A_HI)); rare.append((lab + "b", par, True, HI))
        return seq
    def lastit(par, has_next):
        tag = "b" if has_next else "f"
        lab = f"{name}_r{tag}{par}"
        seq = [f"s_cmp_eq_u32 {sr(s_wave)}, 2", f"s_cbranch_scc1 {lab}_w2"]
        pre = mask_ops(par)
        if not has_next:
            for k in range(NV0): seq += vread(par, k)
            seq += pre
            seq += [f"s_cmp_lg_u32 {sr(s_i)}, 0", f"s_cbranch_scc1 {lab}_nf"] + fixmax(par, False, True) + softmax_ops(par, EARLY, True) + [f"{lab}_nf:"]
            seq += softmax_ops(par, LO2, False) + chkops()
        else:
            seq += phaseA(par, softmax_q(par, LO2, False, True, pre), True, d=dmas(par))
        seq += check(lab + "a") + [f"{lab}a_ret:"]
        seq += phaseB(par, 0, softmax_q(par, HI, True, True) + ([adv()] if has_next else [])) + check(lab + "b") + [f"{lab}b_ret:"]
        seq += phaseB(par, 1, [], sync=True)
        seq.append(f"s_branch {name}_merge{par}")
        emit(seq, pre=KPRE)
        a.label(f"{lab}_w2")
        if has_next:
            emit(phaseA(par, [], True, with_v=False, d=dmas(par)) + flat2(adv()), pre=KPRE)
        emit(sync_k(par))
        a(f"s_branch {name}_merge{par}")
        rare.append((lab + "a", par, False, EARLY + LO2)); rare.append((lab + "b", par, False, HI))
    def set_iq():
        return [f"s_cmp_eq_u32 {sr(s_jobs)}, 0", f"s_cselect_b32 {sr(s_iq)}, 99, {sr(s_i)}"]
    def wtouch():
        return [f"s_mov_b32 {sr(sPF)}, {sr(sPQ[0])}", f"s_mov_b32 {sr(sPF+1)}, {sr(sPQ[0]+1)}", f"s_mov_b32 {sr(sPF+2)}, {sr(sPQ[0]+2)}",
                f"buffer_load_dword {vr(vdum)}, {vr(vpf)}, {sr(sPF,4)}, 0 offen"] + \
               [f"s_mov_b32 {sr(sPQ[0]+e)}, {sr(sPQ[1]+e)}" for e in range(3)] + [f"s_mov_b32 {sr(sPQ[1]+2)}, 0"]

    if DIAG: a("s_mov_b32 s98, 0"); a("s_mov_b32 s99, 0")
    if DIAG: a("s_mov_b32 s98, 0"); a("s_mov_b32 s99, 0")
    a(zero_state()); a(set_iq())
    a("s_waitcnt vmcnt(16)")
    a("s_barrier")
    a(wtouch())
    mg.g3_sentinel(a, vl16, vP, vq, sZ, sPF, s_wave)
    emit(kread(0, 0) + kread(0, 1) + phaseA(1, [], True, with_v=False))
    emit(sync_k(1))
    emit(fixmax(0, False, True) + softmax_ops(0, EARLY, True))
    a.label(f"{name}_it0")
    a(f"s_cmp_eq_u32 {sr(s_n)}, {sr(s_i)}"); a(f"s_cbranch_scc1 {name}_l0")
    emit(normal(0), True, KPRE)
    a.label(f"{name}_it1")
    a(f"s_cmp_eq_u32 {sr(s_n)}, {sr(s_i)}"); a(f"s_cbranch_scc1 {name}_l1")
    emit(normal(1), True, KPRE)
    a(f"s_branch {name}_it0")
    for par in range(2):
        a.label(f"{name}_l{par}")
        a(f"s_cmp_eq_u32 {sr(s_jobs)}, 0"); a(f"s_cbranch_scc1 {name}_lf{par}")
        lastit(par, True)
        a.label(f"{name}_lf{par}")
        lastit(par, False)
    for par in range(2):
        a.label(f"{name}_merge{par}")
        a(signal())
        a(wtouch())
        a(f"v_lshlrev_b32 {vr(vor)}, 2, {vr(vlane)}")
        a("s_bfe_u32 s3, s2, 0x10002"); a("s_lshl_b32 s3, s3, 2"); a("s_bfe_u32 s6, s2, 0x20004"); a("s_add_u32 s3, s3, s6")
        a("s_lshl_b32 s3, s3, 7"); a(f"s_add_u32 s3, s3, {mg.F_GU}")
        a(f"buffer_load_dword {vr(vdum)}, {vr(vor)}, {sr(sF,4)}, s3 offen sc1")
        baseV, baseK = 65536 + par * 32768, (1 - par) * 32768
        a(f"s_lshl_b32 s3, {sr(s_qh)}, 14")
        a(f"s_add_u32 s6, s3, {baseV}"); a(f"s_add_u32 s7, s3, {baseK}")
        a(f"s_cmp_eq_u32 {sr(s_par)}, 0")
        a("s_cselect_b32 s3, s6, s7"); a("s_cselect_b32 s6, s7, s6")
        a(f"v_add_u32 {vr(vmrg)}, s3, {vr(vl16)}"); a(f"v_add_u32 {vr(vmrgR)}, s6, {vr(vl16)}")
        a(f"s_cbranch_scc0 {name}_send1_{par}")
        def send(dbs):
            k = 0
            for db in dbs:
                for qb in range(4):
                    a(f"ds_write_b128 {vr(vmrg)}, {ar(O(db,qb),4)} offset:{k*1024}"); k += 1
        send(range(4, 8)); a(f"s_branch {name}_sent_{par}")
        a.label(f"{name}_send1_{par}"); send(range(0, 4))
        a.label(f"{name}_sent_{par}")
        for qb in range(4): a(f"v_accvgpr_read_b32 {vr(vD+qb)}, {ar(L(qb))}")
        a(f"s_lshl_b32 s3, {sr(s_wave)}, 11"); a(f"s_add_u32 s3, s3, {LDS_ML}"); a(f"v_add_u32 {vr(vmrg)}, s3, {vr(vl16)}")
        a(f"ds_write_b128 {vr(vmrg)}, {vr(vM,4)}"); a(f"ds_write_b128 {vr(vmrg)}, {vr(vD,4)} offset:1024")
        a(f"v_xor_b32 {vr(vmrg)}, 0x1000, {vr(vmrg)}")
        a("s_waitcnt lgkmcnt(0)"); a("s_barrier")
        R = Sb(par, 0, 0)
        a(f"ds_read_b128 {vr(vT,4)}, {vr(vmrg)}"); a(f"ds_read_b128 {vr(vT+4,4)}, {vr(vmrg)} offset:1024")
        for k in range(16): a(f"ds_read_b128 {vr(R+4*k,4)}, {vr(vmrgR)} offset:{k*1024}")
        a(f"s_lshl_b32 s3, {sr(s_i)}, 3"); a(f"s_lshl_b32 s6, {sr(s_qh)}, 2"); a("s_add_u32 s3, s3, s6"); a(f"s_mul_i32 s3, s3, {Z_KB*1024}")
        a(f"s_lshl_b32 s6, {sr(s_head)}, 12"); a("s_add_u32 s3, s3, s6"); a(f"s_lshl_b32 s6, {sr(s_par)}, 11"); a("s_add_u32 s3, s3, s6")
        a(f"s_add_u32 s3, s3, {112*1024}"); a(f"v_add_u32 {vr(vq)}, s3, {vr(vl16)}")
        a("s_waitcnt lgkmcnt(15)"); a("s_waitcnt lgkmcnt(14)") if False else None
        a("s_waitcnt lgkmcnt(0)")
        a("s_barrier")
        a(f"s_cmp_lg_u32 {sr(s_jobs)}, 0"); a(f"s_cbranch_scc1 {name}_ng{par}")
        a("s_waitcnt vmcnt(0)")
        a(f"v_cmp_eq_u32 vcc, 0, {vr(vdum)}")
        a("s_cmp_eq_u32 vcc_lo, 0")
        a(f"s_cselect_b32 s{mg.S_PSIG}, 1, 0")
        a(f"s_cbranch_scc0 {name}_ng{par}")
        if not os.environ.get("NO_ASY"): mg.g3_touch0(a, vlane, vor, vdum, sZ, sPF, s_wave)
        a.label(f"{name}_ng{par}")
        CA, CB = vNM, vNM + 4
        R4 = range(4)
        for qb in R4: a(f"v_max_f32 {vr(vT+8+qb)}, {vr(vM+qb)}, {vr(vT+qb)}")
        for qb in R4: a(f"v_sub_f32 {vr(CA+qb)}, {vr(vM+qb)}, {vr(vT+8+qb)}")
        for qb in R4: a(f"v_sub_f32 {vr(CB+qb)}, {vr(vT+qb)}, {vr(vT+8+qb)}")
        for qb in R4: a(f"v_exp_f32 {vr(CA+qb)}, {vr(CA+qb)}")
        for qb in R4: a(f"v_exp_f32 {vr(CB+qb)}, {vr(CB+qb)}")
        for qb in R4: a(f"v_mul_f32 {vr(vT+8+qb)}, {vr(vD+qb)}, {vr(CA+qb)}")
        for qb in R4: a(f"v_fmac_f32 {vr(vT+8+qb)}, {vr(vT+4+qb)}, {vr(CB+qb)}")
        for qb in R4: a(f"v_rcp_f32 {vr(vT+8+qb)}, {vr(vT+8+qb)}")
        a("s_nop 0")
        for qb in R4: a(f"v_mul_f32 {vr(CA+qb)}, {vr(CA+qb)}, {vr(vT+8+qb)}")
        for qb in R4: a(f"v_mul_f32 {vr(CB+qb)}, {vr(CB+qb)}, {vr(vT+8+qb)}")
        a(f"s_cmp_eq_u32 {sr(s_par)}, 0"); a(f"s_cbranch_scc0 {name}_fin1_{par}")
        def fin(db0):
            cnt = 0
            for qb in range(4):
                a(f"s_mov_b32 s3, {qb*Z_KB*1024}")
                for uu in range(2):
                    b = vP + (cnt % 2) * 12; cnt += 1
                    for e in range(8): a(f"v_accvgpr_read_b32 {vr(b+4+e)}, {ar(O(db0 + 2*uu + e//4, qb) + e%4)}")
                    if os.environ.get("NO_PKF"):
                        for e in range(8): a(f"v_mul_f32 {vr(b+4+e)}, {vr(b+4+e)}, {vr(CA+qb)}")
                        for e in range(8): a(f"v_fmac_f32 {vr(b+4+e)}, {vr(R+4*((2 * uu + e // 4) * 4 + qb)+e%4)}, {vr(CB+qb)}")
                    hi = qb & 1; sel = f"op_sel:[0,{hi}] op_sel_hi:[1,{hi}]"; sel3 = f"op_sel:[0,{hi},0] op_sel_hi:[1,{hi},1]"
                    for e in ([] if os.environ.get("NO_PKF") else range(0, 8, 2)): a(f"v_pk_mul_f32 {vr(b+4+e,2)}, {vr(b+4+e,2)}, {vr(CA+(qb&~1),2)} {sel}")
                    for e in ([] if os.environ.get("NO_PKF") else range(0, 8, 2)):
                        k = (2 * uu + e // 4) * 4 + qb
                        a(f"v_pk_fma_f32 {vr(b+4+e,2)}, {vr(R+4*k+e%4,2)}, {vr(CB+(qb&~1),2)}, {vr(b+4+e,2)} {sel3}")
                    for p in range(4): a(f"v_cvt_pk_bf16_f32 {vr(b+p)}, {vr(b+4+2*p)}, {vr(b+5+2*p)}")
                    a(f"buffer_store_dwordx4 {vr(b,4)}, {vr(vq)}, {sr(sZ,4)}, s3 offen offset:{uu*1024}{ST}")
        fin(0); a(f"s_branch {name}_fin_{par}")
        a.label(f"{name}_fin1_{par}"); fin(4)
        a.label(f"{name}_fin_{par}")
        a(f"s_lshl_b32 s3, {sr(s_i)}, 1"); a(f"s_lshr_b32 s6, {sr(s_head)}, 4"); a("s_add_u32 s3, s3, s6"); a("s_lshl_b32 s3, s3, 6")
        a(f"s_and_b32 s6, {sr(s_head)}, 15"); a("s_lshl_b32 s6, s6, 2"); a("s_add_u32 s3, s3, s6"); a(f"s_add_u32 s3, s3, {mg.F_CTX}")
        a(f"s_cmp_eq_u32 {sr(s_wave)}, 0"); a(f"s_cselect_b32 {sr(s_sig)}, s3, {sr(s_sig)}")
        a(f"s_cmp_eq_u32 {sr(s_jobs)}, 0"); a(f"s_cbranch_scc1 {name}_done")
        a(f"s_and_b32 {sr(s_i)}, {sr(s_jobs)}, 15"); a(f"s_lshr_b32 {sr(s_jobs)}, {sr(s_jobs)}, 5"); a(f"s_mov_b32 {sr(s_n)}, 0")
        a(set_iq())
        a(f"s_cmp_eq_u32 {sr(s_i)}, 0"); a(f"s_cbranch_scc1 {name}_z{par}")
        emit(weave(fixmax(1 - par, False, True, pk=False), zero_mfma()) + softmax_ops(1 - par, EARLY, True))
        a(f"s_branch {name}_it{1-par}")
        a.label(f"{name}_z{par}")
        a(zero_mfma()); a([f"v_mov_b32 {vr(vM+qb)}, {vr(vneg)}" for qb in range(4)])
        a(f"s_branch {name}_it{1-par}")
    a.label(f"{name}_done")
    a("s_waitcnt vmcnt(0)"); a("s_barrier")
    a(signal())
    def cold():
        for lab, par, has_next, blocks in rare:
            a.label(lab)
            a(f"s_call_b64 {sr(s_ret,2)}, {name}_fix{par}{int(has_next)}")
            emit(softmax_ops(par, blocks, True))
            a("s_nop 1"); a(f"s_branch {lab}_ret")
        for par in range(2):
            for hn in (False, True):
                a.label(f"{name}_fix{par}{int(hn)}")
                emit(fixmax(par, hn, False))
                a(f"s_setpc_b64 {sr(s_ret,2)}")
    return cold
```

```python
from asmb import *
from gemm_gen import GemmCfg, GemmCore
from gemm2 import GemmCore2
from gpack import pack
from k2_gen import RD, WAIT, resolve, flat
import os
NEWSTEP = not os.environ.get('OLDSTEP')

class GemmCore3(GemmCore2):
    def __init__(self, a, cfg, V, S, acc_in_agpr):
        s_saved = cfg.S
        cfg.S = 2
        super().__init__(a, cfg, V, S, acc_in_agpr)
        cfg.S = s_saved
        self.U = cfg.S if cfg.S % 2 == 0 else 2 * cfg.S

    def xreads(self, t):
        c = self.c
        out = []
        st = t % c.S
        for j in range(c.TJ):
            for k in range(2):
                if c.native_a:
                    off = c.A_BASE + st * c.A_STAGE + (j * 2 + k) * 1024
                    v = self.vXrd[0]
                else:
                    off = c.A_BASE + st * c.A_STAGE + j * 16 * 128
                    v = self.vXrd[k]
                assert off < 65536
                out.append(f"ds_read_b128 {vr(self.xf[t%2][j][k],4)}, {vr(v)} offset:{off}")
        return out
    def wreads(self, t, i):
        c = self.c
        out = []
        for k in range(2):
            for half in range(2):
                hoff = half * (16 * 128 if c.native_a else 512)
                off = (t % c.S) * c.B_STAGE + (i // c.BPP) * 8192 + k * 32 * 128 + hoff
                assert off < 65536
                out.append(f"ds_read_b64_tr_b16 {vr(self.wf[i%self.NWB][k]+2*half,2)}, {vr(self.vWrd[i%c.BPP])} offset:{off}")
        return out

    def zero_acc(self):
        c = self.c
        for i in range(c.TI):
            for j in range(c.TJ):
                for r in range(c.AR):
                    if self.acc_in_agpr: self.a(f"v_accvgpr_write_b32 {self.accreg(i,j,r)}, 0")
                    else: self.a(f"v_mov_b32 {self.accreg(i,j,r)}, 0")

    def step3(self, t, dX, dW, rdX, rdW, vm, barrier=True, extra=None, post=None):
        if NEWSTEP and getattr(self, "use_step4", False):
            return self.step4(t, dX, dW, rdX, rdW, vm, barrier, extra, post)
        a, c = self.a, self.c
        TI, S = c.TI, c.S
        nm = 2 * c.TJ
        xr = self.xreads(t + 1) if rdX else []
        nrx = TI - 2
        xper = [len(xr) * (r + 1) // nrx - len(xr) * r // nrx for r in range(nrx)]
        dx = self.dmaA(t % S) if dX else []
        if extra: dx = dx + [list(extra)]
        dxper = [len(dx) * (r + 1) // nrx - len(dx) * r // nrx for r in range(nrx)] if c.TI <= 4 else \
                [min(5, max(0, len(dx) - 5 * r)) for r in range(nrx)]
        dw = self.dmaB(t % S) if dW else []
        hist = self._hist
        for i in range(TI):
            w2, x2 = hist[-2]; w1, x1 = hist[-1]
            if i == TI - 2:
                if barrier:
                    a(f"s_waitcnt vmcnt({vm}) lgkmcnt(0)")
                    a("s_barrier")
                    if post: a(post)
                else:
                    a("s_waitcnt lgkmcnt(0)")
            elif i == TI - 1:
                pass
            else:
                a(f"s_waitcnt lgkmcnt({min(15, x2 + w1 + x1)})")
            if i + 2 < TI: wr = self.wreads(t, i + 2)
            elif rdW: wr = self.wreads(t + 1, i + 2 - TI)
            else: wr = []
            xs = []; ds = []
            if i < nrx:
                xs = xr[:xper[i]]; xr = xr[xper[i]:]
                ds = dx[:dxper[i]]; dx = dx[dxper[i]:]
            else:
                h = (len(dw) + 1) // 2 if i == TI - 2 else len(dw)
                ds = dw[:h]; dw = dw[h:]
            fill = self._mix1(wr + xs, ds)
            a(merge(self.row_mfmas(t, i), fill, 0, nm - 1))
            hist = [hist[-1], (len(wr), len(xs))]
        assert not dx and not dw and not xr
        self._hist = hist

    def step4(self, t, dX, dW, rdX, rdW, vm, barrier=True, extra=None, post=None):
        a, c = self.a, self.c
        TI, S = c.TI, c.S
        nm = 2 * c.TJ
        nrx = TI - 2
        xr = self.xreads(t + 1) if rdX else []
        xper = [len(xr) * (r + 1) // nrx - len(xr) * r // nrx for r in range(nrx)]
        def q(groups):
            o = []
            for g_ in groups: o += [x for x in g_ if x != "s_nop 0"]
            return o
        dx = q(self.dmaA(t % S)) if dX else []
        if extra: dx += list(extra)
        dw = q(self.dmaB(t % S)) if dW else []
        def wtag(i): return [("W", i, n) for n in range(4)]
        def rows(r0, r1):
            nonlocal xr
            mf = []
            for i in range(r0, r1):
                if i + 2 < TI: wr = [RD(("W", i + 2, n), x) for n, x in enumerate(self.wreads(t, i + 2))]
                elif rdW: wr = [RD(("Wn", i + 2 - TI, n), x) for n, x in enumerate(self.wreads(t + 1, i + 2 - TI))]
                else: wr = []
                xs = []
                if i < nrx:
                    xs = [RD(("X", i, n), x) for n, x in enumerate(xr[:xper[i]])]; xr = xr[xper[i]:]
                rd = wr + xs
                stepg = max(1, (nm - 2) // max(1, len(rd)))
                if i < TI - 2: mf.append(WAIT(*wtag(i)))
                for n, x in enumerate(self.row_mfmas(t, i)):
                    mf.append(x)
                    if n % stepg == 0 and n // stepg < len(rd): mf.append(rd[n // stepg])
            return mf
        ngap1 = nrx * nm
        seq = pack(rows(0, nrx), [dx] if dx else [], dma_gap=self.GX, ahead=ngap1)
        seq += [f"s_waitcnt vmcnt({vm}) lgkmcnt(0)", "s_barrier"] if barrier else ["s_waitcnt lgkmcnt(0)"]
        if barrier and post: seq += list(post)
        seq += pack(rows(nrx, TI), [dw] if dw else [], dma_gap=self.GW, ahead=2 * nm)
        prev = ""
        for x in resolve(flat(seq), wtag(0) + wtag(1)):
            if prev.startswith("s_add_u32 m0") and x.endswith(" lds"): a("s_nop 0")
            a(x); prev = x

    def pre_tags(self):
        c = self.c
        x = [("X", j, k) for j in range(c.TJ) for k in range(2)]
        w0 = [("W", 0, n) for n in range(4)]; w1 = [("W", 1, n) for n in range(4)]
        return x[:2] + w0 + x[2:] + w1
    def next_reads(self, t):
        c = self.c
        xr = self.xreads(t); w0 = self.wreads(t, 0); w1 = self.wreads(t, 1)
        return xr[:2] + w0 + xr[2:] + w1
    def step5(self, t, dX, dW, rdN, vm, barrier=True, extra=None, advA=None):
        a, c = self.a, self.c
        TI, S = c.TI, c.S
        nm = 2 * c.TJ
        def q(groups):
            o = []
            for g_ in groups: o += [x for x in g_ if x != "s_nop 0"]
            return o
        dx = q(self.dmaA((t - 1) % S)) if dX else []
        if dx and advA is not None: dx[-1] = dx[-1].replace(sr(self.sKA) + ",", sr(advA) + ",")
        if extra: dx += list(extra)
        dw = q(self.dmaB(t % S)) if dW else []
        mf = []
        wr = []
        for i in range(2, TI): wr += [RD(("W", i, n), x) for n, x in enumerate(self.wreads(t, i))]
        assert TI == 4
        k = 0
        for i in range(TI - 2):
            for n, x in enumerate(self.row_mfmas(t, i)):
                if i == 0: mf.append(WAIT(("X", n // 2, n % 2), *[("W", 0, m_) for m_ in ((0, 1) if n % 2 == 0 else (2, 3))]))
                elif n == 0: mf.append(WAIT(*[("W", 1, m_) for m_ in range(4)]))
                mf.append(x)
                if 2 <= i * nm + n and k < len(wr): mf.append(wr[k]); k += 1
        seq = pack(mf, [dx] if dx else [], dma_gap=self.GX, ahead=99)
        seq += [f"s_waitcnt vmcnt({vm}) lgkmcnt(0)", "s_barrier"] if barrier else ["s_waitcnt lgkmcnt(0)"]
        nr = [RD(("N", n), x) for n, x in enumerate(self.next_reads(t + 1))] if rdN else []
        mf = []; k = 0
        for i in range(TI - 2, TI):
            for n, x in enumerate(self.row_mfmas(t, i)):
                mf.append(x)
                if k < len(nr): mf.append(nr[k]); k += 1
        seq += pack(mf, [dw] if dw else [], dma_gap=self.GW, ahead=99)
        prev = ""
        for x in resolve(flat(seq), self.pre_tags()):
            if prev.startswith("s_add_u32 m0") and x.endswith(" lds"): a("s_nop 0")
            a(x); prev = x
    def prologue5(self):
        a, c = self.a, self.c
        for st in range(c.S):
            for g_ in self.dmaB(st): a(g_)
            if st < c.S - 1:
                for g_ in self.dmaA(st): a(g_)
    def tail5(self, T):
        c = self.c
        S, PA, PB = c.S, c.PA, c.PB
        for k in range(T):
            r = k - T
            seq = []
            for u in range(r - 1, r + S):
                if u <= -1: seq.append(("W", u)); seq.append(("X", u))
            need = [x for x in (("W", r + 1), ("X", r + 1)) if x[1] <= -1]
            vm = sum(PA if x[0] == "X" else PB for x in seq[max(seq.index(x) for x in need) + 1:]) if need else 0
            self.step5(k, r + S - 1 <= -1, r + S <= -1, r + 1 <= -1, vm, barrier=(r + 1 <= -1))

    def prologue_dma(self):
        a, c = self.a, self.c
        for st in range(c.S):
            for g in self.dmaA(st): a(g)
            for g in self.dmaB(st): a(g)

    def tail_len(self, n=None):
        c = self.c
        T = c.S + 1
        while T % self.U: T += 1
        return T

    def mainloop(self, s_loopcount, label, st=None, sidx=1, extras=None, pro_extra=0):
        a, c = self.a, self.c
        S, PA, PB, U = c.S, c.PA, c.PB, self.U
        extras = extras or {}
        a(f"s_waitcnt vmcnt({(S-2)*(PA+PB) + PB + pro_extra})")
        a("s_barrier")
        a(self.xreads(0)); a(self.wreads(0, 0)); a(self.wreads(0, 1))
        a("s_waitcnt lgkmcnt(0)")
        a("s_barrier")
        if st: st.stamp(sidx); a("s_waitcnt lgkmcnt(0)")
        self._hist = [(4, 0), (4, 0)]
        a.label(label)
        for t in range(U):
            nx = sum(1 for u in range(t + 2 - S, t + 1) if (u % U) in extras)
            self.step3(t, True, True, True, True, (S - 2) * (PA + PB) + nx, extra=extras.get(t))
        assert self._hist == [(4, 0), (4, 0)]
        a(f"s_sub_u32 {sr(s_loopcount)}, {sr(s_loopcount)}, 1")
        a(f"s_cmp_lg_u32 {sr(s_loopcount)}, 0")
        a(f"s_cbranch_scc1 {label}")
        self.tail()

    def tail(self):
        a, c = self.a, self.c
        S, PA, PB, U = c.S, c.PA, c.PB, self.U
        T = self.tail_len()
        for k in range(T):
            r = k - T
            dX = r + S <= -1
            dW = r + S <= -1
            seq = []
            for u in range(r - 2, r + S + 1):
                if u <= -1: seq.append(("X", u))
                if u <= -1 and u <= r + S - 1: seq.append(("W", u))
            need = [x for x in (("W", r + 1), ("X", r + 2)) if x[1] <= -1]
            if need:
                last = max(seq.index(x) for x in need)
                vm = sum(PA if x[0] == "X" else PB for x in seq[last + 1:])
            else:
                vm = 0
            self.step3(k, dX, dW, r + 1 <= -1, r + 1 <= -1, vm, barrier=(r + 1 <= -1))
```

```python
from asmb import *
from gemm_gen import GemmCfg
from gemm3 import GemmCore3
from k1v2_gen import Core4
from k1_gen import srd, f32, WS_Q, WS_K, WS_V, WS_Z, WS_G, WS_CNT, WS_PART, Z_KB, QSCALE
from k2_gen import RD, WAIT, resolve, flat, MF, BIAS, NEG
import codepf, math, os, struct, sys
import att2
KNAME = "gated_mix__compressed_kv_cla__geglu_ffn__prompt_kernel"

STAMPS = bool(os.environ.get("STAMPS"))
WS_FLAG = WS_CNT
F_QKV, F_GU, F_CTX, F_EX = 0, 2048, 4096, 8192
FLAG_BYTES = 16384
WS_STAMP = 96 << 20
SPIN_MAX = 100000
ST = " sc1"
S_WAVE = 101
S_PSIG = 100
ATT_JOBS = {"0": [[14, 0], [13, 1], [12, 2], [11, 3], [10, 4], [9, 5], [8, 6], [15, 7]],
            "1": [[14, 0], [13, 1], [12, 2], [11, 3], [10, 4], [8, 5], [7, 6], [15, 9]],
            "2": [[14, 0], [13, 1], [12, 2], [11, 3], [10, 4], [9, 5], [7, 6], [15, 8]],
            "4": [[8, 7], [13, 1], [12, 2], [11, 3], [10, 4], [9, 5], [14, 0], [15, 6]],
            "5": [[8, 7], [9, 6], [12, 2], [11, 3], [10, 4], [13, 1], [14, 0], [15, 5]],
            "3": [[14, 0], [13, 1], [12, 2], [11, 3], [9, 4], [8, 5], [7, 6], [15, 10]]}[os.environ.get("JT", "0")]

def stamp(a, idx):
    if not STAMPS: return
    a("s_memrealtime s[4:5]")
    a("s_memtime s[8:9]")
    a("s_load_dwordx2 s[6:7], s[0:1], 104")
    a("s_waitcnt lgkmcnt(0)")
    a("s_mov_b32 s5, s8")
    a(f"s_add_u32 s8, s6, {WS_STAMP}"); a("s_addc_u32 s9, s7, 0"); a("s_mov_b32 s10, 0x40000"); a("s_mov_b32 s11, 0x20000")
    a("s_lshl_b32 s6, s2, 8"); a(f"s_lshl_b32 s7, s{S_WAVE}, 6"); a("s_add_u32 s6, s6, s7"); a(f"s_add_u32 s6, s6, {idx*4}")
    a("v_mov_b32 v1, s6"); a("v_mov_b32 v2, s4")
    a("buffer_store_dword v2, v1, s[8:11], 0 offen")
    a("v_mov_b32 v2, s5")
    a("buffer_store_dword v2, v1, s[8:11], 0 offen offset:32")
    a("s_waitcnt vmcnt(0)")

def lane_id(a, v):
    a(f"v_mbcnt_lo_u32_b32 {vr(v)}, -1, 0")
    a(f"v_mbcnt_hi_u32_b32 {vr(v)}, -1, {vr(v)}")

def wait_flags(a, lab, sF, s_off, nlanes, x2, vlane, t0, sleep=8):
    a(f"v_lshlrev_b32 {vr(t0+2)}, {3 if x2 else 2}, {vr(vlane)}")
    a("s_mov_b32 s3, 0")
    a.label(lab)
    if x2: a(f"buffer_load_dwordx2 {vr(t0,2)}, {vr(t0+2)}, {sr(sF,4)}, {s_off} offen sc1")
    else: a(f"buffer_load_dword {vr(t0)}, {vr(t0+2)}, {sr(sF,4)}, {s_off} offen sc1")
    a("s_waitcnt vmcnt(0)")
    if x2: a(f"v_min_u32 {vr(t0)}, {vr(t0)}, {vr(t0+1)}")
    a(f"v_cmp_eq_u32 vcc, 0, {vr(t0)}")
    if nlanes < 64:
        a(f"s_mov_b32 s4, {((1 << nlanes) - 1) & 0xffffffff}"); a(f"s_mov_b32 s5, {((1 << nlanes) - 1) >> 32}")
        a("s_and_b64 vcc, vcc, s[4:5]")
    else:
        a("s_or_b64 vcc, vcc, vcc")
    a(f"s_cbranch_scc0 {lab}_ok")
    a(f"s_sleep {sleep}")
    a("s_add_u32 s3, s3, 1"); a(f"s_cmp_lt_u32 s3, {SPIN_MAX}")
    a(f"s_cbranch_scc1 {lab}")
    a.label(f"{lab}_ok")

def sig_regs(a, vsig, vone, vlane, tmp):
    a(f"v_bfrev_b32 {vr(tmp)}, 1")
    a(f"v_cmp_eq_u32 vcc, 0, {vr(vlane)}")
    a(f"v_mov_b32 {vr(vone)}, 1")
    a("s_nop 0")
    a(f"v_cndmask_b32 {vr(vsig)}, {vr(tmp)}, {vr(vlane)}, vcc")

def gen_k0(a, name="k0_kernel"):
    kernel_header(a, name)
    a("s_cmp_ge_u32 s2, 256"); a(f"s_cbranch_scc1 {name}_end")
    a("s_load_dwordx4 s[8:11], s[0:1], 0")
    a("s_load_dwordx2 s[28:29], s[0:1], 80")
    a("s_load_dwordx2 s[34:35], s[0:1], 104")
    a("v_and_b32 v1, 63, v0")
    a("v_lshrrev_b32 v2, 6, v0"); a("s_nop 0"); a("v_readfirstlane_b32 s36, v2"); a("s_nop 3")
    a("s_lshl_b32 s37, s2, 2"); a("s_add_u32 s37, s37, s36")
    a("s_waitcnt lgkmcnt(0)")
    srd(a, 12, 8, 9, 2048 * 2048); srd(a, 16, 28, 29, 2048); srd(a, 20, 34, 35, 8192, WS_G); srd(a, 24, 34, 35, FLAG_BYTES, WS_FLAG)
    srd(a, 40, 10, 11, 2048 * 1024)
    a("v_lshlrev_b32 v2, 5, v1")
    a("s_lshl_b32 s3, s37, 12"); a("v_add_u32 v3, s3, v2")
    a("buffer_load_dwordx4 v[8:11], v2, s[16:19], 0 offen"); a("buffer_load_dwordx4 v[12:15], v2, s[16:19], 0 offen offset:16")
    for t in range(2):
        a(f"buffer_load_dwordx4 v[{32+8*t}:{35+8*t}], v3, s[12:15], 0 offen offset:{t*2048}")
        a(f"buffer_load_dwordx4 v[{36+8*t}:{39+8*t}], v3, s[12:15], 0 offen offset:{t*2048+16}")
    a("v_lshlrev_b32 v4, 2, v1"); a("s_lshl_b32 s3, s37, 5"); a("v_add_u32 v4, s3, v4"); a("v_mov_b32 v5, 0")
    a("v_cmp_gt_u32 vcc, 8, v1"); a("s_and_saveexec_b64 s[38:39], vcc")
    a("buffer_store_dword v5, v4, s[24:27], 0 offen")
    a("s_mov_b64 exec, s[38:39]")
    a("v_lshlrev_b32 v4, 7, v1"); a("s_lshl_b32 s3, s37, 11"); a("v_add_u32 v4, s3, v4")
    a("v_cmp_gt_u32 vcc, 16, v1"); a("s_and_saveexec_b64 s[38:39], vcc")
    a("buffer_load_dword v50, v4, s[40:43], 0 offen")
    a("s_mov_b64 exec, s[38:39]")
    a("s_lshr_b32 s31, s2, 3"); a("s_lshl_b32 s31, s31, 2"); a("s_add_u32 s31, s31, s36")
    codepf.code_touch(a, "mega_kernel", "mega_code_end", 1, 4, 51, "s31", "k0a")
    a("s_waitcnt vmcnt(3)")
    for r in range(8):
        a(f"v_lshlrev_b32 v{16+2*r}, 16, v{8+r}"); a(f"v_and_b32 v{17+2*r}, 0xffff0000, v{8+r}")
    a("v_mov_b32 v6, 0")
    for t in range(2):
        for r in range(8):
            x = 32 + 8 * t + r
            a(f"v_lshlrev_b32 v5, 16, v{x}")
            a(f"v_mul_f32 v4, v5, v{16+2*r}" if r == 0 else f"v_fmac_f32 v4, v5, v{16+2*r}")
            a(f"v_and_b32 v5, 0xffff0000, v{x}"); a(f"v_fmac_f32 v4, v5, v{17+2*r}")
        for m in ("quad_perm:[1,0,3,2]", "quad_perm:[2,3,0,1]", "row_half_mirror", "row_mirror"):
            a("s_nop 1"); a(f"v_add_f32_dpp v4, v4, v4 {m} row_mask:0xf bank_mask:0xf")
        a("s_nop 1")
        for q in range(4): a(f"v_readlane_b32 s{4+q}, v4, {16*q}")
        a("s_nop 1")
        a("v_mov_b32 v5, s4"); a("v_add_f32 v5, s5, v5"); a("v_add_f32 v5, s6, v5"); a("v_add_f32 v5, s7, v5")
        a(f"v_cmp_eq_u32 vcc, {t}, v1"); a("s_nop 1"); a("v_cndmask_b32 v6, v6, v5, vcc")
    a(f"v_mul_f32 v6, {f32(-math.log2(math.e))}, v6")
    a("v_exp_f32 v6, v6"); a("s_nop 0"); a("v_add_f32 v6, 1.0, v6"); a("v_rcp_f32 v6, v6")
    a("s_lshl_b32 s3, s37, 1"); a("v_add_u32 v7, s3, v1"); a("v_lshlrev_b32 v7, 2, v7")
    a("v_cmp_gt_u32 vcc, 2, v1"); a("s_and_saveexec_b64 s[38:39], vcc")
    a("buffer_store_dword v6, v7, s[20:23], 0 offen")
    a.label(f"{name}_end"); a("s_endpgm")
    return dict(name=name, nv=56, acc_off=56, grid=256, block=256, lds=0)

def phase_g1(a, name="g1"):
    cfgN = GemmCfg(256, 256, 2, 2, native_a=False, swap=False, stages=2, ms=16)
    cfgS = GemmCfg(256, 256, 2, 2, native_a=False, swap=True, stages=2, ms=16)
    V = RegAlloc(0, 256, "v"); S = RegAlloc(36, 100, "s")
    cfgN.acc7_base = 208
    vT = V.alloc("T", 16, 4)
    core = Core4(a, cfgN, V, S)
    if os.environ.get("WNT"):
        _db = core.dmaB
        core.dmaB = lambda st: [[x.replace(" lds", " nt lds") for x in g_] for g_ in _db(st)]
    core.use_step4 = True; core.GX = int(os.environ.get("G1X", "5")); core.GW = int(os.environ.get("G1W", "4"))
    vlane = V.alloc("lane"); vout = V.alloc("vout"); vc1 = V.alloc("c1", 2, 2)
    vpf = V.alloc("vpf"); vdum = V.alloc("vdum")
    A = RegAlloc(core.NA, 256, "a")
    vt = [vT + 4, vT + 5, vT + 6, vT + 7]
    s_wave = S_WAVE; s_wt = S.alloc("wt"); s_wn = S.alloc("wn")
    s_cur = S.alloc("cur"); s_nxt = S.alloc("nxt"); s_nx2 = S.alloc("nx2"); s_sig = S.alloc("sig")
    s_ab, s_lda, s_bb, s_ldw = 21, 26, 27, 30
    sO = S.alloc("srdO", 4, 4); sPF = S.alloc("srdPF", 4, 4); sF = S.alloc("srdF", 4, 4)
    s_pf2 = 20; s_c = 18
    sD = S.alloc("srdD", 4, 4); s_ok = S.alloc("initok"); s_dw = S.alloc("dbgw"); s_dl = S.alloc("dbgl")
    aI = A.alloc("init")
    G1D = bool(os.environ.get("G1D"))
    aL = A.alloc("ls", 10) if G1D else None
    def lstamp():
        if not G1D: return
        a("s_memtime s[4:5]"); a("s_waitcnt lgkmcnt(0)")
        for k in range(9): a(f"v_accvgpr_mov_b32 {ar(aL+k)}, {ar(aL+k+1)}")
        a(f"v_accvgpr_write_b32 {ar(aL+9)}, s4")
    a("s_load_dwordx16 s[8:23], s[0:1], 0")
    a("s_load_dwordx8 s[24:31], s[0:1], 64")
    a("s_load_dwordx4 s[32:35], s[0:1], 96")
    a(f"v_and_b32 {vr(vlane)}, 63, v0")
    a(f"v_lshrrev_b32 {vr(vt[0])}, 6, v0")
    a("s_nop 0")
    a(f"v_readfirstlane_b32 {sr(s_wave)}, {vr(vt[0])}")
    a("s_nop 3")
    a(f"s_lshr_b32 {sr(s_wt)}, {sr(s_wave)}, 1")
    a(f"s_and_b32 {sr(s_wn)}, {sr(s_wave)}, 1")
    a("s_and_b32 s3, s2, 7"); a("s_lshr_b32 s4, s2, 3")
    a("s_lshr_b32 s5, s4, 3"); a("s_and_b32 s6, s4, 7")
    a("s_lshl_b32 s7, s3, 1"); a(f"s_and_b32 {sr(s_cur)}, s5, 1"); a(f"s_add_u32 s7, s7, {sr(s_cur)}")
    a("s_lshl_b32 s7, s7, 3"); a("s_add_u32 s7, s7, s6"); a("s_add_u32 s7, s7, 0x400")
    a(f"s_mul_i32 {sr(s_nx2)}, s3, 28"); a(f"s_add_u32 {sr(s_nx2)}, {sr(s_nx2)}, s4"); a(f"s_add_u32 {sr(s_nx2)}, {sr(s_nx2)}, 0x700")
    a("s_cmp_lt_u32 s4, 28"); a(f"s_cselect_b32 {sr(s_nx2)}, {sr(s_nx2)}, 0")
    a("s_add_u32 s3, s7, 0x100"); a("s_add_u32 s4, s7, 0x200")
    a("s_cmp_lt_u32 s5, 2")
    a(f"s_cselect_b32 {sr(s_cur)}, s7, s3")
    a(f"s_cselect_b32 {sr(s_nxt)}, {sr(s_nx2)}, s4")
    a(f"s_cselect_b32 {sr(s_nx2)}, 0, {sr(s_nx2)}")
    a(f"s_brev_b32 {sr(s_sig)}, 1")
    c1 = -2.0 * math.sqrt(2.0 / math.pi) * math.log2(math.e); c2 = c1 * 0.044715
    uid = [0]
    def fields(code):
        a(f"s_bfe_u32 s5, {sr(code)}, 0x20008"); a(f"s_bfe_u32 s6, {sr(code)}, 0x50003")
    def decodeB(sB):
        uid[0] += 1; L = f"{name}_db{uid[0]}"
        a("s_cmp_eq_u32 s5, 3"); a(f"s_cbranch_scc1 {L}_gu")
        a(f"s_mov_b32 {sr(sB)}, s12"); a(f"s_mov_b32 {sr(sB+1)}, s13"); a(f"s_mov_b32 {sr(sB+2)}, {1024*8192}")
        a("s_cmp_eq_u32 s5, 1")
        a(f"s_cselect_b32 {sr(sB)}, s14, {sr(sB)}"); a(f"s_cselect_b32 {sr(sB+1)}, s15, {sr(sB+1)}")
        a(f"s_cselect_b32 {sr(sB+2)}, {512*8192}, {sr(sB+2)}")
        a("s_cmp_eq_u32 s5, 2")
        a(f"s_cselect_b32 {sr(sB)}, s16, {sr(sB)}"); a(f"s_cselect_b32 {sr(sB+1)}, s17, {sr(sB+1)}")
        a(f"s_cselect_b32 {sr(sB+2)}, {512*8192}, {sr(sB+2)}")
        a(f"s_mov_b32 {sr(s_ldw)}, 8192")
        a(f"s_lshl_b32 {sr(s_bb)}, s6, 9"); a(f"s_lshl_b32 s3, {sr(s_wave)}, 7"); a(f"s_add_u32 {sr(s_bb)}, {sr(s_bb)}, s3")
        a(f"s_branch {L}_src")
        a.label(f"{L}_gu")
        a(f"s_cmp_eq_u32 {sr(s_wn)}, 0")
        a(f"s_cselect_b32 {sr(sB)}, s22, s24"); a(f"s_cselect_b32 {sr(sB+1)}, s23, s25")
        a(f"s_mov_b32 {sr(sB+2)}, {1024*7168}")
        a(f"s_mov_b32 {sr(s_ldw)}, 7168")
        a(f"s_lshl_b32 {sr(s_bb)}, s6, 8"); a(f"s_lshl_b32 s3, {sr(s_wt)}, 7"); a(f"s_add_u32 {sr(s_bb)}, {sr(s_bb)}, s3")
        a.label(f"{L}_src")
        a(f"s_mov_b32 {sr(sB+3)}, 0x20000")
    def set_pf(code):
        fields(code); decodeB(sPF)
        a(f"s_cmp_eq_u32 {sr(code)}, 0"); a(f"s_cselect_b32 {sr(sPF+2)}, 0, {sr(sPF+2)}")
        a(f"v_lshrrev_b32 {vr(vpf)}, 3, {vr(vlane)}"); a(f"v_lshlrev_b32 {vr(vpf)}, 6, {vr(vpf)}")
        a(f"v_and_b32 {vr(vt[3])}, 7, {vr(vlane)}")
        a(f"s_and_b32 s3, {sr(code)}, 7"); a("s_lshl_b32 s3, s3, 3")
        a(f"v_add3_u32 {vr(vpf)}, {vr(vpf)}, {vr(vt[3])}, s3")
        a(f"v_mul_lo_u32 {vr(vpf)}, {vr(vpf)}, {sr(s_ldw)}")
        a(f"v_add_u32 {vr(vpf)}, {sr(s_bb)}, {vr(vpf)}")
        a(f"v_bfrev_b32 {vr(vt[3])}, 1")
        a(f"v_cmp_gt_u32 vcc, 16, {vr(vlane)}")
        a(f"s_lshl_b32 {sr(s_pf2)}, {sr(s_ldw)}, 7"); a("s_nop 0")
        a(f"v_cndmask_b32 {vr(vpf)}, {vr(vt[3])}, {vr(vpf)}, vcc")
    def touchW():
        return [f"buffer_load_dword {vr(vdum)}, {vr(vpf)}, {sr(sPF,4)}, 0 offen{os.environ.get('TNT', '')}", f"v_add_u32 {vr(vpf)}, {sr(s_pf2)}, {vr(vpf)}"]
    def initload():
        return [f"buffer_load_dword {ar(aI)}, {vr(vout)}, {sr(sD,4)}, {sr(s_dl)} offen sc1"]
    def set_dma_params(code, always=False):
        uid[0] += 1; L = f"{name}_sp{uid[0]}"
        if not always:
            a(f"s_cmp_eq_u32 {sr(code)}, 0"); a(f"s_cbranch_scc0 {L}_valid")
            a(f"s_mov_b32 {sr(core.sA+2)}, 0"); a(f"s_mov_b32 {sr(core.sB+2)}, 0")
            a(f"s_branch {L}_done")
            a.label(f"{L}_valid")
        fields(code)
        a("s_sub_u32 s7, s5, 1"); a("s_cmp_lt_u32 s7, 2")
        a(f"s_cselect_b32 {sr(core.sA)}, s10, s8"); a(f"s_cselect_b32 {sr(core.sA+1)}, s11, s9")
        a(f"s_mov_b32 s7, {2048*512*2}"); a(f"s_cselect_b32 {sr(core.sA+2)}, s7, {2048*1024*2}")
        a(f"s_mov_b32 {sr(core.sA+3)}, 0x20000")
        a("s_mov_b32 s7, 1024"); a(f"s_cselect_b32 {sr(s_lda)}, s7, 2048")
        decodeB(core.sB)
        a(f"s_and_b32 s3, {sr(code)}, 7"); a("s_lshl_b32 s3, s3, 8")
        a(f"s_mul_i32 {sr(s_ab)}, s3, {sr(s_lda)}")
        core.setup_src(vlane, s_wave, s_ab, s_lda, s_bb, s_ldw, vt)
        a.label(f"{L}_done")
    def signal():
        return ["s_mov_b64 exec, 1",
                f"buffer_store_dword {vr(vc1)}, {vr(vlane)}, {sr(sF,4)}, {sr(s_sig)} offen sc1",
                f"buffer_store_byte {vr(vc1)}, {vr(vlane)}, {sr(sD,4)}, {sr(s_dw)} offen sc1",
                "s_mov_b64 exec, -1", f"s_brev_b32 {sr(s_dw)}, 1"]
    a("s_waitcnt lgkmcnt(0)")
    lstamp()
    set_dma_params(s_cur, True)
    core.setup_lane_consts(vlane, s_wave, s_wt, s_wn, vt)
    core.prologue_dma()
    a(f"v_mov_b32 {vr(vc1)}, {f32(c1)}"); a(f"v_mov_b32 {vr(vc1+1)}, {f32(c1)}")
    srd(a, sF, 34, 35, FLAG_BYTES, WS_FLAG)
    set_pf(s_cur)
    a(f"v_add_u32 {vr(vpf)}, {sr(s_pf2)}, {vr(vpf)}")
    a(touchW())
    srd(a, sD, 32, 33, 32)
    a(f"s_mov_b32 {sr(s_ok)}, 0"); a(f"s_brev_b32 {sr(s_dl)}, 1")
    a(f"s_brev_b32 {sr(s_dw)}, 1"); a(f"s_lshl_b32 s3, {sr(s_wave)}, 8"); a("s_add_u32 s3, s3, s2"); a("s_cmp_lt_u32 s3, 32"); a(f"s_cselect_b32 {sr(s_dw)}, s2, {sr(s_dw)}")
    assert struct.pack("<f", c1)[0] != 0
    a("s_lshl_b32 s3, s2, 2"); a(f"s_add_u32 s3, s3, {sr(s_wave)}"); a("s_lshl_b32 s3, s3, 7")
    a(f"v_lshlrev_b32 {vr(vout)}, 2, {vr(vlane)}"); a(f"v_mov_b32 {vr(vt[1])}, 0")
    a("s_mov_b64 exec, 0xffffffff")
    a(f"buffer_store_dword {vr(vt[1])}, {vr(vout)}, {sr(sF,4)}, s3 offen sc1")
    a("s_mov_b64 exec, -1")
    a("s_and_b32 s3, s2, 7"); a("s_lshl_b32 s3, s3, 2"); a("s_lshr_b32 s4, s2, 6"); a("s_add_u32 s3, s3, s4")
    a("s_lshl_b32 s3, s3, 2"); a(f"s_add_u32 s3, s3, {sr(s_wave)}"); a("s_lshl_b32 s3, s3, 1")
    a("s_bfe_u32 s4, s2, 0x30003"); a("s_lshl_b32 s4, s4, 8"); a("s_add_u32 s3, s3, s4")
    a(f"v_lshlrev_b32 {vr(vt[0])}, 7, {vr(vlane)}")
    a("s_lshl_b32 s4, s3, 11")
    a(f"s_add_u32 {sr(sO)}, s8, s4"); a(f"s_addc_u32 {sr(sO+1)}, s9, 0"); a(f"s_mov_b32 {sr(sO+2)}, 4096"); a(f"s_mov_b32 {sr(sO+3)}, 0x20000")
    a(f"buffer_load_dword {vr(vdum)}, {vr(vt[0])}, {sr(sO,4)}, 0 offen")
    a("s_lshl_b32 s4, s3, 10")
    a(f"s_add_u32 {sr(sO)}, s10, s4"); a(f"s_addc_u32 {sr(sO+1)}, s11, 0"); a(f"s_mov_b32 {sr(sO+2)}, 2048")
    a(f"buffer_load_dword {vr(vdum)}, {vr(vt[0])}, {sr(sO,4)}, 0 offen")
    a(touchW())
    a("s_bfe_u32 s31, s2, 0x20003"); a("s_lshl_b32 s31, s31, 2"); a(f"s_add_u32 s31, s31, {sr(s_wave)}")
    codepf.BACK["mg"] = True
    codepf.code_touch(a, KNAME, "mega_code_end", vlane, vt[0], vdum, "s31", "mg")
    a(f"s_waitcnt vmcnt({cfgN.PB + 6})")
    a("s_barrier")
    a(core.xreads(0)); a(core.wreads(0, 0)); a(core.wreads(0, 1))
    a("s_waitcnt lgkmcnt(0)")
    a("s_barrier")
    a.label(f"{name}_tile")
    lstamp()
    a(f"v_lshlrev_b32 {vr(vout)}, 2, {vr(vlane)}")
    a(f"s_bfe_u32 s5, {sr(s_cur)}, 0x20008")
    a("s_sub_u32 s7, s5, 1"); a("s_cmp_lt_u32 s7, 2")
    a(f"s_cselect_b32 {sr(core.sLoop)}, 3, 7")
    a("s_cmp_eq_u32 s5, 2")
    a(f"s_cbranch_scc1 {name}_S_first")
    def body(var, cfg):
        core.c = cfg
        def trip(first):
            core.step3(0, True, True, True, True, 2, extra=touchW() + initload(), post=signal() if first else None)
            core.step3(1, True, True, True, True, 0)
        a.label(f"{name}_{var}_first")
        core.zero_first = True; core._hist = [(4, 0), (4, 0)]
        trip(True)
        core.zero_first = False
        a(f"s_branch {name}_{var}_ctl")
        a.label(f"{name}_{var}_loop")
        trip(False)
        a(f"s_sub_u32 {sr(core.sLoop)}, {sr(core.sLoop)}, 1")
        a.label(f"{name}_{var}_ctl")
        a(f"s_cmp_gt_u32 {sr(core.sLoop)}, 3"); a(f"s_cbranch_scc1 {name}_{var}_loop")
        a(f"s_cmp_eq_u32 {sr(core.sLoop)}, 2"); a(f"s_cbranch_scc1 {name}_{var}_loop")
        a(f"s_cmp_eq_u32 {sr(core.sLoop)}, 0"); a(f"s_cbranch_scc1 {name}_{var}_epi")
        a(f"s_cmp_eq_u32 {sr(core.sLoop)}, 1"); a(f"s_cbranch_scc1 {name}_{var}_sw")
        set_pf(s_nxt)
        a(f"s_branch {name}_{var}_loop")
        a.label(f"{name}_{var}_sw")
        a("s_and_b32 s6, s2, 7"); a("s_lshl_b32 s6, s6, 1"); a("s_bfe_u32 s7, s2, 0x10004"); a("s_add_u32 s6, s6, s7"); a("s_lshl_b32 s6, s6, 7")
        a(f"s_cmp_lg_u32 {sr(s_ok)}, 0")
        a(f"s_cselect_b32 {sr(s_dl)}, s6, 0")
        set_dma_params(s_nxt)
        a(f"s_branch {name}_{var}_loop")
        a.label(f"{name}_{var}_epi")
        lstamp()
        core.c = cfgN
    def src_regs(blocks, tmp):
        regs = []
        for n_, (i, j) in enumerate(blocks):
            for r in range(4):
                if core.in_v(i): regs.append(core.accidx(i, j, r))
                else:
                    a(f"v_accvgpr_read_b32 {vr(tmp + n_*4 + r)}, {ar(core.accidx(i, j, r))}")
                    regs.append(tmp + n_ * 4 + r)
        return regs
    def head_base():
        fields(s_cur)
        a("s_lshl_b32 s3, s6, 1"); a(f"s_add_u32 s3, s3, {sr(s_wn)}"); a("s_lshl_b32 s3, s3, 19")
        a(f"s_and_b32 s7, {sr(s_cur)}, 7"); a("s_lshl_b32 s4, s7, 16"); a("s_add_u32 s3, s3, s4")
        a(f"s_lshl_b32 s4, {sr(s_wt)}, 15"); a("s_add_u32 s3, s3, s4")
        a(f"v_lshlrev_b32 {vr(vout)}, 4, {vr(vlane)}"); a(f"v_add_u32 {vr(vout)}, s3, {vr(vout)}")
        a("s_lshl_b32 s4, s5, 24")
        a(f"s_add_u32 {sr(sO)}, s34, s4"); a(f"s_addc_u32 {sr(sO+1)}, s35, 0")
        a(f"s_mov_b32 {sr(sO+2)}, {16<<20}"); a(f"s_mov_b32 {sr(sO+3)}, 0x20000")
        a("s_lshl_b32 s3, s5, 3"); a("s_add_u32 s3, s3, s7"); a("s_lshl_b32 s3, s3, 2")
        a("s_lshl_b32 s4, s6, 7"); a("s_add_u32 s3, s3, s4")
        a(f"s_cmp_eq_u32 {sr(s_wave)}, 0"); a(f"s_cselect_b32 {sr(s_sig)}, s3, {sr(s_sig)}")
    body("N", cfgN)
    a(f"s_bfe_u32 s5, {sr(s_cur)}, 0x20008")
    a("s_cmp_eq_u32 s5, 3"); a(f"s_cbranch_scc1 {name}_epi_gu")
    head_base()
    a("s_cmp_eq_u32 s5, 1"); a(f"s_cbranch_scc1 {name}_epi_k")
    def epi_qk(scale):
        cnt = 0
        if scale: a(f"s_mov_b32 {sr(s_c)}, {f32(QSCALE)}"); a(f"s_mov_b32 {sr(s_c+1)}, {f32(QSCALE)}")
        for u in range(4):
            for j in range(8):
                b = vT + (cnt % 2) * 4; cnt += 1
                R = src_regs([(2 * u, j), (2 * u + 1, j)], vT + 8)
                if scale:
                    for p in range(4): a(f"v_pk_mul_f32 {vr(R[2*p],2)}, {vr(R[2*p],2)}, {sr(s_c,2)}")
                for p in range(4): a(f"v_cvt_pk_bf16_f32 {vr(b+p)}, {vr(R[2*p])}, {vr(R[2*p+1])}")
                a(f"s_mov_b32 s3, {j*4096}")
                a(f"buffer_store_dwordx4 {vr(b,4)}, {vr(vout)}, {sr(sO,4)}, s3 offen offset:{u*1024}{ST}")
    epi_qk(True); a(f"s_branch {name}_next")
    a.label(f"{name}_epi_k"); epi_qk(False); a(f"s_branch {name}_next")
    a.label(f"{name}_epi_gu")
    a("s_waitcnt vmcnt(0) lgkmcnt(0)")
    a("s_barrier")
    a(f"v_accvgpr_read_b32 {vr(vT)}, {ar(aI)}")
    a(f"v_cmp_eq_u32 vcc, 0, {vr(vT)}")
    a("s_and_b32 vcc_lo, vcc_lo, 0xffffff")
    a(f"s_cbranch_scc0 {name}_wq2_ok")
    wait_flags(a, f"{name}_wq2", sF, sr(s_dl), 24, False, vlane, vT)
    att2.att_pre(a, sys.modules[__name__], vlane, vT, vT + 1, core.sA, core.sB, sPF, 34)
    fields(s_cur)
    a(f"s_and_b32 s7, {sr(s_cur)}, 7")
    a("s_lshl_b32 s3, s7, 4"); a(f"s_lshl_b32 s4, {sr(s_wt)}, 3"); a("s_add_u32 s3, s3, s4")
    a(f"s_mul_i32 s3, s3, {Z_KB*1024}")
    a("s_lshl_b32 s4, s6, 12"); a("s_add_u32 s3, s3, s4")
    a(f"s_lshl_b32 s4, {sr(s_wn)}, 11"); a("s_add_u32 s3, s3, s4")
    a(f"v_lshlrev_b32 {vr(vout)}, 4, {vr(vlane)}"); a(f"v_add_u32 {vr(vout)}, s3, {vr(vout)}")
    srd(a, sO, 34, 35, 128 * Z_KB * 1024, WS_Z)
    a("s_lshl_b32 s3, s6, 2"); a("s_lshl_b32 s4, s7, 7"); a("s_add_u32 s3, s3, s4"); a(f"s_add_u32 s3, s3, {F_GU}")
    a(f"s_cmp_eq_u32 {sr(s_wave)}, 0"); a(f"s_cselect_b32 {sr(s_sig)}, s3, {sr(s_sig)}")
    a(f"s_mov_b32 {sr(s_c)}, {f32(c2)}"); a(f"s_mov_b32 {sr(s_c+1)}, {f32(c2)}")
    cnt = 0
    for u in range(2):
        for j in range(8):
            b = vT + (cnt % 2) * 4; cnt += 1
            X = src_regs([(2 * u, j), (2 * u + 1, j)], None)
            E = vT + 8
            for p in range(4): a(f"v_pk_mul_f32 {vr(E+2*p,2)}, {vr(X[2*p],2)}, {vr(X[2*p],2)}")
            for p in range(4): a(f"v_pk_fma_f32 {vr(E+2*p,2)}, {vr(E+2*p,2)}, {sr(s_c,2)}, {vr(vc1,2)}")
            for p in range(4): a(f"v_pk_mul_f32 {vr(E+2*p,2)}, {vr(E+2*p,2)}, {vr(X[2*p],2)}")
            for e in range(8): a(f"v_exp_f32 {vr(E+e)}, {vr(E+e)}")
            for n_, ib in enumerate((4 + 2 * u, 5 + 2 * u)):
                if core.in_v(ib):
                    for p in range(2): a(f"v_pk_mul_f32 {vr(X[n_*4+2*p],2)}, {vr(X[n_*4+2*p],2)}, {vr(core.accidx(ib,j,2*p),2)}")
                else:
                    tmp = core.accidx(4 + 2 * u, j, 0)
                    for r in range(4): a(f"v_accvgpr_read_b32 {vr(tmp+r)}, {ar(core.accidx(ib,j,r))}")
                    for p in range(2): a(f"v_pk_mul_f32 {vr(X[n_*4+2*p],2)}, {vr(X[n_*4+2*p],2)}, {vr(tmp+2*p,2)}")
            for p in range(4): a(f"v_pk_add_f32 {vr(E+2*p,2)}, {vr(E+2*p,2)}, 1.0 op_sel_hi:[1,0]")
            for e in range(8): a(f"v_rcp_f32 {vr(E+e)}, {vr(E+e)}")
            a(f"s_mov_b32 s3, {j*Z_KB*1024}")
            for p in range(4): a(f"v_pk_mul_f32 {vr(X[2*p],2)}, {vr(X[2*p],2)}, {vr(E+2*p,2)}")
            for p in range(4): a(f"v_cvt_pk_bf16_f32 {vr(b+p)}, {vr(X[2*p])}, {vr(X[2*p+1])}")
            a(f"buffer_store_dwordx4 {vr(b,4)}, {vr(vout)}, {sr(sO,4)}, s3 offen offset:{u*1024}{ST}")
    a(f"s_mov_b32 s{S_PSIG}, {sr(s_sig)}")
    a(f"s_branch {name}_exit")
    body("S", cfgS)
    head_base()
    cnt = 0
    for i in range(8):
        for uu in range(4):
            b = vT + (cnt % 2) * 4; cnt += 1
            R = src_regs([(i, 2 * uu), (i, 2 * uu + 1)], vT + 8)
            for p in range(4): a(f"v_cvt_pk_bf16_f32 {vr(b+p)}, {vr(R[2*p])}, {vr(R[2*p+1])}")
            a(f"s_mov_b32 s3, {uu*8192 + (i//4)*4096}")
            a(f"buffer_store_dwordx4 {vr(b,4)}, {vr(vout)}, {sr(sO,4)}, s3 offen offset:{(i%4)*1024}{ST}")
    a.label(f"{name}_next")
    a(f"s_cmp_lg_u32 {sr(s_ok)}, 0"); a(f"s_cbranch_scc1 {name}_iok")
    a(f"v_accvgpr_read_b32 {vr(vT+8)}, {ar(aI)}")
    a("s_mov_b32 s3, 0")
    a.label(f"{name}_ichk")
    a(f"v_subrev_u32 {vr(vT+9)}, 0x01010101, {vr(vT+8)}")
    a(f"v_not_b32 {vr(vT+8)}, {vr(vT+8)}")
    a(f"v_and_b32 {vr(vT+8)}, {vr(vT+8)}, {vr(vT+9)}")
    a(f"v_and_b32 {vr(vT+8)}, 0x80808080, {vr(vT+8)}")
    a(f"v_cmp_ne_u32 vcc, 0, {vr(vT+8)}")
    a("s_and_b32 vcc_lo, vcc_lo, 0xff")
    a(f"s_cbranch_scc0 {name}_iset")
    a("s_sleep 4")
    a(f"v_lshlrev_b32 {vr(vT+9)}, 2, {vr(vlane)}")
    a(f"buffer_load_dword {vr(vT+8)}, {vr(vT+9)}, {sr(sD,4)}, 0 offen sc1")
    a("s_waitcnt vmcnt(0)")
    a("s_add_u32 s3, s3, 1"); a(f"s_cmp_lt_u32 s3, {SPIN_MAX}"); a(f"s_cbranch_scc1 {name}_ichk")
    a.label(f"{name}_iset")
    a(f"s_mov_b32 {sr(s_ok)}, 1")
    a(f"s_mov_b32 {sr(sD)}, {sr(sF)}"); a(f"s_mov_b32 {sr(sD+1)}, {sr(sF+1)}"); a(f"s_mov_b32 {sr(sD+2)}, {sr(sF+2)}")
    a.label(f"{name}_iok")
    a(f"s_brev_b32 {sr(s_dl)}, 1")
    a(f"s_mov_b32 {sr(s_cur)}, {sr(s_nxt)}"); a(f"s_mov_b32 {sr(s_nxt)}, {sr(s_nx2)}"); a(f"s_mov_b32 {sr(s_nx2)}, 0")
    a(f"s_cmp_lg_u32 {sr(s_cur)}, 0"); a(f"s_cbranch_scc1 {name}_tile")
    lstamp()
    a("s_waitcnt vmcnt(0) lgkmcnt(0)")
    a("s_barrier")
    a(signal())
    lstamp()
    if G1D:
        a(f"s_add_u32 {sr(sO)}, s34, {WS_STAMP + (1<<20)}"); a(f"s_addc_u32 {sr(sO+1)}, s35, 0"); a(f"s_mov_b32 {sr(sO+2)}, 0x40000"); a(f"s_mov_b32 {sr(sO+3)}, 0x20000")
        a("s_lshl_b32 s3, s2, 8"); a(f"s_lshl_b32 s4, {sr(s_wave)}, 6"); a("s_add_u32 s3, s3, s4"); a("v_mov_b32 v1, s3")
        for k in range(10):
            a(f"buffer_store_dword {ar(aL+k)}, v1, {sr(sO,4)}, 0 offen offset:{4*k}")
    a("s_lshr_b32 s4, s2, 3")
    a("s_and_b32 s3, s2, 7"); a("s_sub_u32 s4, s4, 28")
    a("s_add_u32 s5, s4, 28"); a("s_lshl_b32 s5, s5, 2"); a("s_lshl_b32 s6, s3, 7"); a("s_add_u32 s5, s5, s6"); a(f"s_add_u32 s5, s5, {F_GU}")
    a(f"s_cmp_eq_u32 {sr(s_wave)}, 0"); a(f"s_cselect_b32 {sr(s_sig)}, s5, {sr(s_sig)}")
    a("s_lshl_b32 s3, s3, 2"); a("s_add_u32 s3, s3, s4"); a("s_lshl_b32 s3, s3, 6")
    a(f"s_lshl_b32 s4, {sr(s_wave)}, 4"); a("s_add_u32 s3, s3, s4")
    srd(a, core.sA, 8, 9, 2048 * 1024 * 2); srd(a, core.sB, 28, 29, 2048); srd(a, sO, 34, 35, 8192, WS_G)
    G = 8; XB = 32
    a(f"v_lshlrev_b32 v2, 5, {vr(vlane)}")
    a(f"buffer_load_dwordx4 v[{G}:{G+3}], v2, {sr(core.sB,4)}, 0 offen"); a(f"buffer_load_dwordx4 v[{G+4}:{G+7}], v2, {sr(core.sB,4)}, 0 offen offset:16")
    a("s_lshl_b32 s4, s3, 11"); a("v_add_u32 v3, s4, v2")
    for t in range(16):
        a(f"s_mov_b32 s5, {t*2048}")
        a(f"buffer_load_dwordx4 v[{XB+8*t}:{XB+8*t+3}], v3, {sr(core.sA,4)}, s5 offen")
        a(f"buffer_load_dwordx4 v[{XB+8*t+4}:{XB+8*t+7}], v3, {sr(core.sA,4)}, s5 offen offset:16")
    a("s_waitcnt vmcnt(32)")
    for r in range(8):
        a(f"v_lshlrev_b32 v{16+2*r}, 16, v{G+r}"); a(f"v_and_b32 v{17+2*r}, 0xffff0000, v{G+r}")
    a("v_mov_b32 v6, 0")
    for t in range(16):
        a(f"s_waitcnt vmcnt({2*(15-t)})")
        for r in range(8):
            x = XB + 8 * t + r
            a(f"v_lshlrev_b32 v5, 16, v{x}")
            a(f"v_mul_f32 v4, v5, v{16+2*r}" if r == 0 else f"v_fmac_f32 v4, v5, v{16+2*r}")
            a(f"v_and_b32 v5, 0xffff0000, v{x}"); a(f"v_fmac_f32 v4, v5, v{17+2*r}")
        for m in ("quad_perm:[1,0,3,2]", "quad_perm:[2,3,0,1]", "row_half_mirror", "row_mirror"):
            a("s_nop 1"); a(f"v_add_f32_dpp v4, v4, v4 {m} row_mask:0xf bank_mask:0xf")
        a("s_nop 1")
        for q in range(4): a(f"v_readlane_b32 s{4+q}, v4, {16*q}")
        a("s_nop 1")
        a("v_mov_b32 v5, s4"); a("v_add_f32 v5, s5, v5"); a("v_add_f32 v5, s6, v5"); a("v_add_f32 v5, s7, v5")
        a(f"v_cmp_eq_u32 vcc, {t}, {vr(vlane)}"); a("s_nop 1"); a("v_cndmask_b32 v6, v6, v5, vcc")
    a(f"v_mul_f32 v6, {f32(-math.log2(math.e))}, v6")
    a("v_exp_f32 v6, v6"); a("s_nop 0"); a("v_add_f32 v6, 1.0, v6"); a("v_rcp_f32 v6, v6")
    a(f"v_add_u32 v7, s3, {vr(vlane)}"); a("v_lshlrev_b32 v7, 2, v7")
    a("s_mov_b64 exec, 0xffff")
    a(f"buffer_store_dword v6, v7, {sr(sO,4)}, 0 offen sc1")
    a("s_mov_b64 exec, -1")
    a("s_waitcnt vmcnt(0)")
    a("s_barrier")
    a(signal())
    a.label(f"{name}_nog")
    a("s_and_b32 s6, s2, 7"); a("s_lshl_b32 s6, s6, 1"); a("s_bfe_u32 s7, s2, 0x10004"); a("s_add_u32 s6, s6, s7"); a("s_lshl_b32 s6, s6, 7")
    wait_flags(a, f"{name}_wq", sF, "s6", 24, False, vlane, vT)
    att2.att_pre(a, sys.modules[__name__], vlane, vT, vT + 1, core.sA, core.sB, sPF, 34)
    a(f"s_brev_b32 s{S_PSIG}, 1")
    a.label(f"{name}_exit")

def g3_touch0(a, vlane, vt_, vdum, sZ, sW, s_wave):
    H0 = int(os.environ.get("H0", "32"))
    a("s_bfe_u32 s3, s2, 0x10002"); a("s_lshl_b32 s3, s3, 3"); a("s_bfe_u32 s4, s2, 0x30003"); a("s_add_u32 s3, s3, s4")
    a("s_bfe_u32 s5, s2, 0x10001"); a("s_lshl_b32 s5, s5, 2"); a("s_lshr_b32 s6, s2, 6"); a("s_add_u32 s5, s5, s6")
    a("s_lshl_b32 s3, s3, 3"); a("s_lshl_b32 s6, s6, 1"); a("s_add_u32 s3, s3, s6"); a(f"s_lshr_b32 s6, {sr(s_wave)}, 1"); a("s_add_u32 s3, s3, s6")
    a(f"s_mul_i32 s3, s3, {Z_KB*1024}"); a("s_and_b32 s7, s2, 1"); a(f"s_mul_i32 s6, s7, {H0*2048}"); a("s_add_u32 s3, s3, s6")
    a(f"s_and_b32 s6, {sr(s_wave)}, 1"); a("s_lshl_b32 s6, s6, 12"); a("s_add_u32 s3, s3, s6")
    a(f"v_lshlrev_b32 {vr(vt_)}, 7, {vr(vlane)}")
    a("s_mov_b32 exec_hi, 0")
    a(f"buffer_load_dword {vr(vdum)}, {vr(vt_)}, {sr(sZ,4)}, s3 offen")
    srd(a, sW, 10, 11, 3584 * 2048)
    a(f"s_mul_i32 s3, s7, {H0*64}"); a(f"s_lshl_b32 s6, {sr(s_wave)}, 6"); a("s_add_u32 s3, s3, s6"); a("s_lshl_b32 s4, s4, 3"); a("s_add_u32 s3, s3, s4")
    a("s_lshl_b32 s3, s3, 11"); a("s_lshl_b32 s5, s5, 8"); a("s_add_u32 s3, s3, s5")
    a(f"v_lshrrev_b32 {vr(vt_)}, 1, {vr(vlane)}"); a(f"v_lshlrev_b32 {vr(vt_)}, 11, {vr(vt_)}")
    a(f"v_and_b32 {vr(vdum)}, 1, {vr(vlane)}") if False else None
    a("s_mov_b32 exec_lo, 0x5555")
    a(f"buffer_load_dword {vr(vdum)}, {vr(vt_)}, {sr(sW,4)}, s3 offen")
    a(f"buffer_load_dword {vr(vdum)}, {vr(vt_)}, {sr(sW,4)}, s3 offen offset:128")
    a("s_mov_b64 exec, -1")

def g3_sentinel(a, vl16, vq4, vt_, sZ, sW, s_wave):
    a(f"s_add_u32 {sr(sW)}, {sr(sZ)}, {WS_PART - WS_Z}"); a(f"s_addc_u32 {sr(sW+1)}, {sr(sZ+1)}, 0"); a(f"s_mov_b32 {sr(sW+2)}, {128*65536}")
    a("s_bfe_u32 s3, s2, 0x10002"); a("s_lshl_b32 s3, s3, 3"); a("s_bfe_u32 s4, s2, 0x30003"); a("s_add_u32 s3, s3, s4")
    a("s_bfe_u32 s5, s2, 0x10001"); a("s_lshl_b32 s5, s5, 2"); a("s_lshr_b32 s6, s2, 6"); a("s_add_u32 s5, s5, s6")
    a("s_lshl_b32 s3, s3, 3"); a("s_add_u32 s3, s3, s5"); a("s_lshl_b32 s3, s3, 2"); a(f"s_add_u32 s3, s3, {sr(s_wave)}")
    a("s_lshl_b32 s3, s3, 14"); a("s_and_b32 s4, s2, 1"); a("s_xor_b32 s4, s4, 1"); a("s_lshl_b32 s4, s4, 13"); a("s_add_u32 s3, s3, s4")
    a(f"v_add_u32 {vr(vt_)}, s3, {vr(vl16)}")
    for r in range(4): a(f"v_mov_b32 {vr(vq4+r)}, -1")
    a("s_mov_b32 s6, 4096")
    for k in range(8): a(f"buffer_store_dwordx4 {vr(vq4,4)}, {vr(vt_)}, {sr(sW,4)}, {'0' if k < 4 else 's6'} offen offset:{(k%4)*1024} sc1")

def phase_g3(a, name="g3"):
    cfg = GemmCfg(128, 128, 2, 2, native_a=True, swap=False, stages=4, ms=16)
    V = RegAlloc(4, 256, "v"); S = RegAlloc(36, 100, "s")
    core = GemmCore3(a, cfg, V, S, False)
    core.use_step4 = True; core.GX = int(os.environ.get("G3X", "3")); core.GW = int(os.environ.get("G3W", "3"))
    accH = core.accbase; accA = V.alloc("acc2", 64, 4)
    vw = V.alloc("vw", 4, 2)
    vlane = V.alloc("lane"); vt = [V.alloc(f"t{i}") for i in range(4)]
    vout = V.alloc("vout"); vg = V.alloc("g", 4); vpart = V.alloc("vpart")
    vpa = V.alloc("vpa"); vpw = V.alloc("vpw"); vdum = V.alloc("vdum"); vflag = V.alloc("vflag"); vfa = V.alloc("vfa")
    s_wave = S_WAVE; s_wt = S.alloc("wt"); s_wn = S.alloc("wn")
    s_tm = S.alloc("tm"); s_tn = S.alloc("tn"); s_half = S.alloc("half")
    s_ab = S.alloc("ab"); s_lda = S.alloc("lda"); s_bb = S.alloc("bb"); s_ldw = S.alloc("ldw"); s_fo = S.alloc("fo"); s_pid = S.alloc("pid")
    s_dA = S.alloc("dA"); s_dB = S.alloc("dB"); s_kA0 = S.alloc("kA0"); s_fx = S.alloc("fx"); s_fa = S.alloc("fa"); s_oob = S.alloc("oob")
    sO = S.alloc("srdO", 4, 4); sG = S.alloc("srdG", 4, 4); sP = S.alloc("srdP", 4, 4); sF = S.alloc("srdF", 4, 4); sBT = S.alloc("srdBT", 4, 4)
    PA, PB, SS = cfg.PA, cfg.PB, cfg.S
    a("s_load_dwordx16 s[8:23], s[0:1], 0")
    a("s_load_dwordx8 s[24:31], s[0:1], 64")
    a("s_load_dwordx4 s[32:35], s[0:1], 96")
    lane_id(a, vlane)
    a(f"s_lshr_b32 {sr(s_wt)}, {sr(s_wave)}, 1"); a(f"s_and_b32 {sr(s_wn)}, {sr(s_wave)}, 1")
    a(f"s_and_b32 {sr(s_half)}, s2, 1")
    a("s_lshr_b32 s4, s2, 3")
    a("s_bfe_u32 s5, s2, 0x10002"); a("s_lshl_b32 s5, s5, 3"); a("s_and_b32 s6, s4, 7"); a(f"s_add_u32 {sr(s_tm)}, s5, s6")
    a("s_bfe_u32 s5, s2, 0x10001"); a("s_lshl_b32 s5, s5, 2"); a("s_lshr_b32 s6, s4, 3"); a(f"s_add_u32 {sr(s_tn)}, s5, s6")
    a("s_waitcnt lgkmcnt(0)")
    srd(a, sF, 34, 35, FLAG_BYTES, WS_FLAG)
    a(f"s_lshr_b32 {sr(s_fo)}, {sr(s_tm)}, 1"); a(f"s_lshl_b32 {sr(s_fo)}, {sr(s_fo)}, 7"); a(f"s_add_u32 {sr(s_fo)}, {sr(s_fo)}, {F_GU}")
    a(f"s_cmp_eq_u32 s{S_PSIG}, 1"); a(f"s_cbranch_scc1 {name}_w0_ok")
    wait_flags(a, f"{name}_w0", sF, sr(s_fo), 32, False, vlane, vw)
    srd(a, core.sA, 34, 35, 128 * Z_KB * 1024, WS_Z)
    srd(a, core.sB, 26, 27, 3584 * 2048); srd(a, sBT, 26, 27, 3584 * 2048)
    a(f"s_mov_b32 {sr(s_lda)}, {Z_KB*1024}"); a(f"s_mov_b32 {sr(s_ldw)}, 2048")
    a(f"s_mul_i32 {sr(s_ab)}, {sr(s_tm)}, {8*Z_KB*1024}")
    H0 = int(os.environ.get("H0", "32")); H1 = 56 - H0
    a(f"s_mul_i32 s3, {sr(s_half)}, {H0*2048}"); a(f"s_add_u32 {sr(s_ab)}, {sr(s_ab)}, s3")
    a(f"s_mul_i32 s5, {sr(s_half)}, {H0*64*2048}")
    a(f"s_lshl_b32 s6, {sr(s_tn)}, 8"); a("s_add_u32 s7, s5, s6")
    a(f"s_lshl_b32 s3, {sr(s_wt)}, 7"); a(f"s_add_u32 {sr(s_bb)}, s7, s3")
    core.setup_src(vlane, s_wave, s_ab, s_lda, s_bb, s_ldw, vt)
    core.setup_lane_consts(vlane, s_wave, s_wt, s_wn, vt)
    core.prologue5()
    a(f"s_mov_b32 {sr(s_kA0)}, 2048")
    a(f"s_cmp_eq_u32 {sr(s_half)}, 0")
    a(f"s_mov_b32 s3, {112*1024 - H0*2048}"); a(f"s_cselect_b32 {sr(s_dA)}, s3, {32*2048}")
    a(f"s_mov_b32 s3, {(-H0*64*2048) & 0xffffffff}"); a(f"s_cselect_b32 {sr(s_dB)}, s3, {((32-56)*64*2048) & 0xffffffff}")
    a(f"s_cselect_b32 {sr(core.sLoop)}, {H0//4}, {H1//4}")
    srd(a, sO, 30, 31, 2048 * 1024 * 2); srd(a, sG, 34, 35, 8192, WS_G); srd(a, sP, 34, 35, 128 * 65536, WS_PART)
    a(f"s_and_b32 s3, {sr(s_tn)}, 3"); a("s_lshl_b32 s3, s3, 1"); a(f"s_add_u32 s3, s3, {sr(s_wt)}")
    a(f"s_mul_i32 s3, s3, {sr(s_lda)}"); a(f"s_add_u32 s3, s3, {sr(s_ab)}")
    a(f"s_lshl_b32 s4, {sr(s_wn)}, 12"); a("s_add_u32 s3, s3, s4")
    a(f"v_lshlrev_b32 {vr(vpa)}, 7, {vr(vlane)}"); a(f"v_add_u32 {vr(vpa)}, s3, {vr(vpa)}")
    a(f"v_bfrev_b32 {vr(vt[3])}, 1")
    a(f"v_cmp_gt_u32 vcc, 32, {vr(vlane)}"); a("s_nop 1")
    a(f"v_cndmask_b32 {vr(vpa)}, {vr(vt[3])}, {vr(vpa)}, vcc")
    a(f"s_and_b32 s3, {sr(s_tm)}, 7"); a("s_lshl_b32 s3, s3, 3"); a(f"s_lshl_b32 s4, {sr(s_wave)}, 6"); a("s_add_u32 s3, s3, s4")
    a(f"v_lshrrev_b32 {vr(vpw)}, 1, {vr(vlane)}"); a(f"v_add_u32 {vr(vpw)}, s3, {vr(vpw)}")
    a(f"v_lshlrev_b32 {vr(vpw)}, 11, {vr(vpw)}")
    a(f"v_and_b32 {vr(vt[2])}, 1, {vr(vlane)}"); a(f"v_lshl_add_u32 {vr(vpw)}, {vr(vt[2])}, 7, {vr(vpw)}")
    a(f"v_add_u32 {vr(vpw)}, s7, {vr(vpw)}")
    a(f"v_cmp_gt_u32 vcc, 16, {vr(vlane)}"); a("s_nop 1")
    a(f"v_cndmask_b32 {vr(vpw)}, {vr(vt[3])}, {vr(vpw)}, vcc")
    tA = [f"buffer_load_dword {vr(vdum)}, {vr(vpa)}, {sr(core.sA,4)}, 0 offen", f"v_add_u32 {vr(vpa)}, 0x2000, {vr(vpa)}"]
    tW = [f"buffer_load_dword {vr(vdum)}, {vr(vpw)}, {sr(sBT,4)}, 0 offen", f"v_add_u32 {vr(vpw)}, {4*64*2048}, {vr(vpw)}"]
    a(tA[1]); a(tW[1]); a(tA); a(tW)
    a(f"s_lshl_b32 {sr(s_fo)}, {sr(s_tm)}, 1"); a(f"s_add_u32 {sr(s_fo)}, {sr(s_fo)}, {sr(s_half)}"); a(f"s_lshl_b32 {sr(s_fo)}, {sr(s_fo)}, 6")
    a(f"s_add_u32 {sr(s_fo)}, {sr(s_fo)}, {F_CTX}")
    a(f"v_and_b32 {vr(vfa)}, 15, {vr(vlane)}"); a(f"v_lshlrev_b32 {vr(vfa)}, 2, {vr(vfa)}")
    tF = [f"buffer_load_dword {vr(vflag)}, {vr(vfa)}, {sr(sF,4)}, {sr(s_fa)} offen sc1"]
    a(f"s_brev_b32 {sr(s_oob)}, 1"); a(f"s_mov_b32 {sr(s_fa)}, {sr(s_oob)}")
    a(f"s_lshl_b32 s3, {sr(s_tm)}, 7"); a(f"s_lshl_b32 s4, {sr(s_wt)}, 6"); a("s_add_u32 s3, s3, s4")
    a(f"v_and_b32 {vr(vt[0])}, 15, {vr(vlane)}"); a(f"v_add_u32 {vr(vt[0])}, s3, {vr(vt[0])}")
    a(f"v_lshlrev_b32 {vr(vt[1])}, 2, {vr(vt[0])}")
    for j in range(4): a(f"buffer_load_dword {vr(vg+j)}, {vr(vt[1])}, {sr(sG,4)}, 0 offen offset:{j*64}")
    a(f"v_lshlrev_b32 {vr(vout)}, 11, {vr(vt[0])}")
    a(f"v_lshrrev_b32 {vr(vt[2])}, 4, {vr(vlane)}")
    a(f"v_lshl_add_u32 {vr(vout)}, {vr(vt[2])}, 3, {vr(vout)}")
    a(f"s_lshl_b32 s3, {sr(s_tn)}, 8"); a(f"s_lshl_b32 s4, {sr(s_wn)}, 7"); a("s_add_u32 s3, s3, s4")
    a(f"v_add_u32 {vr(vout)}, s3, {vr(vout)}")
    a(f"s_lshl_b32 s3, {sr(s_tm)}, 3"); a(f"s_add_u32 s3, s3, {sr(s_tn)}"); a("s_lshl_b32 s3, s3, 2"); a(f"s_add_u32 {sr(s_pid)}, s3, {sr(s_wave)}")
    a(f"s_lshl_b32 s3, {sr(s_pid)}, 14"); a(f"s_lshl_b32 s4, {sr(s_half)}, 13"); a("s_add_u32 s3, s3, s4")
    a(f"v_lshlrev_b32 {vr(vpart)}, 4, {vr(vlane)}"); a(f"v_add_u32 {vr(vpart)}, s3, {vr(vpart)}")
    a(f"s_lshl_b32 s3, {sr(s_pid)}, 3"); a(f"s_lshl_b32 s4, {sr(s_half)}, 2"); a("s_add_u32 s3, s3, s4"); a(f"s_add_u32 {sr(s_fx)}, s3, {F_EX}")
    core.accbase = accA; core.zero_acc(); core.accbase = accH; core.zero_acc()
    a(f"s_waitcnt vmcnt({(SS-2)*(PA+PB) + PB + 6})")
    a("s_barrier")
    a(core.next_reads(0))
    def trip(extras):
        cnt = {t: sum(1 for x in e if x.startswith("buffer_")) for t, e in extras.items()}
        for t in range(4):
            nx = sum(cnt.get(u % 4, 0) for u in range(t + 2 - SS, t + 1))
            core.step5(t, True, True, True, (SS - 2) * (PA + PB) + nx, extra=extras.get(t), advA=s_kA0 if t == 0 else None)
    core.accbase = accH
    a.label(f"{name}_l1")
    trip({0: tA + tF, 2: tW})
    a(f"s_sub_u32 {sr(core.sLoop)}, {sr(core.sLoop)}, 1")
    a(f"s_cmp_eq_u32 {sr(core.sLoop)}, 3"); a(f"s_cselect_b32 {sr(s_fa)}, {sr(s_fo)}, {sr(s_oob)}")
    a(f"s_cmp_gt_u32 {sr(core.sLoop)}, 2"); a(f"s_cbranch_scc1 {name}_l1")
    a(f"s_cmp_eq_u32 {sr(core.sLoop)}, 0"); a(f"s_cbranch_scc1 {name}_l2s")
    a(f"s_cmp_eq_u32 {sr(core.sLoop)}, 1"); a(f"s_cbranch_scc1 {name}_swd")
    a(f"v_cmp_eq_u32 vcc, 0, {vr(vflag)}")
    a(f"s_cbranch_vccz {name}_w1_ok")
    wait_flags(a, f"{name}_w1", sF, sr(s_fo), 16, False, vlane, vw)
    a(f"v_add_u32 {vr(vpa)}, {sr(s_dA)}, {vr(vpa)}"); a(f"v_add_u32 {vr(vpw)}, {sr(s_dB)}, {vr(vpw)}")
    srd(a, sBT, 18, 19, 4096 * 2048)
    a(f"s_branch {name}_l1")
    a.label(f"{name}_swd")
    a("s_mov_b64 exec, 1"); a(f"buffer_store_dword {vr(vt[3])}, {vr(vlane)}, {sr(sF,4)}, {sr(s_fx)} offen sc1"); a("s_mov_b64 exec, -1")
    a(f"s_add_u32 {sr(s_kA0)}, {sr(s_dA)}, 2048"); a(f"v_add_u32 {vr(core.vBsrc[0])}, {sr(s_dB)}, {vr(core.vBsrc[0])}")
    srd(a, core.sB, 18, 19, 4096 * 2048)
    a(f"s_branch {name}_l1")
    a.label(f"{name}_l2s")
    core.accbase = accA
    a(f"s_mov_b32 {sr(core.sLoop)}, 6"); a(f"s_mov_b32 {sr(s_kA0)}, 2048")
    a(f"s_xor_b32 {sr(s_fo)}, {sr(s_fx)}, 4"); a(f"v_mov_b32 {vr(vfa)}, 0")
    a.label(f"{name}_l2")
    trip({0: tA + tF, 2: tW})
    a(f"s_sub_u32 {sr(core.sLoop)}, {sr(core.sLoop)}, 1")
    a(f"s_cmp_eq_u32 {sr(core.sLoop)}, 1"); a(f"s_cselect_b32 {sr(s_fa)}, {sr(s_fo)}, {sr(s_oob)}")
    a(f"s_cmp_lg_u32 {sr(core.sLoop)}, 0"); a(f"s_cbranch_scc1 {name}_l2")
    core.tail5(8)
    stamp(a, 4)
    a("s_nop 7")
    a("s_mov_b32 s6, 4096")
    R = core.xf[0][0][0]; W = core.wf[0][0]
    def comb(blk):
        o = blk * 4; j = blk % 4
        for r in range(4): a(f"v_sub_f32 {vr(accA+o+r)}, {vr(accA+o+r)}, {vr(accH+o+r)}")
        for r in range(4): a(f"v_fma_f32 {vr(accA+o+r)}, {vr(accA+o+r)}, {vr(vg+j)}, {vr(accH+o+r)}")
    def fin(h):
        a(f"v_cmp_eq_u32 vcc, 0, {vr(vflag)}")
        a(f"s_cbranch_vccz {name}_wx{h}_ok")
        wait_flags(a, f"{name}_wx{h}", sF, sr(s_fo), 1, False, vlane, vw, sleep=1)
        for k in range(8):
            blk = (1 - h) * 8 + k
            comb(blk)
            a(f"buffer_store_dwordx4 {vr(accA+4*blk,4)}, {vr(vpart)}, {sr(sP,4)}, {'0' if k < 4 else 's6'} offen offset:{(k%4)*1024} sc1")
        a(f"v_xor_b32 {vr(vt[0])}, 0x2000, {vr(vpart)}")
        for k in range(8): comb(h * 8 + k)
        a("s_mov_b32 s3, 0")
        a.label(f"{name}_rd{h}")
        for k in range(8):
            a(f"buffer_load_dwordx4 {vr(R+4*k,4)}, {vr(vt[0])}, {sr(sP,4)}, {'0' if k < 4 else 's6'} offen offset:{(k%4)*1024} sc1")
        for k in range(8):
            a(f"s_waitcnt vmcnt({7-k})")
            if k == 0: a(f"v_max_u32 {vr(vt[1])}, {vr(R)}, {vr(R+1)}")
            else: a(f"v_max3_u32 {vr(vt[1])}, {vr(vt[1])}, {vr(R+4*k)}, {vr(R+4*k+1)}")
            a(f"v_max3_u32 {vr(vt[1])}, {vr(vt[1])}, {vr(R+4*k+2)}, {vr(R+4*k+3)}")
        a(f"v_cmp_eq_u32 vcc, -1, {vr(vt[1])}")
        a(f"s_cbranch_vccz {name}_rd{h}_ok")
        a("s_add_u32 s3, s3, 1"); a(f"s_cmp_lt_u32 s3, {SPIN_MAX}"); a(f"s_cbranch_scc1 {name}_rd{h}")
        a.label(f"{name}_rd{h}_ok")
        for k in range(8):
            blk = h * 8 + k; i, j = blk // 4, blk % 4
            b = W + (k % 4) * 8
            for r in range(4): a(f"v_add_f32 {vr(b+2+r)}, {vr(accA+4*blk+r)}, {vr(R+4*k+r)}")
            a(f"v_cvt_pk_bf16_f32 {vr(b)}, {vr(b+2)}, {vr(b+3)}"); a(f"v_cvt_pk_bf16_f32 {vr(b+1)}, {vr(b+4)}, {vr(b+5)}")
            a(f"s_mov_b32 s3, {j*16*2048}")
            a(f"buffer_store_dwordx2 {vr(b,2)}, {vr(vout)}, {sr(sO,4)}, s3 offen offset:{i*32}")
    a(f"s_cmp_lg_u32 {sr(s_half)}, 0"); a(f"s_cbranch_scc1 {name}_fin1")
    fin(0); a(f"s_branch {name}_end")
    a.label(f"{name}_fin1"); fin(1)
    a.label(f"{name}_end")

def gen_mega(a, name=KNAME):
    import sys
    from k2_gen import gen_k2
    mg = sys.modules[__name__]
    kernel_header(a, name)
    a("s_cmp_ge_u32 s2, 256"); a(f"s_cbranch_scc1 {name}_end")
    if STAMPS:
        a("v_lshrrev_b32 v1, 6, v0"); a("s_nop 0"); a(f"v_readfirstlane_b32 s{S_WAVE}, v1"); a("s_nop 3")
        stamp(a, 0)
    phase_g1(a)
    stamp(a, 1)
    cold = att2.gen_att(a, mg)
    stamp(a, 2)
    if os.environ.get("DIAG"):
        a("v_mov_b32 v2, s98"); a("buffer_store_dword v2, v1, s[8:11], 0 offen offset:48")
        a("v_mov_b32 v2, s99"); a("buffer_store_dword v2, v1, s[8:11], 0 offen offset:52")
        a("s_waitcnt vmcnt(0)")
    phase_g3(a)
    stamp(a, 5)
    a.label(f"{name}_end"); a("s_endpgm")
    a.label("mega_code_end")
    cold()
    return dict(name=name, nv=512, acc_off=256, grid=256, block=256, lds=131072 + 8192)

if __name__ == "__main__":
    import sys
    from gen_all import HEADER
    body = Asm()
    infos = [gen_mega(body)]
    out = HEADER
    for i in infos:
        if os.environ.get("LIST"): out += f"; @launch kernel={i['name']} grid=({i['grid']},1,1) block=({i['block']},1,1) lds={i['lds']}\n"
        else: out += f"; @launch grid=({i['grid']},1,1) block=({i['block']},1,1) lds={i['lds']}\n"
    out += '.amdgcn_target "amdgcn-amd-amdhsa--gfx950"\n' + body.text()
    d = Asm()
    for i in infos: kernel_desc(d, i["name"], i["nv"], i["acc_off"])
    open(sys.argv[1], "w").write(out + d.text())
```

```python
from asmb import *
from k1_gen import srd, f32, WS_Q, WS_K, WS_V, WS_Z, Z_KB
from k2_gen import RD, WAIT, resolve, flat, MF, BIAS, NEG
import os
from gpack import pack, kind
ST = " sc1"
DIAG = bool(os.environ.get("DIAG"))
NOTOUCH = bool(os.environ.get("NOTOUCH"))
SPLIT = int(os.environ.get("SPLIT", "4"))
NE = int(os.environ.get("NE", "5"))
AHEAD = float(os.environ.get("AHEAD", "3"))
DMA_GAP = int(os.environ.get("DMA_GAP", "4"))
NPRE = int(os.environ.get("NPRE", "10"))
LDS_ML = 131072
def O(db, qb): return (db * 4 + qb) * 4
def L(qb): return 128 + qb * 4
def Q(qb, ks): return 144 + (qb * 4 + ks) * 4
ONES = 208
ZERO = 244
def VF(k): return 212 + (k % 8) * 4

def job_table(mg):
    if os.environ.get("HS", "0") != "1":
        return [[(li & 3, i_) for i_ in mg.ATT_JOBS[li >> 2]] for li in range(32)]
    tiles = [14, 13, 12, 11, 10, 9, 8, 6, 5, 4, 3, 2, 1, 0]
    tab = []
    for c in range(28):
        h, t = c % 2, tiles[c // 2]
        jl = [(h, t), (h + 2, 14 - t)]
        if t == 0: jl.reverse()
        tab.append(jl)
    for k in range(4): tab.append([(k, 15), (k, 7)])
    return tab
def job_word(a, mg, s_li, dst):
    a(f"s_mov_b32 {sr(dst)}, 0")
    tab = job_table(mg)
    assert sorted(j for jl in tab for j in jl) == [(h, i) for h in range(4) for i in range(16)]
    for k, jl in enumerate(tab):
        assert len(jl) >= 2 and all(i_ > 0 for _, i_ in jl[:-1])
        val = 0
        for n_, (h_, i_) in enumerate(jl): val |= (64 | h_ << 4 | i_) << (7 * n_)
        a(f"s_cmp_eq_u32 {sr(s_li)}, {k}"); a(f"s_cselect_b32 {sr(dst)}, {val}, {sr(dst)}")

def att_pre(a, mg, vlane, v0, v1, q0, q1, q2, ws_lo):
    W = mg.S_WAVE
    srd(a, q0, ws_lo, ws_lo + 1, 16 << 20, WS_K); srd(a, q1, ws_lo, ws_lo + 1, 16 << 20, WS_V); srd(a, q2, ws_lo, ws_lo + 1, 16 << 20, WS_Q)
    a("s_lshr_b32 s4, s2, 3")
    job_word(a, mg, 4, 5)
    a("s_and_b32 s3, s2, 7"); a("s_lshl_b32 s3, s3, 2"); a("s_bfe_u32 s4, s5, 0x20004"); a("s_add_u32 s3, s3, s4"); a("s_lshl_b32 s3, s3, 19")
    a("s_and_b32 s5, s5, 15")
    a(f"s_lshl_b32 s6, s{W}, 13")
    a(f"v_lshlrev_b32 {vr(v0)}, 4, {vr(vlane)}")
    a("s_lshl_b32 s5, s5, 15"); a(f"s_and_b32 s7, s{W}, 1"); a("s_lshl_b32 s7, s7, 14"); a("s_add_u32 s5, s5, s7"); a("s_add_u32 s5, s5, s3")
    a(f"v_add_u32 {vr(v1)}, s5, {vr(v0)}")
    a("s_add_u32 s3, s3, s6"); a(f"v_add_u32 {vr(v0)}, s3, {vr(v0)}")
    def dma(q, ldsbase, off):
        for h in range(2):
            a(f"s_add_u32 m0, s6, {ldsbase + h*4096}"); a(f"s_mov_b32 s7, {off + h*4096}")
            for k in range(4): a(f"buffer_load_dwordx4 {vr(v0)}, {sr(q,4)}, s7 offen offset:{k*1024} lds")
    dma(q0, 0, 0)
    for qb in range(4):
        a(f"s_mov_b32 s7, {qb*4096}")
        for ks in range(4): a(f"buffer_load_dwordx4 {ar(Q(qb,ks),4)}, {vr(v1)}, {sr(q2,4)}, s7 offen offset:{ks*1024}")
    dma(q1, 65536, 0)
    dma(q0, 32768, 32768)

def gen_att(a, mg, name="a2"):
    V = RegAlloc(1, 256, "v"); S = RegAlloc(12, 98, "s")
    vS = V.alloc("S", 128, 4)
    def Sb(buf, kvb, qb): return vS + ((buf * 4 + kvb) * 4 + qb) * 4
    vP = V.alloc("P", 32, 4)
    def P(u, qb): return vP + (u * 4 + qb) * 4
    vK = V.alloc("K", 32, 4)
    def KF(set_, ks): return vK + (set_ * 4 + ks) * 4
    vNM = V.alloc("negm", 16, 4); vT = V.alloc("T", 16, 4); vM = V.alloc("moff", 4, 4); vD = V.alloc("delta", 4, 4)
    vlane = V.alloc("lane"); vKrd = V.alloc("Krd"); vVrd = V.alloc("Vrd"); vsrc = V.alloc("src"); vl16 = V.alloc("l16")
    vx16 = V.alloc("x16"); vx32 = V.alloc("x32"); vneg = V.alloc("neg"); vor = V.alloc("or"); vq = V.alloc("q"); vmrg = V.alloc("mrg"); vmrgR = V.alloc("mrgR")
    vpf = V.alloc("vpf"); vdum = V.alloc("vdum"); vkv = V.alloc("vkv")
    sQ = S.alloc("srdQ", 4, 4); sK = S.alloc("srdK", 4, 4); sV = S.alloc("srdV", 4, 4); sZ = S.alloc("srdZ", 4, 4)
    sPF = S.alloc("srdPF", 4, 4); sKV = S.alloc("srdKV", 4, 4); sF = S.alloc("srdF", 4, 4)
    sMD = [S.alloc(f"maskD{r}", 2, 2) for r in range(4)]; sMB = S.alloc("maskB", 2, 2)
    s_wave = mg.S_WAVE; s_qh = S.alloc("qh"); s_par = S.alloc("par"); s_head = S.alloc("head"); s_p = S.alloc("p")
    s_i = S.alloc("i"); s_iq = S.alloc("iq"); s_n = S.alloc("n"); s_g = S.alloc("gstep"); s_m0 = S.alloc("m0w"); s_hb = S.alloc("headbase")
    sPQ = [S.alloc(f"pfq{k}", 3) for k in range(2)]; s_tog = S.alloc("pftog"); s_t = S.alloc("tmp"); s_t2 = S.alloc("tmp2"); s_64k = S.alloc("c64k"); s_nr = S.alloc("nr48")
    s_jobs = S.alloc("jobs"); s_sig = S.alloc("sig"); s_ret = S.alloc("ret", 2, 2)
    kst = dict(j=S.alloc("kj"), o=S.alloc("ko"), e=S.alloc("ke"), srd=sK)
    vst = dict(o=S.alloc("vo"), srd=sV)
    vsrc2 = vkv

    a("s_load_dwordx2 s[4:5], s[0:1], 104"); a("s_load_dwordx2 s[8:9], s[0:1], 40"); a("s_load_dwordx2 s[10:11], s[0:1], 72")
    mg.lane_id(a, vlane)
    a(f"s_and_b32 {sr(s_qh)}, {sr(s_wave)}, 1"); a(f"s_lshr_b32 {sr(s_par)}, {sr(s_wave)}, 1")
    a(f"s_lshr_b32 {sr(s_p)}, s2, 3")
    job_word(a, mg, s_p, s_jobs)
    a(f"s_and_b32 {sr(s_p)}, s2, 7"); a(f"s_lshl_b32 {sr(s_p)}, {sr(s_p)}, 2")
    a(f"s_bfe_u32 s6, {sr(s_jobs)}, 0x20004"); a(f"s_add_u32 {sr(s_head)}, {sr(s_p)}, s6")
    a(f"s_mov_b32 {sr(s_sig)}, s{mg.S_PSIG}")
    a(f"s_lshl_b32 {sr(s_hb)}, {sr(s_p)}, 19"); a(f"s_lshl_b32 {sr(s_m0)}, {sr(s_wave)}, 13")
    a(f"s_and_b32 {sr(s_i)}, {sr(s_jobs)}, 15")
    def adv():
        st = kst
        return [f"s_mov_b32 {sr(vst['o'])}, {sr(st['o'])}", f"s_mov_b32 {sr(sV+2)}, {sr(sK+2)}",
                f"s_add_u32 {sr(st['o'])}, {sr(st['o'])}, 32768", f"s_lshr_b32 {sr(s_t)}, {sr(st['j'])}, 7",
                f"s_and_b32 {sr(s_t2)}, {sr(s_t)}, 0x30", f"s_lshl_b32 {sr(s_t2)}, {sr(s_t2)}, 15",
                ("ATOM", [f"s_cmp_gt_u32 {sr(st['o'])}, {sr(st['e'])}", f"s_cselect_b32 {sr(st['j'])}, {sr(s_t)}, {sr(st['j'])}",
                          f"s_cselect_b32 {sr(st['o'])}, {sr(s_t2)}, {sr(st['o'])}"]),
                f"s_and_b32 {sr(s_t)}, {sr(st['j'])}, 63", f"s_lshl_b32 {sr(st['e'])}, {sr(s_t)}, 15",
                ("ATOM", [f"s_cmp_eq_u32 {sr(st['j'])}, 0", f"s_cselect_b32 {sr(sK+2)}, 0, {sr(sK+2)}"])]
    def flat2(items):
        o = []
        for f in items: o += (list(f[1]) if isinstance(f, tuple) else list(f) if isinstance(f, list) else [f])
        return o
    a("s_waitcnt lgkmcnt(0)")
    srd(a, sQ, 4, 5, 16 << 20, WS_Q); srd(a, sK, 4, 5, 16 << 20, WS_K); srd(a, sV, 4, 5, 16 << 20, WS_V)
    srd(a, sZ, 4, 5, 128 * Z_KB * 1024, WS_Z); srd(a, sKV, 4, 5, 48 << 20, WS_Q); srd(a, sF, 4, 5, mg.FLAG_BYTES, mg.WS_FLAG)
    a(f"s_mov_b32 {sr(kst['j'])}, {sr(s_jobs)}"); a(f"s_and_b32 s3, {sr(s_jobs)}, 0x30"); a(f"s_lshl_b32 {sr(kst['o'])}, s3, 15"); a(f"s_and_b32 s3, {sr(s_jobs)}, 63"); a(f"s_lshl_b32 {sr(kst['e'])}, s3, 15")
    a(flat2(adv())); a(flat2(adv()))
    a(f"s_lshr_b32 {sr(s_jobs)}, {sr(s_jobs)}, 7")
    a("s_lshl_b32 s3, s2, 2"); a(f"s_add_u32 s3, s3, {sr(s_wave)}")
    a("s_mul_i32 s6, s3, 7168"); a(f"s_add_u32 {sr(sPQ[0])}, s10, s6"); a(f"s_addc_u32 {sr(sPQ[0]+1)}, s11, 0"); a(f"s_mov_b32 {sr(sPQ[0]+2)}, {0 if NOTOUCH else 7168}")
    a("s_lshl_b32 s6, s3, 13"); a(f"s_add_u32 {sr(sPQ[1])}, s8, s6"); a(f"s_addc_u32 {sr(sPQ[1]+1)}, s9, 0"); a(f"s_mov_b32 {sr(sPQ[1]+2)}, {0 if NOTOUCH else 8192}")
    a(f"s_mov_b32 {sr(sPF+3)}, 0x20000"); a(f"s_and_b32 {sr(s_tog)}, {sr(s_wave)}, 1")
    a(f"v_lshlrev_b32 {vr(vpf)}, 7, {vr(vlane)}")
    a(f"v_lshlrev_b32 {vr(vl16)}, 4, {vr(vlane)}")
    a(f"s_lshl_b32 s3, {sr(s_par)}, 14"); a(f"v_add_u32 {vr(vKrd)}, s3, {vr(vl16)}"); a(f"v_add_u32 {vr(vVrd)}, 0x10000, {vr(vKrd)}")
    a(f"s_add_u32 s3, {sr(s_hb)}, {sr(s_m0)}"); a(f"v_add_u32 {vr(vsrc)}, s3, {vr(vl16)}"); a(f"v_add_u32 {vr(vsrc2)}, 0x1000, {vr(vsrc)}")
    a(f"v_xor_b32 {vr(vx16)}, 16, {vr(vlane)}"); a(f"v_lshlrev_b32 {vr(vx16)}, 2, {vr(vx16)}")
    a(f"v_xor_b32 {vr(vx32)}, 32, {vr(vlane)}"); a(f"v_lshlrev_b32 {vr(vx32)}, 2, {vr(vx32)}")
    a(f"v_mov_b32 {vr(vneg)}, {f32(NEG)}")
    a(f"v_lshrrev_b32 {vr(vT+1)}, 4, {vr(vlane)}"); a(f"v_lshlrev_b32 {vr(vT+1)}, 2, {vr(vT+1)}"); a(f"v_and_b32 {vr(vT+2)}, 15, {vr(vlane)}")
    for r in range(4):
        a(f"v_add_u32 {vr(vT+3)}, {r}, {vr(vT+1)}"); a(f"v_cmp_gt_u32 {sr(sMD[r],2)}, {vr(vT+3)}, {vr(vT+2)}")
    a(f"v_mov_b32 {vr(vT)}, 0x3f803f80")
    for r in range(4): a(f"v_accvgpr_write_b32 {ar(ONES+r)}, {vr(vT)}")
    for r in range(4): a(f"v_accvgpr_write_b32 {ar(ZERO+r)}, 0")
    a(f"s_cmp_eq_u32 {sr(s_qh)}, {sr(s_par)}")
    for r in range(4): a(f"s_cselect_b64 {sr(sMD[r],2)}, {sr(sMD[r],2)}, 0")
    a(f"s_cselect_b64 {sr(sMB,2)}, -1, 0")
    a(f"s_mov_b32 {sr(s_g)}, 0"); a(f"s_mov_b32 {sr(s_n)}, 0")
    def signal():
        return ["s_mov_b64 exec, 1", f"buffer_store_dword {vr(vneg)}, {vr(vlane)}, {sr(sF,4)}, {sr(s_sig)} offen sc1", "s_mov_b64 exec, -1", f"s_brev_b32 {sr(s_sig)}, 1"]
    def zero_mfma():
        if os.environ.get("NO_ZM"): return [f"v_accvgpr_write_b32 {ar(r)}, 0" for r in range(144)]
        return [f"{MF} {ar(4*k,4)}, {ar(ZERO,4)}, {ar(ZERO,4)}, 0" for k in range(36)]
    def weave(valu, mf):
        out = []; mf = list(mf); c = 0
        for x in valu:
            out.append(x)
            if isinstance(x, str) and x.startswith("v_") and mf:
                c += 1
                if c % 2 == 0: out.append(mf.pop(0))
        return out + mf
    def zero_state():
        o = [f"v_accvgpr_write_b32 {ar(r)}, 0" for r in range(144)]
        return o + [f"v_mov_b32 {vr(vM+qb)}, {vr(vneg)}" for qb in range(4)]

    def dma(st, ldsbase):
        out = []
        for q in range(8):
            g = []
            if q % 4 == 0: g += [f"s_add_u32 m0, {sr(s_m0)}, {ldsbase + (q//4)*4096}"]
            g.append(f"buffer_load_dwordx4 {vr(vsrc if q < 4 else vsrc2)}, {sr(st['srd'],4)}, {sr(st['o'])} offen offset:{(q%4)*1024} lds")
            out.append(g)
        return out
    def kread(stage, kvb):
        return [RD(("K", kvb, ks), f"ds_read_b128 {vr(KF(kvb%2, ks),4)}, {vr(vKrd)} offset:{stage*32768 + (kvb*4+ks)*1024}") for ks in range(4)]
    def vread(stage, k):
        return [RD(("V", k), f"ds_read_b128 {ar(VF(k),4)}, {vr(vVrd)} offset:{stage*32768 + k*1024}")]
    def qk_group(buf, kvb, czero=False):
        out = []
        for qb in range(4):
            for ks in range(4):
                d = vr(Sb(buf, kvb, qb), 4)
                c = ("0" if czero else vr(vNM + qb * 4, 4)) if ks == 0 else d
                out.append(f"{MF} {d}, {vr(KF(kvb%2, ks),4)}, {ar(Q(qb,ks),4)}, {c}")
        return out
    def pv_group(u, db):
        return [f"{MF} {ar(O(db,qb),4)}, {ar(VF(u*8+db),4)}, {vr(P(u,qb),4)}, {ar(O(db,qb),4)}" for qb in range(4)]
    def l_group(u):
        return [f"{MF} {ar(L(qb),4)}, {ar(ONES,4)}, {vr(P(u,qb),4)}, {ar(L(qb),4)}" for qb in range(4)]
    E5 = [(0, 1), (0, 2), (0, 3), (1, 2), (1, 3)]
    EARLY = E5[:NE]
    LO2 = E5[NE:] + [(0, 0), (1, 0), (1, 1)]
    HI = [(kvb, qb) for kvb in (2, 3) for qb in range(4)]
    def softmax_ops(buf, blocks, restart):
        out = []
        def exps(n):
            kvb, qb = blocks[n]; t = vT + (n % 2) * 4; s_ = Sb(buf, kvb, qb)
            return [f"v_exp_f32 {vr(t+r)}, {vr(s_+r)}" for r in range(4)]
        def packs(n):
            kvb, qb = blocks[n]; t = vT + (n % 2) * 4; p = P(kvb // 2, qb) + (kvb % 2) * 2
            return [f"v_cvt_pk_bf16_f32 {vr(p)}, {vr(t)}, {vr(t+1)}", f"v_cvt_pk_bf16_f32 {vr(p+1)}, {vr(t+2)}, {vr(t+3)}"]
        def orr(n):
            kvb, qb = blocks[n]; p = P(kvb // 2, qb) + (kvb % 2) * 2
            return [f"v_or_b32 {vr(vor)}, {vr(p)}, {vr(p+1)}" if (n == 0 and restart) else f"v_or3_b32 {vr(vor)}, {vr(vor)}, {vr(p)}, {vr(p+1)}"]
        nb = len(blocks)
        for n in range(nb + 1):
            e = exps(n) if n < nb else []
            pk = packs(n - 1) if n >= 1 else []
            o_ = orr(n - 2) if n >= 2 else []
            out += e[:2] + pk[:1] + e[2:3] + pk[1:] + e[3:] + o_
        out += orr(nb - 1)
        return out
    class Op(str):
        needs = (); gives = None
    def mk(text, needs=(), gives=None):
        o = Op(text); o.needs = tuple(needs); o.gives = gives; return o
    def softmax_q(buf, blocks, restart, chk, pre=()):
        qe, qp = [], []
        for n_, x in enumerate(pre): qp.append(mk(x, gives=("pre",) if n_ == len(pre) - 1 else None))
        for n, (kvb, qb) in enumerate(blocks):
            t = vT + (n % 4) * 4; s_ = Sb(buf, kvb, qb); p = P(kvb // 2, qb) + (kvb % 2) * 2
            for r in range(4):
                nd = []
                if n >= 4: nd.append(("p", n - 4, r // 2))
                if pre: nd.append(("pre",))
                qe.append(mk(f"v_exp_f32 {vr(t+r)}, {vr(s_+r)}", nd, ("e", n, r)))
            qp.append(mk(f"v_cvt_pk_bf16_f32 {vr(p)}, {vr(t)}, {vr(t+1)}", [("e", n, 1)], ("p", n, 0)))
            qp.append(mk(f"v_cvt_pk_bf16_f32 {vr(p+1)}, {vr(t+2)}, {vr(t+3)}", [("e", n, 3)], ("p", n, 1)))
            qp.append(mk(f"v_or_b32 {vr(vor)}, {vr(p)}, {vr(p+1)}" if (n == 0 and restart) else f"v_or3_b32 {vr(vor)}, {vr(vor)}, {vr(p)}, {vr(p+1)}"))
        if chk: qp += [mk(x) for x in chkops()]
        return [qe, qp]
    def check(label):
        return [f"s_cbranch_vccnz {label}"]
    def chkops():
        return [f"v_and_b32 {vr(vor)}, 0x40004000, {vr(vor)}", f"v_cmp_ne_u32 vcc, 0, {vr(vor)}"]
    def fixmax(buf, has_next, first, pk=True):
        o = ["s_nop 7", "s_waitcnt lgkmcnt(0)"]
        for qb in range(4):
            d = vD + qb
            regs = [Sb(buf, kvb, qb) + r for kvb in range(4) for r in range(4)]
            o.append(f"v_max3_f32 {vr(d)}, {vr(regs[0])}, {vr(regs[1])}, {vr(regs[2])}")
            for k in range(3, 15, 2): o.append(f"v_max3_f32 {vr(d)}, {vr(d)}, {vr(regs[k])}, {vr(regs[k+1])}")
            o.append(f"v_max_f32 {vr(d)}, {vr(d)}, {vr(regs[15])}")
        for vx in (vx16, vx32):
            for qb in range(4): o.append(f"ds_bpermute_b32 {vr(vT+qb)}, {vr(vx)}, {vr(vD+qb)}")
            o.append("s_waitcnt lgkmcnt(0)")
            for qb in range(4): o.append(f"v_max_f32 {vr(vD+qb)}, {vr(vD+qb)}, {vr(vT+qb)}")
        for qb in range(4):
            o.append(f"v_add_f32 {vr(vD+qb)}, {f32(BIAS)}, {vr(vD+qb)}")
            if first: o.append(f"v_mov_b32 {vr(vM+qb)}, {vr(vD+qb)}")
            else:
                o.append(f"v_max_f32 {vr(vD+qb)}, 0, {vr(vD+qb)}"); o.append(f"v_add_f32 {vr(vM+qb)}, {vr(vM+qb)}, {vr(vD+qb)}")
            for r in range(4): o.append(f"v_sub_f32 {vr(vNM+qb*4+r)}, 0, {vr(vM+qb)}")
        for b in ([buf, 1 - buf] if has_next else [buf]):
            for kvb in range(4):
                for qb in range(4):
                    if not pk:
                        for r in range(4): o.append(f"v_sub_f32 {vr(Sb(b, kvb, qb) + r)}, {vr(Sb(b, kvb, qb) + r)}, {vr(vD+qb)}")
                        continue
                    for r in (0, 2):
                        s = Sb(b, kvb, qb) + r
                        dp = vD + (qb & ~1); hi = qb & 1
                        o.append(f"v_pk_add_f32 {vr(s,2)}, {vr(s,2)}, {vr(dp,2)} op_sel:[0,{hi}] op_sel_hi:[1,{hi}] neg_lo:[0,1] neg_hi:[0,1]")
        if not first:
            for qb in range(4):
                o.append(f"v_sub_f32 {vr(vT+8+qb)}, 0, {vr(vD+qb)}"); o.append(f"v_exp_f32 {vr(vT+8+qb)}, {vr(vT+8+qb)}")
            o.append("s_nop 0")
            for qb in range(4):
                regs = [O(db, qb) + r for db in range(8) for r in range(4)] + [L(qb) + r for r in range(4)]
                for k in range(0, len(regs), 4):
                    for e in range(4): o.append(f"v_accvgpr_read_b32 {vr(vT+e)}, {ar(regs[k+e])}")
                    for e in range(4): o.append(f"v_mul_f32 {vr(vT+e)}, {vr(vT+e)}, {vr(vT+8+qb)}")
                    for e in range(4): o.append(f"v_accvgpr_write_b32 {ar(regs[k+e])}, {vr(vT+e)}")
        o.append("s_nop 1")
        return o
    def spread(main, fill):
        items = []
        for f in fill:
            if isinstance(f, tuple): items.append(list(f[1]))
            elif isinstance(f, list): items += [[x] for x in f]
            else: items.append([f])
        n = len(main); m = len(items); out = []; k = 0
        for i in range(n):
            out.append(main[i])
            upto = (i + 1) * m // n
            while k < upto: out += items[k]; k += 1
        return out
    def mixq(x, y):
        if not y: return list(x)
        if not x: return list(y)
        out = []; k = 0
        for i, e in enumerate(x):
            out.append(e)
            upto = (i + 1) * len(y) // len(x)
            while k < upto: out.append(y[k]); k += 1
        return out
    rare = []
    ABL = os.environ.get("ABL", "").split(",")
    KPRE = [("K", kvb, ks) for kvb in range(2) for ks in range(4)]
    def emit(seq, abl=False, pre=()):
        prev = ""
        for x in resolve(flat(seq), pre):
            if abl:
                if "dma" in ABL and (x.endswith(" lds") or x.startswith("s_add_u32 m0")): continue
                if "exp" in ABL and x.startswith("v_exp"): continue
                if "valu" in ABL and x.startswith(("v_exp", "v_cvt", "v_or")): continue
                if "lds" in ABL and x.startswith("ds_read"): continue
                if "mfma" in ABL and x.startswith("v_mfma"): continue
                if "chk" in ABL and x.startswith("s_cbranch_vccnz"): continue
            if x.endswith(":"): a.label(x[:-1])
            else:
                if prev.startswith("s_add_u32 m0") and x.endswith(" lds"): a("s_nop 0")
                a(x); prev = x
    def mask_ops(par):
        o = []
        for kvb in range(4):
            for qb in range(4):
                if kvb < qb: continue
                for r in range(4):
                    s = Sb(par, kvb, qb) + r
                    o.append(f"v_cndmask_b32 {vr(s)}, {vr(s)}, {vr(vneg)}, {sr(sMD[r] if kvb == qb else sMB,2)}")
        return o
    def head(par):
        if DIAG:
            return ["s_memtime s[4:5]", "s_waitcnt vmcnt(0) lgkmcnt(0)", "s_memtime s[6:7]", "s_barrier", "s_memtime s[8:9]", "s_waitcnt lgkmcnt(0)",
                    "s_sub_u32 s5, s6, s4", "s_add_u32 s98, s98, s5", "s_sub_u32 s5, s8, s6", "s_add_u32 s99, s99, s5"]
        return ["s_waitcnt vmcnt(0) lgkmcnt(0)", "s_barrier"]
    NV0 = 4
    def phaseA(par, sm, czero, with_v=True, d=()):
        kstage = 1 - par
        mf = [WAIT(*[("K", 0, ks) for ks in range(4)])]
        for kvb in range(4):
            rd = []
            if 1 <= kvb <= 2: rd += kread(kstage, kvb + 1)
            if kvb == 3 and with_v:
                for k in range(NV0): rd += vread(par, k)
            for n_, x in enumerate(qk_group(1 - par, kvb, czero)):
                mf.append(x)
                if n_ % 2 == 0 and n_ // 2 < len(rd): mf.append(rd[n_ // 2])
            if kvb < 3: mf.append(WAIT(*[("K", kvb + 1, ks) for ks in range(4)]))
        return pack(mf, [q for q in [list(d)] + list(sm) if q])
    def sync_k(par):
        return head(par) + kread(par, 0) + kread(par, 1)
    def phaseB(par, u, extra_queues, sync=False):
        mf = l_group(u)
        tail = []
        for db in range(8):
            k = u * 8 + db
            tgt = tail if (sync and db >= 6) else mf
            if db % 2 == 0 and tgt is mf: mf.append(WAIT(("V", k), ("V", k + 1)))
            for n_, x in enumerate(pv_group(u, db)):
                tgt.append(x)
                if n_ == 0 and k + NV0 < 16: tgt += vread(par, k + NV0)
        if not sync: return pack(mf, [q for q in extra_queues if q])
        kr = kread(par, 0) + kread(par, 1)
        t2 = []
        for n_, x in enumerate(tail): t2 += [x, kr[n_]]
        given = set(); left = []
        p1 = pack(mf, [q for q in extra_queues if q], given, left)
        return p1 + head(par) + pack(t2, [q for q in left if q], given)
    def qload():
        o = [f"s_and_b32 s3, {sr(s_jobs)}, 63", "s_lshl_b32 s3, s3, 15", f"s_lshl_b32 s6, {sr(s_qh)}, 14", "s_add_u32 s3, s3, s6", f"s_add_u32 s3, s3, {sr(s_hb)}",
             f"v_add_u32 {vr(vq)}, s3, {vr(vl16)}"]
        for qb in range(4):
            o.append(f"s_mov_b32 s3, {qb*4096}")
            o += [f"buffer_load_dwordx4 {ar(Q(qb,ks),4)}, {vr(vq)}, {sr(sQ,4)}, s3 offen offset:{ks*1024}" for ks in range(4)]
        return o
    def dmas(par): return dma(kst, par * 32768) + dma(vst, 65536 + (1 - par) * 32768)
    A_HI = HI[:SPLIT]; B_HI = HI[SPLIT:]
    def sigchk(lab):
        return [("ATOM", [f"s_cmp_lt_i32 {sr(s_sig)}, 0", f"s_cbranch_scc1 {lab}_ns"] + signal() + [f"{lab}_ns:"])]
    def normal(par):
        lab = f"{name}_rn{par}"
        seq = phaseA(par, softmax_q(par, LO2 + A_HI, False, True), False, d=dmas(par)) + check(lab + "a") + [f"{lab}a_ret:"]
        seq += phaseB(par, 0, softmax_q(par, B_HI, True, True) + [adv()]) + check(lab + "b") + [f"{lab}b_ret:"]
        seq += [f"s_add_u32 {sr(s_n)}, {sr(s_n)}, 1", f"s_cmp_lg_u32 {sr(s_n)}, {sr(s_iq)}", f"s_cbranch_scc1 {lab}_nq"] + qload() + [f"{lab}_nq:"]
        seq += phaseB(par, 1, softmax_q(1 - par, EARLY, True, False), sync=True)
        seq += flat2(sigchk(lab))
        rare.append((lab + "a", par, True, EARLY + LO2 + A_HI)); rare.append((lab + "b", par, True, HI))
        return seq
    def lastit(par, has_next):
        tag = "b" if has_next else "f"
        lab = f"{name}_r{tag}{par}"
        seq = [f"s_cmp_eq_u32 {sr(s_wave)}, 2", f"s_cbranch_scc1 {lab}_w2"]
        pre = mask_ops(par)
        if not has_next:
            for k in range(NV0): seq += vread(par, k)
            seq += pre
            seq += [f"s_cmp_lg_u32 {sr(s_i)}, 0", f"s_cbranch_scc1 {lab}_nf"] + fixmax(par, False, True) + softmax_ops(par, EARLY, True) + [f"{lab}_nf:"]
            seq += softmax_ops(par, LO2, False) + chkops()
        else:
            seq += phaseA(par, softmax_q(par, LO2, False, True, pre), True, d=dmas(par))
        seq += check(lab + "a") + [f"{lab}a_ret:"]
        seq += phaseB(par, 0, softmax_q(par, HI, True, True) + ([adv()] if has_next else [])) + check(lab + "b") + [f"{lab}b_ret:"]
        seq += phaseB(par, 1, [], sync=True)
        seq.append(f"s_branch {name}_merge{par}")
        emit(seq, pre=KPRE)
        a.label(f"{lab}_w2")
        if has_next:
            emit(phaseA(par, [], True, with_v=False, d=dmas(par)) + flat2(adv()), pre=KPRE)
        emit(sync_k(par))
        a(f"s_branch {name}_merge{par}")
        rare.append((lab + "a", par, False, EARLY + LO2)); rare.append((lab + "b", par, False, HI))
    def set_iq():
        return [f"s_cmp_eq_u32 {sr(s_jobs)}, 0", f"s_cselect_b32 {sr(s_iq)}, 99, {sr(s_i)}"]
    def wtouch():
        return [f"s_mov_b32 {sr(sPF)}, {sr(sPQ[0])}", f"s_mov_b32 {sr(sPF+1)}, {sr(sPQ[0]+1)}", f"s_mov_b32 {sr(sPF+2)}, {sr(sPQ[0]+2)}",
                f"buffer_load_dword {vr(vdum)}, {vr(vpf)}, {sr(sPF,4)}, 0 offen"] + \
               [f"s_mov_b32 {sr(sPQ[0]+e)}, {sr(sPQ[1]+e)}" for e in range(3)] + [f"s_mov_b32 {sr(sPQ[1]+2)}, 0"]

    if DIAG: a("s_mov_b32 s98, 0"); a("s_mov_b32 s99, 0")
    if DIAG: a("s_mov_b32 s98, 0"); a("s_mov_b32 s99, 0")
    a(zero_state()); a(set_iq())
    a("s_waitcnt vmcnt(16)")
    a("s_barrier")
    a(wtouch())
    mg.g3_sentinel(a, vl16, vP, vq, sZ, sPF, s_wave)
    emit(kread(0, 0) + kread(0, 1) + phaseA(1, [], True, with_v=False))
    emit(sync_k(1))
    emit(fixmax(0, False, True) + softmax_ops(0, EARLY, True))
    a.label(f"{name}_it0")
    a(f"s_cmp_eq_u32 {sr(s_n)}, {sr(s_i)}"); a(f"s_cbranch_scc1 {name}_l0")
    emit(normal(0), True, KPRE)
    a.label(f"{name}_it1")
    a(f"s_cmp_eq_u32 {sr(s_n)}, {sr(s_i)}"); a(f"s_cbranch_scc1 {name}_l1")
    emit(normal(1), True, KPRE)
    a(f"s_branch {name}_it0")
    for par in range(2):
        a.label(f"{name}_l{par}")
        a(f"s_cmp_eq_u32 {sr(s_jobs)}, 0"); a(f"s_cbranch_scc1 {name}_lf{par}")
        lastit(par, True)
        a.label(f"{name}_lf{par}")
        lastit(par, False)
    for par in range(2):
        a.label(f"{name}_merge{par}")
        a(signal())
        a(wtouch())
        a(f"v_lshlrev_b32 {vr(vor)}, 2, {vr(vlane)}")
        a("s_bfe_u32 s3, s2, 0x10002"); a("s_lshl_b32 s3, s3, 2"); a("s_bfe_u32 s6, s2, 0x20004"); a("s_add_u32 s3, s3, s6")
        a("s_lshl_b32 s3, s3, 7"); a(f"s_add_u32 s3, s3, {mg.F_GU}")
        a(f"buffer_load_dword {vr(vdum)}, {vr(vor)}, {sr(sF,4)}, s3 offen sc1")
        baseV, baseK = 65536 + par * 32768, (1 - par) * 32768
        a(f"s_lshl_b32 s3, {sr(s_qh)}, 14")
        a(f"s_add_u32 s6, s3, {baseV}"); a(f"s_add_u32 s7, s3, {baseK}")
        a(f"s_cmp_eq_u32 {sr(s_par)}, 0")
        a("s_cselect_b32 s3, s6, s7"); a("s_cselect_b32 s6, s7, s6")
        a(f"v_add_u32 {vr(vmrg)}, s3, {vr(vl16)}"); a(f"v_add_u32 {vr(vmrgR)}, s6, {vr(vl16)}")
        a(f"s_cbranch_scc0 {name}_send1_{par}")
        def send(dbs):
            k = 0
            for db in dbs:
                for qb in range(4):
                    a(f"ds_write_b128 {vr(vmrg)}, {ar(O(db,qb),4)} offset:{k*1024}"); k += 1
        send(range(4, 8)); a(f"s_branch {name}_sent_{par}")
        a.label(f"{name}_send1_{par}"); send(range(0, 4))
        a.label(f"{name}_sent_{par}")
        for qb in range(4): a(f"v_accvgpr_read_b32 {vr(vD+qb)}, {ar(L(qb))}")
        a(f"s_lshl_b32 s3, {sr(s_wave)}, 11"); a(f"s_add_u32 s3, s3, {LDS_ML}"); a(f"v_add_u32 {vr(vmrg)}, s3, {vr(vl16)}")
        a(f"ds_write_b128 {vr(vmrg)}, {vr(vM,4)}"); a(f"ds_write_b128 {vr(vmrg)}, {vr(vD,4)} offset:1024")
        a(f"v_xor_b32 {vr(vmrg)}, 0x1000, {vr(vmrg)}")
        a("s_waitcnt lgkmcnt(0)"); a("s_barrier")
        R = Sb(par, 0, 0)
        a(f"ds_read_b128 {vr(vT,4)}, {vr(vmrg)}"); a(f"ds_read_b128 {vr(vT+4,4)}, {vr(vmrg)} offset:1024")
        for k in range(16): a(f"ds_read_b128 {vr(R+4*k,4)}, {vr(vmrgR)} offset:{k*1024}")
        a(f"s_lshl_b32 s3, {sr(s_i)}, 3"); a(f"s_lshl_b32 s6, {sr(s_qh)}, 2"); a("s_add_u32 s3, s3, s6"); a(f"s_mul_i32 s3, s3, {Z_KB*1024}")
        a(f"s_lshl_b32 s6, {sr(s_head)}, 12"); a("s_add_u32 s3, s3, s6"); a(f"s_lshl_b32 s6, {sr(s_par)}, 11"); a("s_add_u32 s3, s3, s6")
        a(f"s_add_u32 s3, s3, {112*1024}"); a(f"v_add_u32 {vr(vq)}, s3, {vr(vl16)}")
        a("s_waitcnt lgkmcnt(15)"); a("s_waitcnt lgkmcnt(14)") if False else None
        a("s_waitcnt lgkmcnt(0)")
        a("s_barrier")
        a(f"s_cmp_lg_u32 {sr(s_jobs)}, 0"); a(f"s_cbranch_scc1 {name}_ng{par}")
        a("s_waitcnt vmcnt(0)")
        a(f"v_cmp_eq_u32 vcc, 0, {vr(vdum)}")
        a("s_cmp_eq_u32 vcc_lo, 0")
        a(f"s_cselect_b32 s{mg.S_PSIG}, 1, 0")
        a(f"s_cbranch_scc0 {name}_ng{par}")
        if not os.environ.get("NO_ASY"): mg.g3_touch0(a, vlane, vor, vdum, sZ, sPF, s_wave)
        a.label(f"{name}_ng{par}")
        CA, CB = vNM, vNM + 4
        R4 = range(4)
        for qb in R4: a(f"v_max_f32 {vr(vT+8+qb)}, {vr(vM+qb)}, {vr(vT+qb)}")
        for qb in R4: a(f"v_sub_f32 {vr(CA+qb)}, {vr(vM+qb)}, {vr(vT+8+qb)}")
        for qb in R4: a(f"v_sub_f32 {vr(CB+qb)}, {vr(vT+qb)}, {vr(vT+8+qb)}")
        for qb in R4: a(f"v_exp_f32 {vr(CA+qb)}, {vr(CA+qb)}")
        for qb in R4: a(f"v_exp_f32 {vr(CB+qb)}, {vr(CB+qb)}")
        for qb in R4: a(f"v_mul_f32 {vr(vT+8+qb)}, {vr(vD+qb)}, {vr(CA+qb)}")
        for qb in R4: a(f"v_fmac_f32 {vr(vT+8+qb)}, {vr(vT+4+qb)}, {vr(CB+qb)}")
        for qb in R4: a(f"v_rcp_f32 {vr(vT+8+qb)}, {vr(vT+8+qb)}")
        a("s_nop 0")
        for qb in R4: a(f"v_mul_f32 {vr(CA+qb)}, {vr(CA+qb)}, {vr(vT+8+qb)}")
        for qb in R4: a(f"v_mul_f32 {vr(CB+qb)}, {vr(CB+qb)}, {vr(vT+8+qb)}")
        a(f"s_cmp_eq_u32 {sr(s_par)}, 0"); a(f"s_cbranch_scc0 {name}_fin1_{par}")
        def fin(db0):
            cnt = 0
            for qb in range(4):
                a(f"s_mov_b32 s3, {qb*Z_KB*1024}")
                for uu in range(2):
                    b = vP + (cnt % 2) * 12; cnt += 1
                    for e in range(8): a(f"v_accvgpr_read_b32 {vr(b+4+e)}, {ar(O(db0 + 2*uu + e//4, qb) + e%4)}")
                    if os.environ.get("NO_PKF"):
                        for e in range(8): a(f"v_mul_f32 {vr(b+4+e)}, {vr(b+4+e)}, {vr(CA+qb)}")
                        for e in range(8): a(f"v_fmac_f32 {vr(b+4+e)}, {vr(R+4*((2 * uu + e // 4) * 4 + qb)+e%4)}, {vr(CB+qb)}")
                    hi = qb & 1; sel = f"op_sel:[0,{hi}] op_sel_hi:[1,{hi}]"; sel3 = f"op_sel:[0,{hi},0] op_sel_hi:[1,{hi},1]"
                    for e in ([] if os.environ.get("NO_PKF") else range(0, 8, 2)): a(f"v_pk_mul_f32 {vr(b+4+e,2)}, {vr(b+4+e,2)}, {vr(CA+(qb&~1),2)} {sel}")
                    for e in ([] if os.environ.get("NO_PKF") else range(0, 8, 2)):
                        k = (2 * uu + e // 4) * 4 + qb
                        a(f"v_pk_fma_f32 {vr(b+4+e,2)}, {vr(R+4*k+e%4,2)}, {vr(CB+(qb&~1),2)}, {vr(b+4+e,2)} {sel3}")
                    for p in range(4): a(f"v_cvt_pk_bf16_f32 {vr(b+p)}, {vr(b+4+2*p)}, {vr(b+5+2*p)}")
                    a(f"buffer_store_dwordx4 {vr(b,4)}, {vr(vq)}, {sr(sZ,4)}, s3 offen offset:{uu*1024}{ST}")
        fin(0); a(f"s_branch {name}_fin_{par}")
        a.label(f"{name}_fin1_{par}"); fin(4)
        a.label(f"{name}_fin_{par}")
        a(f"s_lshl_b32 s3, {sr(s_i)}, 1"); a(f"s_lshr_b32 s6, {sr(s_head)}, 4"); a("s_add_u32 s3, s3, s6"); a("s_lshl_b32 s3, s3, 6")
        a(f"s_and_b32 s6, {sr(s_head)}, 15"); a("s_lshl_b32 s6, s6, 2"); a("s_add_u32 s3, s3, s6"); a(f"s_add_u32 s3, s3, {mg.F_CTX}")
        a(f"s_cmp_eq_u32 {sr(s_wave)}, 0"); a(f"s_cselect_b32 {sr(s_sig)}, s3, {sr(s_sig)}")
        a(f"s_cmp_eq_u32 {sr(s_jobs)}, 0"); a(f"s_cbranch_scc1 {name}_done")
        a(f"s_bfe_u32 s3, {sr(s_jobs)}, 0x20004"); a(f"s_add_u32 {sr(s_head)}, {sr(s_p)}, s3")
        a(f"s_and_b32 {sr(s_i)}, {sr(s_jobs)}, 15"); a(f"s_lshr_b32 {sr(s_jobs)}, {sr(s_jobs)}, 7"); a(f"s_mov_b32 {sr(s_n)}, 0")
        a(set_iq())
        a(f"s_cmp_eq_u32 {sr(s_i)}, 0"); a(f"s_cbranch_scc1 {name}_z{par}")
        emit(weave(fixmax(1 - par, False, True, pk=False), zero_mfma()) + softmax_ops(1 - par, EARLY, True))
        a(f"s_branch {name}_it{1-par}")
        a.label(f"{name}_z{par}")
        a(zero_mfma()); a([f"v_mov_b32 {vr(vM+qb)}, {vr(vneg)}" for qb in range(4)])
        a(f"s_branch {name}_it{1-par}")
    a.label(f"{name}_done")
    a("s_waitcnt vmcnt(0)"); a("s_barrier")
    a(signal())
    def cold():
        for lab, par, has_next, blocks in rare:
            a.label(lab)
            a(f"s_call_b64 {sr(s_ret,2)}, {name}_fix{par}{int(has_next)}")
            emit(softmax_ops(par, blocks, True))
            a("s_nop 1"); a(f"s_branch {lab}_ret")
        for par in range(2):
            for hn in (False, True):
                a.label(f"{name}_fix{par}{int(hn)}")
                emit(fixmax(par, hn, False))
                a(f"s_setpc_b64 {sr(s_ret,2)}")
    return cold
```

```python
from asmb import *
from gemm_gen import GemmCfg
from gemm3 import GemmCore3
from k1v2_gen import Core4
from k1_gen import srd, f32, WS_Q, WS_K, WS_V, WS_Z, WS_G, WS_CNT, WS_PART, Z_KB, QSCALE
from k2_gen import RD, WAIT, resolve, flat, MF, BIAS, NEG
import codepf, math, os, struct, sys
import att2
KNAME = "gated_mix__compressed_kv_cla__geglu_ffn__prompt_kernel"

STAMPS = bool(os.environ.get("STAMPS"))
WS_FLAG = WS_CNT
F_QKV, F_GU, F_CTX, F_EX = 0, 2048, 4096, 8192
FLAG_BYTES = 16384
WS_STAMP = 96 << 20
SPIN_MAX = 100000
ST = os.environ.get("STM", " sc1")
S_WAVE = 101
S_PSIG = 100
ATT_JOBS = {"0": [[14, 0], [13, 1], [12, 2], [11, 3], [10, 4], [9, 5], [8, 6], [15, 7]],
            "1": [[14, 0], [13, 1], [12, 2], [11, 3], [10, 4], [8, 5], [7, 6], [15, 9]],
            "2": [[14, 0], [13, 1], [12, 2], [11, 3], [10, 4], [9, 5], [7, 6], [15, 8]],
            "4": [[8, 7], [13, 1], [12, 2], [11, 3], [10, 4], [9, 5], [14, 0], [15, 6]],
            "5": [[8, 7], [9, 6], [12, 2], [11, 3], [10, 4], [13, 1], [14, 0], [15, 5]],
            "3": [[14, 0], [13, 1], [12, 2], [11, 3], [9, 4], [8, 5], [7, 6], [15, 10]]}[os.environ.get("JT", "0")]

def stamp(a, idx):
    if not STAMPS: return
    a("s_memrealtime s[4:5]")
    a("s_memtime s[8:9]")
    a("s_load_dwordx2 s[6:7], s[0:1], 104")
    a("s_waitcnt lgkmcnt(0)")
    a("s_mov_b32 s5, s8")
    a(f"s_add_u32 s8, s6, {WS_STAMP}"); a("s_addc_u32 s9, s7, 0"); a("s_mov_b32 s10, 0x40000"); a("s_mov_b32 s11, 0x20000")
    a("s_lshl_b32 s6, s2, 8"); a(f"s_lshl_b32 s7, s{S_WAVE}, 6"); a("s_add_u32 s6, s6, s7"); a(f"s_add_u32 s6, s6, {idx*4}")
    a("v_mov_b32 v1, s6"); a("v_mov_b32 v2, s4")
    a("buffer_store_dword v2, v1, s[8:11], 0 offen")
    a("v_mov_b32 v2, s5")
    a("buffer_store_dword v2, v1, s[8:11], 0 offen offset:32")
    a("s_waitcnt vmcnt(0)")

def lane_id(a, v):
    a(f"v_mbcnt_lo_u32_b32 {vr(v)}, -1, 0")
    a(f"v_mbcnt_hi_u32_b32 {vr(v)}, -1, {vr(v)}")

def wait_flags(a, lab, sF, s_off, nlanes, x2, vlane, t0, sleep=8):
    a(f"v_lshlrev_b32 {vr(t0+2)}, {3 if x2 else 2}, {vr(vlane)}")
    a("s_mov_b32 s3, 0")
    a.label(lab)
    if x2: a(f"buffer_load_dwordx2 {vr(t0,2)}, {vr(t0+2)}, {sr(sF,4)}, {s_off} offen sc1")
    else: a(f"buffer_load_dword {vr(t0)}, {vr(t0+2)}, {sr(sF,4)}, {s_off} offen sc1")
    a("s_waitcnt vmcnt(0)")
    if x2: a(f"v_min_u32 {vr(t0)}, {vr(t0)}, {vr(t0+1)}")
    a(f"v_cmp_eq_u32 vcc, 0, {vr(t0)}")
    if nlanes != 64:
        msk = nlanes if nlanes > 64 else (1 << nlanes) - 1
        a(f"s_mov_b32 s4, {msk & 0xffffffff}"); a(f"s_mov_b32 s5, {msk >> 32}")
        a("s_and_b64 vcc, vcc, s[4:5]")
    else:
        a("s_or_b64 vcc, vcc, vcc")
    a(f"s_cbranch_scc0 {lab}_ok")
    a(f"s_sleep {sleep}")
    a("s_add_u32 s3, s3, 1"); a(f"s_cmp_lt_u32 s3, {SPIN_MAX}")
    a(f"s_cbranch_scc1 {lab}")
    a.label(f"{lab}_ok")

def sig_regs(a, vsig, vone, vlane, tmp):
    a(f"v_bfrev_b32 {vr(tmp)}, 1")
    a(f"v_cmp_eq_u32 vcc, 0, {vr(vlane)}")
    a(f"v_mov_b32 {vr(vone)}, 1")
    a("s_nop 0")
    a(f"v_cndmask_b32 {vr(vsig)}, {vr(tmp)}, {vr(vlane)}, vcc")

def gen_k0(a, name="k0_kernel"):
    kernel_header(a, name)
    a("s_cmp_ge_u32 s2, 256"); a(f"s_cbranch_scc1 {name}_end")
    a("s_load_dwordx4 s[8:11], s[0:1], 0")
    a("s_load_dwordx2 s[28:29], s[0:1], 80")
    a("s_load_dwordx2 s[34:35], s[0:1], 104")
    a("v_and_b32 v1, 63, v0")
    a("v_lshrrev_b32 v2, 6, v0"); a("s_nop 0"); a("v_readfirstlane_b32 s36, v2"); a("s_nop 3")
    a("s_lshl_b32 s37, s2, 2"); a("s_add_u32 s37, s37, s36")
    a("s_waitcnt lgkmcnt(0)")
    srd(a, 12, 8, 9, 2048 * 2048); srd(a, 16, 28, 29, 2048); srd(a, 20, 34, 35, 8192, WS_G); srd(a, 24, 34, 35, FLAG_BYTES, WS_FLAG)
    srd(a, 40, 10, 11, 2048 * 1024)
    a("v_lshlrev_b32 v2, 5, v1")
    a("s_lshl_b32 s3, s37, 12"); a("v_add_u32 v3, s3, v2")
    a("buffer_load_dwordx4 v[8:11], v2, s[16:19], 0 offen"); a("buffer_load_dwordx4 v[12:15], v2, s[16:19], 0 offen offset:16")
    for t in range(2):
        a(f"buffer_load_dwordx4 v[{32+8*t}:{35+8*t}], v3, s[12:15], 0 offen offset:{t*2048}")
        a(f"buffer_load_dwordx4 v[{36+8*t}:{39+8*t}], v3, s[12:15], 0 offen offset:{t*2048+16}")
    a("v_lshlrev_b32 v4, 2, v1"); a("s_lshl_b32 s3, s37, 5"); a("v_add_u32 v4, s3, v4"); a("v_mov_b32 v5, 0")
    a("v_cmp_gt_u32 vcc, 8, v1"); a("s_and_saveexec_b64 s[38:39], vcc")
    a("buffer_store_dword v5, v4, s[24:27], 0 offen")
    a("s_mov_b64 exec, s[38:39]")
    a("v_lshlrev_b32 v4, 7, v1"); a("s_lshl_b32 s3, s37, 11"); a("v_add_u32 v4, s3, v4")
    a("v_cmp_gt_u32 vcc, 16, v1"); a("s_and_saveexec_b64 s[38:39], vcc")
    a("buffer_load_dword v50, v4, s[40:43], 0 offen")
    a("s_mov_b64 exec, s[38:39]")
    a("s_lshr_b32 s31, s2, 3"); a("s_lshl_b32 s31, s31, 2"); a("s_add_u32 s31, s31, s36")
    codepf.code_touch(a, "mega_kernel", "mega_code_end", 1, 4, 51, "s31", "k0a")
    a("s_waitcnt vmcnt(3)")
    for r in range(8):
        a(f"v_lshlrev_b32 v{16+2*r}, 16, v{8+r}"); a(f"v_and_b32 v{17+2*r}, 0xffff0000, v{8+r}")
    a("v_mov_b32 v6, 0")
    for t in range(2):
        for r in range(8):
            x = 32 + 8 * t + r
            a(f"v_lshlrev_b32 v5, 16, v{x}")
            a(f"v_mul_f32 v4, v5, v{16+2*r}" if r == 0 else f"v_fmac_f32 v4, v5, v{16+2*r}")
            a(f"v_and_b32 v5, 0xffff0000, v{x}"); a(f"v_fmac_f32 v4, v5, v{17+2*r}")
        for m in ("quad_perm:[1,0,3,2]", "quad_perm:[2,3,0,1]", "row_half_mirror", "row_mirror"):
            a("s_nop 1"); a(f"v_add_f32_dpp v4, v4, v4 {m} row_mask:0xf bank_mask:0xf")
        a("s_nop 1")
        for q in range(4): a(f"v_readlane_b32 s{4+q}, v4, {16*q}")
        a("s_nop 1")
        a("v_mov_b32 v5, s4"); a("v_add_f32 v5, s5, v5"); a("v_add_f32 v5, s6, v5"); a("v_add_f32 v5, s7, v5")
        a(f"v_cmp_eq_u32 vcc, {t}, v1"); a("s_nop 1"); a("v_cndmask_b32 v6, v6, v5, vcc")
    a(f"v_mul_f32 v6, {f32(-math.log2(math.e))}, v6")
    a("v_exp_f32 v6, v6"); a("s_nop 0"); a("v_add_f32 v6, 1.0, v6"); a("v_rcp_f32 v6, v6")
    a("s_lshl_b32 s3, s37, 1"); a("v_add_u32 v7, s3, v1"); a("v_lshlrev_b32 v7, 2, v7")
    a("v_cmp_gt_u32 vcc, 2, v1"); a("s_and_saveexec_b64 s[38:39], vcc")
    a("buffer_store_dword v6, v7, s[20:23], 0 offen")
    a.label(f"{name}_end"); a("s_endpgm")
    return dict(name=name, nv=56, acc_off=56, grid=256, block=256, lds=0)

def phase_g1(a, name="g1"):
    cfgN = GemmCfg(256, 256, 2, 2, native_a=False, swap=False, stages=2, ms=16)
    cfgS = GemmCfg(256, 256, 2, 2, native_a=False, swap=True, stages=2, ms=16)
    V = RegAlloc(0, 256, "v"); S = RegAlloc(36, 100, "s")
    cfgN.acc7_base = 208
    vT = V.alloc("T", 16, 4)
    core = Core4(a, cfgN, V, S)
    if os.environ.get("WNT"):
        _db = core.dmaB
        core.dmaB = lambda st: [[x.replace(" lds", " nt lds") for x in g_] for g_ in _db(st)]
    core.use_step4 = True; core.GX = int(os.environ.get("G1X", "5")); core.GW = int(os.environ.get("G1W", "4"))
    vlane = V.alloc("lane"); vout = V.alloc("vout"); vc1 = V.alloc("c1", 2, 2)
    vpf = V.alloc("vpf"); vdum = V.alloc("vdum")
    A = RegAlloc(core.NA, 256, "a")
    vt = [vT + 4, vT + 5, vT + 6, vT + 7]
    s_wave = S_WAVE; s_wt = S.alloc("wt"); s_wn = S.alloc("wn")
    s_cur = S.alloc("cur"); s_nxt = S.alloc("nxt"); s_nx2 = S.alloc("nx2"); s_sig = S.alloc("sig")
    s_ab, s_lda, s_bb, s_ldw = 21, 26, 27, 30
    sO = S.alloc("srdO", 4, 4); sPF = S.alloc("srdPF", 4, 4); sF = S.alloc("srdF", 4, 4)
    s_pf2 = 20; s_c = 18
    sD = S.alloc("srdD", 4, 4); s_ok = S.alloc("initok"); s_dw = S.alloc("dbgw"); s_dl = S.alloc("dbgl")
    aI = A.alloc("init")
    G1D = bool(os.environ.get("G1D"))
    aL = A.alloc("ls", 10) if G1D else None
    def lstamp():
        if not G1D: return
        a("s_memtime s[4:5]"); a("s_waitcnt lgkmcnt(0)")
        for k in range(9): a(f"v_accvgpr_mov_b32 {ar(aL+k)}, {ar(aL+k+1)}")
        a(f"v_accvgpr_write_b32 {ar(aL+9)}, s4")
    a("s_load_dwordx16 s[8:23], s[0:1], 0")
    a("s_load_dwordx8 s[24:31], s[0:1], 64")
    a("s_load_dwordx4 s[32:35], s[0:1], 96")
    a(f"v_and_b32 {vr(vlane)}, 63, v0")
    a(f"v_lshrrev_b32 {vr(vt[0])}, 6, v0")
    a("s_nop 0")
    a(f"v_readfirstlane_b32 {sr(s_wave)}, {vr(vt[0])}")
    a("s_nop 3")
    a(f"s_lshr_b32 {sr(s_wt)}, {sr(s_wave)}, 1")
    a(f"s_and_b32 {sr(s_wn)}, {sr(s_wave)}, 1")
    a("s_and_b32 s3, s2, 7"); a("s_lshr_b32 s4, s2, 3")
    a("s_lshr_b32 s5, s4, 3"); a("s_and_b32 s6, s4, 7")
    a("s_lshl_b32 s7, s3, 1"); a(f"s_and_b32 {sr(s_cur)}, s5, 1"); a(f"s_add_u32 s7, s7, {sr(s_cur)}")
    a("s_lshl_b32 s7, s7, 3"); a("s_add_u32 s7, s7, s6"); a("s_add_u32 s7, s7, 0x400")
    a(f"s_mul_i32 {sr(s_nx2)}, s3, 28"); a(f"s_add_u32 {sr(s_nx2)}, {sr(s_nx2)}, s4"); a(f"s_add_u32 {sr(s_nx2)}, {sr(s_nx2)}, 0x700")
    a("s_cmp_lt_u32 s4, 28"); a(f"s_cselect_b32 {sr(s_nx2)}, {sr(s_nx2)}, 0")
    a("s_add_u32 s3, s7, 0x100"); a("s_add_u32 s4, s7, 0x200")
    a("s_cmp_lt_u32 s5, 2")
    a(f"s_cselect_b32 {sr(s_cur)}, s7, s3")
    a(f"s_cselect_b32 {sr(s_nxt)}, {sr(s_nx2)}, s4")
    a(f"s_cselect_b32 {sr(s_nx2)}, 0, {sr(s_nx2)}")
    a(f"s_brev_b32 {sr(s_sig)}, 1")
    c1 = -2.0 * math.sqrt(2.0 / math.pi) * math.log2(math.e); c2 = c1 * 0.044715
    uid = [0]
    def fields(code):
        a(f"s_bfe_u32 s5, {sr(code)}, 0x20008"); a(f"s_bfe_u32 s6, {sr(code)}, 0x50003")
    def decodeB(sB):
        uid[0] += 1; L = f"{name}_db{uid[0]}"
        a("s_cmp_eq_u32 s5, 3"); a(f"s_cbranch_scc1 {L}_gu")
        a(f"s_mov_b32 {sr(sB)}, s12"); a(f"s_mov_b32 {sr(sB+1)}, s13"); a(f"s_mov_b32 {sr(sB+2)}, {1024*8192}")
        a("s_cmp_eq_u32 s5, 1")
        a(f"s_cselect_b32 {sr(sB)}, s14, {sr(sB)}"); a(f"s_cselect_b32 {sr(sB+1)}, s15, {sr(sB+1)}")
        a(f"s_cselect_b32 {sr(sB+2)}, {512*8192}, {sr(sB+2)}")
        a("s_cmp_eq_u32 s5, 2")
        a(f"s_cselect_b32 {sr(sB)}, s16, {sr(sB)}"); a(f"s_cselect_b32 {sr(sB+1)}, s17, {sr(sB+1)}")
        a(f"s_cselect_b32 {sr(sB+2)}, {512*8192}, {sr(sB+2)}")
        a(f"s_mov_b32 {sr(s_ldw)}, 8192")
        a(f"s_lshl_b32 {sr(s_bb)}, s6, 9"); a(f"s_lshl_b32 s3, {sr(s_wave)}, 7"); a(f"s_add_u32 {sr(s_bb)}, {sr(s_bb)}, s3")
        a(f"s_branch {L}_src")
        a.label(f"{L}_gu")
        a(f"s_cmp_eq_u32 {sr(s_wn)}, 0")
        a(f"s_cselect_b32 {sr(sB)}, s22, s24"); a(f"s_cselect_b32 {sr(sB+1)}, s23, s25")
        a(f"s_mov_b32 {sr(sB+2)}, {1024*7168}")
        a(f"s_mov_b32 {sr(s_ldw)}, 7168")
        a(f"s_lshl_b32 {sr(s_bb)}, s6, 8"); a(f"s_lshl_b32 s3, {sr(s_wt)}, 7"); a(f"s_add_u32 {sr(s_bb)}, {sr(s_bb)}, s3")
        a.label(f"{L}_src")
        a(f"s_mov_b32 {sr(sB+3)}, 0x20000")
    def set_pf(code):
        fields(code); decodeB(sPF)
        a(f"s_cmp_eq_u32 {sr(code)}, 0"); a(f"s_cselect_b32 {sr(sPF+2)}, 0, {sr(sPF+2)}")
        a(f"v_lshrrev_b32 {vr(vpf)}, 3, {vr(vlane)}"); a(f"v_lshlrev_b32 {vr(vpf)}, 6, {vr(vpf)}")
        a(f"v_and_b32 {vr(vt[3])}, 7, {vr(vlane)}")
        a(f"s_and_b32 s3, {sr(code)}, 7"); a("s_lshl_b32 s3, s3, 3")
        a(f"v_add3_u32 {vr(vpf)}, {vr(vpf)}, {vr(vt[3])}, s3")
        a(f"v_mul_lo_u32 {vr(vpf)}, {vr(vpf)}, {sr(s_ldw)}")
        a(f"v_add_u32 {vr(vpf)}, {sr(s_bb)}, {vr(vpf)}")
        a(f"v_bfrev_b32 {vr(vt[3])}, 1")
        a(f"v_cmp_gt_u32 vcc, 16, {vr(vlane)}")
        a(f"s_lshl_b32 {sr(s_pf2)}, {sr(s_ldw)}, 7"); a("s_nop 0")
        a(f"v_cndmask_b32 {vr(vpf)}, {vr(vt[3])}, {vr(vpf)}, vcc")
    def touchW():
        return [f"buffer_load_dword {vr(vdum)}, {vr(vpf)}, {sr(sPF,4)}, 0 offen{os.environ.get('TNT', '')}", f"v_add_u32 {vr(vpf)}, {sr(s_pf2)}, {vr(vpf)}"]
    def initload():
        return [f"buffer_load_dword {ar(aI)}, {vr(vout)}, {sr(sD,4)}, {sr(s_dl)} offen sc1"]
    def set_dma_params(code, always=False):
        uid[0] += 1; L = f"{name}_sp{uid[0]}"
        if not always:
            a(f"s_cmp_eq_u32 {sr(code)}, 0"); a(f"s_cbranch_scc0 {L}_valid")
            a(f"s_mov_b32 {sr(core.sA+2)}, 0"); a(f"s_mov_b32 {sr(core.sB+2)}, 0")
            a(f"s_branch {L}_done")
            a.label(f"{L}_valid")
        fields(code)
        a("s_sub_u32 s7, s5, 1"); a("s_cmp_lt_u32 s7, 2")
        a(f"s_cselect_b32 {sr(core.sA)}, s10, s8"); a(f"s_cselect_b32 {sr(core.sA+1)}, s11, s9")
        a(f"s_mov_b32 s7, {2048*512*2}"); a(f"s_cselect_b32 {sr(core.sA+2)}, s7, {2048*1024*2}")
        a(f"s_mov_b32 {sr(core.sA+3)}, 0x20000")
        a("s_mov_b32 s7, 1024"); a(f"s_cselect_b32 {sr(s_lda)}, s7, 2048")
        decodeB(core.sB)
        a(f"s_and_b32 s3, {sr(code)}, 7"); a("s_lshl_b32 s3, s3, 8")
        a(f"s_mul_i32 {sr(s_ab)}, s3, {sr(s_lda)}")
        core.setup_src(vlane, s_wave, s_ab, s_lda, s_bb, s_ldw, vt)
        a.label(f"{L}_done")
    def signal():
        return ["s_mov_b64 exec, 1",
                f"buffer_store_dword {vr(vc1)}, {vr(vlane)}, {sr(sF,4)}, {sr(s_sig)} offen sc1",
                f"buffer_store_byte {vr(vc1)}, {vr(vlane)}, {sr(sD,4)}, {sr(s_dw)} offen sc1",
                "s_mov_b64 exec, -1", f"s_brev_b32 {sr(s_dw)}, 1"]
    a("s_waitcnt lgkmcnt(0)")
    lstamp()
    EARLYT = os.environ.get("EARLYT", "0") == "1"
    def xtouch():
        a("s_and_b32 s3, s2, 7"); a("s_lshl_b32 s3, s3, 2"); a("s_lshr_b32 s4, s2, 6"); a("s_add_u32 s3, s3, s4")
        a("s_lshl_b32 s3, s3, 2"); a(f"s_add_u32 s3, s3, {sr(s_wave)}"); a("s_lshl_b32 s3, s3, 1")
        a("s_bfe_u32 s4, s2, 0x30003"); a("s_lshl_b32 s4, s4, 8"); a("s_add_u32 s3, s3, s4")
        a(f"v_lshlrev_b32 {vr(vt[0])}, 7, {vr(vlane)}")
        a("s_lshl_b32 s4, s3, 11")
        a(f"s_add_u32 {sr(sO)}, s8, s4"); a(f"s_addc_u32 {sr(sO+1)}, s9, 0"); a(f"s_mov_b32 {sr(sO+2)}, 4096"); a(f"s_mov_b32 {sr(sO+3)}, 0x20000")
        a(f"buffer_load_dword {vr(vdum)}, {vr(vt[0])}, {sr(sO,4)}, 0 offen")
        a("s_lshl_b32 s4, s3, 10")
        a(f"s_add_u32 {sr(sO)}, s10, s4"); a(f"s_addc_u32 {sr(sO+1)}, s11, 0"); a(f"s_mov_b32 {sr(sO+2)}, 2048")
        a(f"buffer_load_dword {vr(vdum)}, {vr(vt[0])}, {sr(sO,4)}, 0 offen")
    if EARLYT:
        xtouch()
        set_pf(s_cur)
        a(touchW())
    set_dma_params(s_cur, True)
    core.setup_lane_consts(vlane, s_wave, s_wt, s_wn, vt)
    core.prologue_dma()
    a(f"v_mov_b32 {vr(vc1)}, {f32(c1)}"); a(f"v_mov_b32 {vr(vc1+1)}, {f32(c1)}")
    srd(a, sF, 34, 35, FLAG_BYTES, WS_FLAG)
    if not EARLYT:
        set_pf(s_cur)
        a(f"v_add_u32 {vr(vpf)}, {sr(s_pf2)}, {vr(vpf)}")
    a(touchW())
    srd(a, sD, 32, 33, 32)
    a(f"s_mov_b32 {sr(s_ok)}, 0"); a(f"s_brev_b32 {sr(s_dl)}, 1")
    a(f"s_brev_b32 {sr(s_dw)}, 1"); a(f"s_lshl_b32 s3, {sr(s_wave)}, 8"); a("s_add_u32 s3, s3, s2"); a("s_cmp_lt_u32 s3, 32"); a(f"s_cselect_b32 {sr(s_dw)}, s2, {sr(s_dw)}")
    assert struct.pack("<f", c1)[0] != 0
    a("s_lshl_b32 s3, s2, 2"); a(f"s_add_u32 s3, s3, {sr(s_wave)}"); a("s_lshl_b32 s3, s3, 7")
    a(f"v_lshlrev_b32 {vr(vout)}, 2, {vr(vlane)}"); a(f"v_mov_b32 {vr(vt[1])}, 0")
    a("s_mov_b32 exec_hi, 0")
    a(f"buffer_store_dword {vr(vt[1])}, {vr(vout)}, {sr(sF,4)}, s3 offen sc1")
    a("s_mov_b64 exec, -1")
    if not EARLYT: xtouch()
    a(touchW())
    a("s_bfe_u32 s31, s2, 0x20003"); a("s_lshl_b32 s31, s31, 2"); a(f"s_add_u32 s31, s31, {sr(s_wave)}")
    codepf.BACK["mg"] = True
    codepf.code_touch(a, KNAME, "mega_code_end", vlane, vt[0], vdum, "s31", "mg")
    a(f"s_waitcnt vmcnt({cfgN.PB + (4 if EARLYT else 6)})")
    a("s_barrier")
    a(core.xreads(0)); a(core.wreads(0, 0)); a(core.wreads(0, 1))
    a("s_waitcnt lgkmcnt(0)")
    a("s_barrier")
    a.label(f"{name}_tile")
    lstamp()
    a(f"v_lshlrev_b32 {vr(vout)}, 2, {vr(vlane)}")
    a(f"s_bfe_u32 s5, {sr(s_cur)}, 0x20008")
    a("s_sub_u32 s7, s5, 1"); a("s_cmp_lt_u32 s7, 2")
    a(f"s_cselect_b32 {sr(core.sLoop)}, 3, 7")
    a("s_cmp_eq_u32 s5, 2")
    a(f"s_cbranch_scc1 {name}_S_first")
    def body(var, cfg):
        core.c = cfg
        def trip(first):
            core.step3(0, True, True, True, True, 2, extra=touchW() + initload(), post=signal() if first else None)
            core.step3(1, True, True, True, True, 0)
        a.label(f"{name}_{var}_first")
        core.zero_first = True; core._hist = [(4, 0), (4, 0)]
        trip(True)
        core.zero_first = False
        a(f"s_branch {name}_{var}_ctl")
        a.label(f"{name}_{var}_loop")
        trip(False)
        a(f"s_sub_u32 {sr(core.sLoop)}, {sr(core.sLoop)}, 1")
        a.label(f"{name}_{var}_ctl")
        a(f"s_cmp_gt_u32 {sr(core.sLoop)}, 3"); a(f"s_cbranch_scc1 {name}_{var}_loop")
        a(f"s_cmp_eq_u32 {sr(core.sLoop)}, 2"); a(f"s_cbranch_scc1 {name}_{var}_loop")
        a(f"s_cmp_eq_u32 {sr(core.sLoop)}, 0"); a(f"s_cbranch_scc1 {name}_{var}_epi")
        a(f"s_cmp_eq_u32 {sr(core.sLoop)}, 1"); a(f"s_cbranch_scc1 {name}_{var}_sw")
        set_pf(s_nxt)
        a(f"s_branch {name}_{var}_loop")
        a.label(f"{name}_{var}_sw")
        a("s_and_b32 s6, s2, 7"); a("s_lshl_b32 s6, s6, 8")
        a(f"s_cmp_lg_u32 {sr(s_ok)}, 0")
        a(f"s_cselect_b32 {sr(s_dl)}, s6, 0")
        set_dma_params(s_nxt)
        a(f"s_branch {name}_{var}_loop")
        a.label(f"{name}_{var}_epi")
        lstamp()
        core.c = cfgN
    def src_regs(blocks, tmp):
        regs = []
        for n_, (i, j) in enumerate(blocks):
            for r in range(4):
                if core.in_v(i): regs.append(core.accidx(i, j, r))
                else:
                    a(f"v_accvgpr_read_b32 {vr(tmp + n_*4 + r)}, {ar(core.accidx(i, j, r))}")
                    regs.append(tmp + n_ * 4 + r)
        return regs
    def head_base():
        fields(s_cur)
        a("s_lshl_b32 s3, s6, 1"); a(f"s_add_u32 s3, s3, {sr(s_wn)}"); a("s_lshl_b32 s3, s3, 19")
        a(f"s_and_b32 s7, {sr(s_cur)}, 7"); a("s_lshl_b32 s4, s7, 16"); a("s_add_u32 s3, s3, s4")
        a(f"s_lshl_b32 s4, {sr(s_wt)}, 15"); a("s_add_u32 s3, s3, s4")
        a(f"v_lshlrev_b32 {vr(vout)}, 4, {vr(vlane)}"); a(f"v_add_u32 {vr(vout)}, s3, {vr(vout)}")
        a("s_lshl_b32 s4, s5, 24")
        a(f"s_add_u32 {sr(sO)}, s34, s4"); a(f"s_addc_u32 {sr(sO+1)}, s35, 0")
        a(f"s_mov_b32 {sr(sO+2)}, {0 if os.environ.get('NOQKVST') else 16<<20}"); a(f"s_mov_b32 {sr(sO+3)}, 0x20000")
        a("s_lshl_b32 s3, s5, 3"); a("s_add_u32 s3, s3, s7"); a("s_lshl_b32 s3, s3, 2")
        a("s_lshl_b32 s4, s6, 7"); a("s_add_u32 s3, s3, s4")
        a(f"s_cmp_eq_u32 {sr(s_wave)}, 0"); a(f"s_cselect_b32 {sr(s_sig)}, s3, {sr(s_sig)}")
    body("N", cfgN)
    a(f"s_bfe_u32 s5, {sr(s_cur)}, 0x20008")
    a("s_cmp_eq_u32 s5, 3"); a(f"s_cbranch_scc1 {name}_epi_gu")
    head_base()
    a("s_cmp_eq_u32 s5, 1"); a(f"s_cbranch_scc1 {name}_epi_k")
    def epi_qk(scale):
        cnt = 0
        if scale: a(f"s_mov_b32 {sr(s_c)}, {f32(QSCALE)}"); a(f"s_mov_b32 {sr(s_c+1)}, {f32(QSCALE)}")
        for u in range(4):
            for j in range(8):
                b = vT + (cnt % 2) * 4; cnt += 1
                R = src_regs([(2 * u, j), (2 * u + 1, j)], vT + 8)
                if scale:
                    for p in range(4): a(f"v_pk_mul_f32 {vr(R[2*p],2)}, {vr(R[2*p],2)}, {sr(s_c,2)}")
                for p in range(4): a(f"v_cvt_pk_bf16_f32 {vr(b+p)}, {vr(R[2*p])}, {vr(R[2*p+1])}")
                a(f"s_mov_b32 s3, {j*4096}")
                a(f"buffer_store_dwordx4 {vr(b,4)}, {vr(vout)}, {sr(sO,4)}, s3 offen offset:{u*1024}{ST}")
    epi_qk(True); a(f"s_branch {name}_next")
    a.label(f"{name}_epi_k"); epi_qk(False); a(f"s_branch {name}_next")
    a.label(f"{name}_epi_gu")
    a("s_waitcnt vmcnt(0) lgkmcnt(0)")
    a("s_barrier")
    a(f"v_accvgpr_read_b32 {vr(vT)}, {ar(aI)}")
    a(f"v_cmp_eq_u32 vcc, 0, {vr(vT)}")
    a("s_or_b32 vcc_lo, vcc_lo, vcc_hi"); a("s_and_b32 vcc_lo, vcc_lo, 0xffffff")
    a(f"s_cbranch_scc0 {name}_wq2_ok")
    wait_flags(a, f"{name}_wq2", sF, sr(s_dl), 0x00ffffff00ffffff, False, vlane, vT)
    att2.att_pre(a, sys.modules[__name__], vlane, vT, vT + 1, core.sA, core.sB, sPF, 34)
    fields(s_cur)
    a(f"s_and_b32 s7, {sr(s_cur)}, 7")
    a("s_lshl_b32 s3, s7, 4"); a(f"s_lshl_b32 s4, {sr(s_wt)}, 3"); a("s_add_u32 s3, s3, s4")
    a(f"s_mul_i32 s3, s3, {Z_KB*1024}")
    a("s_lshl_b32 s4, s6, 12"); a("s_add_u32 s3, s3, s4")
    a(f"s_lshl_b32 s4, {sr(s_wn)}, 11"); a("s_add_u32 s3, s3, s4")
    a(f"v_lshlrev_b32 {vr(vout)}, 4, {vr(vlane)}"); a(f"v_add_u32 {vr(vout)}, s3, {vr(vout)}")
    srd(a, sO, 34, 35, 128 * Z_KB * 1024, WS_Z)
    a("s_lshl_b32 s3, s6, 2"); a("s_lshl_b32 s4, s7, 7"); a("s_add_u32 s3, s3, s4"); a(f"s_add_u32 s3, s3, {F_GU}")
    a(f"s_cmp_eq_u32 {sr(s_wave)}, 0"); a(f"s_cselect_b32 {sr(s_sig)}, s3, {sr(s_sig)}")
    a(f"s_mov_b32 {sr(s_c)}, {f32(c2)}"); a(f"s_mov_b32 {sr(s_c+1)}, {f32(c2)}")
    cnt = 0
    for u in range(2):
        for j in range(8):
            b = vT + (cnt % 2) * 4; cnt += 1
            X = src_regs([(2 * u, j), (2 * u + 1, j)], None)
            E = vT + 8
            for p in range(4): a(f"v_pk_mul_f32 {vr(E+2*p,2)}, {vr(X[2*p],2)}, {vr(X[2*p],2)}")
            for p in range(4): a(f"v_pk_fma_f32 {vr(E+2*p,2)}, {vr(E+2*p,2)}, {sr(s_c,2)}, {vr(vc1,2)}")
            for p in range(4): a(f"v_pk_mul_f32 {vr(E+2*p,2)}, {vr(E+2*p,2)}, {vr(X[2*p],2)}")
            for e in range(8): a(f"v_exp_f32 {vr(E+e)}, {vr(E+e)}")
            for n_, ib in enumerate((4 + 2 * u, 5 + 2 * u)):
                if core.in_v(ib):
                    for p in range(2): a(f"v_pk_mul_f32 {vr(X[n_*4+2*p],2)}, {vr(X[n_*4+2*p],2)}, {vr(core.accidx(ib,j,2*p),2)}")
                else:
                    tmp = core.accidx(4 + 2 * u, j, 0)
                    for r in range(4): a(f"v_accvgpr_read_b32 {vr(tmp+r)}, {ar(core.accidx(ib,j,r))}")
                    for p in range(2): a(f"v_pk_mul_f32 {vr(X[n_*4+2*p],2)}, {vr(X[n_*4+2*p],2)}, {vr(tmp+2*p,2)}")
            for p in range(4): a(f"v_pk_add_f32 {vr(E+2*p,2)}, {vr(E+2*p,2)}, 1.0 op_sel_hi:[1,0]")
            for e in range(8): a(f"v_rcp_f32 {vr(E+e)}, {vr(E+e)}")
            a(f"s_mov_b32 s3, {j*Z_KB*1024}")
            for p in range(4): a(f"v_pk_mul_f32 {vr(X[2*p],2)}, {vr(X[2*p],2)}, {vr(E+2*p,2)}")
            for p in range(4): a(f"v_cvt_pk_bf16_f32 {vr(b+p)}, {vr(X[2*p])}, {vr(X[2*p+1])}")
            a(f"buffer_store_dwordx4 {vr(b,4)}, {vr(vout)}, {sr(sO,4)}, s3 offen offset:{u*1024}{ST}")
    a(f"s_mov_b32 s{S_PSIG}, {sr(s_sig)}")
    a(f"s_branch {name}_exit")
    body("S", cfgS)
    head_base()
    cnt = 0
    for i in range(8):
        for uu in range(4):
            b = vT + (cnt % 2) * 4; cnt += 1
            R = src_regs([(i, 2 * uu), (i, 2 * uu + 1)], vT + 8)
            for p in range(4): a(f"v_cvt_pk_bf16_f32 {vr(b+p)}, {vr(R[2*p])}, {vr(R[2*p+1])}")
            a(f"s_mov_b32 s3, {uu*8192 + (i//4)*4096}")
            a(f"buffer_store_dwordx4 {vr(b,4)}, {vr(vout)}, {sr(sO,4)}, s3 offen offset:{(i%4)*1024}{ST}")
    a.label(f"{name}_next")
    if os.environ.get("DELAY"): a(f"s_sleep {os.environ['DELAY']}")
    a(f"s_cmp_lg_u32 {sr(s_ok)}, 0"); a(f"s_cbranch_scc1 {name}_iok")
    a(f"v_accvgpr_read_b32 {vr(vT+8)}, {ar(aI)}")
    a("s_mov_b32 s3, 0")
    a.label(f"{name}_ichk")
    a(f"v_subrev_u32 {vr(vT+9)}, 0x01010101, {vr(vT+8)}")
    a(f"v_not_b32 {vr(vT+8)}, {vr(vT+8)}")
    a(f"v_and_b32 {vr(vT+8)}, {vr(vT+8)}, {vr(vT+9)}")
    a(f"v_and_b32 {vr(vT+8)}, 0x80808080, {vr(vT+8)}")
    a(f"v_cmp_ne_u32 vcc, 0, {vr(vT+8)}")
    a("s_and_b32 vcc_lo, vcc_lo, 0xff")
    a(f"s_cbranch_scc0 {name}_iset")
    a("s_sleep 4")
    a(f"v_lshlrev_b32 {vr(vT+9)}, 2, {vr(vlane)}")
    a(f"buffer_load_dword {vr(vT+8)}, {vr(vT+9)}, {sr(sD,4)}, 0 offen sc1")
    a("s_waitcnt vmcnt(0)")
    a("s_add_u32 s3, s3, 1"); a(f"s_cmp_lt_u32 s3, {SPIN_MAX}"); a(f"s_cbranch_scc1 {name}_ichk")
    a.label(f"{name}_iset")
    a(f"s_mov_b32 {sr(s_ok)}, 1")
    a(f"s_mov_b32 {sr(sD)}, {sr(sF)}"); a(f"s_mov_b32 {sr(sD+1)}, {sr(sF+1)}"); a(f"s_mov_b32 {sr(sD+2)}, {sr(sF+2)}")
    a.label(f"{name}_iok")
    a(f"s_brev_b32 {sr(s_dl)}, 1")
    a(f"s_mov_b32 {sr(s_cur)}, {sr(s_nxt)}"); a(f"s_mov_b32 {sr(s_nxt)}, {sr(s_nx2)}"); a(f"s_mov_b32 {sr(s_nx2)}, 0")
    a(f"s_cmp_lg_u32 {sr(s_cur)}, 0"); a(f"s_cbranch_scc1 {name}_tile")
    lstamp()
    a("s_waitcnt vmcnt(0) lgkmcnt(0)")
    a("s_barrier")
    a(signal())
    lstamp()
    if G1D:
        a(f"s_add_u32 {sr(sO)}, s34, {WS_STAMP + (1<<20)}"); a(f"s_addc_u32 {sr(sO+1)}, s35, 0"); a(f"s_mov_b32 {sr(sO+2)}, 0x40000"); a(f"s_mov_b32 {sr(sO+3)}, 0x20000")
        a("s_lshl_b32 s3, s2, 8"); a(f"s_lshl_b32 s4, {sr(s_wave)}, 6"); a("s_add_u32 s3, s3, s4"); a("v_mov_b32 v1, s3")
        for k in range(10):
            a(f"buffer_store_dword {ar(aL+k)}, v1, {sr(sO,4)}, 0 offen offset:{4*k}")
    a("s_lshr_b32 s4, s2, 3")
    a("s_and_b32 s3, s2, 7"); a("s_sub_u32 s4, s4, 28")
    a("s_add_u32 s5, s4, 28"); a("s_lshl_b32 s5, s5, 2"); a("s_lshl_b32 s6, s3, 7"); a("s_add_u32 s5, s5, s6"); a(f"s_add_u32 s5, s5, {F_GU}")
    a(f"s_cmp_eq_u32 {sr(s_wave)}, 0"); a(f"s_cselect_b32 {sr(s_sig)}, s5, {sr(s_sig)}")
    a("s_lshl_b32 s3, s3, 2"); a("s_add_u32 s3, s3, s4"); a("s_lshl_b32 s3, s3, 6")
    a(f"s_lshl_b32 s4, {sr(s_wave)}, 4"); a("s_add_u32 s3, s3, s4")
    srd(a, core.sA, 8, 9, 2048 * 1024 * 2); srd(a, core.sB, 28, 29, 2048); srd(a, sO, 34, 35, 8192, WS_G)
    G = 8; XB = 32
    a(f"v_lshlrev_b32 v2, 5, {vr(vlane)}")
    a(f"buffer_load_dwordx4 v[{G}:{G+3}], v2, {sr(core.sB,4)}, 0 offen"); a(f"buffer_load_dwordx4 v[{G+4}:{G+7}], v2, {sr(core.sB,4)}, 0 offen offset:16")
    a("s_lshl_b32 s4, s3, 11"); a("v_add_u32 v3, s4, v2")
    for t in range(16):
        a(f"s_mov_b32 s5, {t*2048}")
        a(f"buffer_load_dwordx4 v[{XB+8*t}:{XB+8*t+3}], v3, {sr(core.sA,4)}, s5 offen")
        a(f"buffer_load_dwordx4 v[{XB+8*t+4}:{XB+8*t+7}], v3, {sr(core.sA,4)}, s5 offen offset:16")
    a("s_waitcnt vmcnt(32)")
    for r in range(8):
        a(f"v_lshlrev_b32 v{16+2*r}, 16, v{G+r}"); a(f"v_and_b32 v{17+2*r}, 0xffff0000, v{G+r}")
    a("v_mov_b32 v6, 0")
    for t in range(16):
        a(f"s_waitcnt vmcnt({2*(15-t)})")
        for r in range(8):
            x = XB + 8 * t + r
            a(f"v_lshlrev_b32 v5, 16, v{x}")
            a(f"v_mul_f32 v4, v5, v{16+2*r}" if r == 0 else f"v_fmac_f32 v4, v5, v{16+2*r}")
            a(f"v_and_b32 v5, 0xffff0000, v{x}"); a(f"v_fmac_f32 v4, v5, v{17+2*r}")
        for m in ("quad_perm:[1,0,3,2]", "quad_perm:[2,3,0,1]", "row_half_mirror", "row_mirror"):
            a("s_nop 1"); a(f"v_add_f32_dpp v4, v4, v4 {m} row_mask:0xf bank_mask:0xf")
        a("s_nop 1")
        for q in range(4): a(f"v_readlane_b32 s{4+q}, v4, {16*q}")
        a("s_nop 1")
        a("v_mov_b32 v5, s4"); a("v_add_f32 v5, s5, v5"); a("v_add_f32 v5, s6, v5"); a("v_add_f32 v5, s7, v5")
        a(f"v_cmp_eq_u32 vcc, {t}, {vr(vlane)}"); a("s_nop 1"); a("v_cndmask_b32 v6, v6, v5, vcc")
    a(f"v_mul_f32 v6, {f32(-math.log2(math.e))}, v6")
    a("v_exp_f32 v6, v6"); a("s_nop 0"); a("v_add_f32 v6, 1.0, v6"); a("v_rcp_f32 v6, v6")
    a(f"v_add_u32 v7, s3, {vr(vlane)}"); a("v_lshlrev_b32 v7, 2, v7")
    a("s_mov_b64 exec, 0xffff")
    a(f"buffer_store_dword v6, v7, {sr(sO,4)}, 0 offen sc1")
    a("s_mov_b64 exec, -1")
    a("s_waitcnt vmcnt(0)")
    a("s_barrier")
    a(signal())
    a.label(f"{name}_nog")
    a("s_and_b32 s6, s2, 7"); a("s_lshl_b32 s6, s6, 8")
    wait_flags(a, f"{name}_wq", sF, "s6", 0x00ffffff00ffffff, False, vlane, vT)
    att2.att_pre(a, sys.modules[__name__], vlane, vT, vT + 1, core.sA, core.sB, sPF, 34)
    a(f"s_brev_b32 s{S_PSIG}, 1")
    a.label(f"{name}_exit")

def g3_touch0(a, vlane, vt_, vdum, sZ, sW, s_wave):
    H0 = int(os.environ.get("H0", "32"))
    a("s_bfe_u32 s3, s2, 0x10002"); a("s_lshl_b32 s3, s3, 3"); a("s_bfe_u32 s4, s2, 0x30003"); a("s_add_u32 s3, s3, s4")
    a("s_bfe_u32 s5, s2, 0x10001"); a("s_lshl_b32 s5, s5, 2"); a("s_lshr_b32 s6, s2, 6"); a("s_add_u32 s5, s5, s6")
    a("s_lshl_b32 s3, s3, 3"); a("s_lshl_b32 s6, s6, 1"); a("s_add_u32 s3, s3, s6"); a(f"s_lshr_b32 s6, {sr(s_wave)}, 1"); a("s_add_u32 s3, s3, s6")
    a(f"s_mul_i32 s3, s3, {Z_KB*1024}"); a("s_and_b32 s7, s2, 1"); a(f"s_mul_i32 s6, s7, {H0*2048}"); a("s_add_u32 s3, s3, s6")
    a(f"s_and_b32 s6, {sr(s_wave)}, 1"); a("s_lshl_b32 s6, s6, 12"); a("s_add_u32 s3, s3, s6")
    a(f"v_lshlrev_b32 {vr(vt_)}, 7, {vr(vlane)}")
    a("s_mov_b32 exec_hi, 0")
    a(f"buffer_load_dword {vr(vdum)}, {vr(vt_)}, {sr(sZ,4)}, s3 offen")
    srd(a, sW, 10, 11, 3584 * 2048)
    a(f"s_mul_i32 s3, s7, {H0*64}"); a(f"s_lshl_b32 s6, {sr(s_wave)}, 6"); a("s_add_u32 s3, s3, s6"); a("s_lshl_b32 s4, s4, 3"); a("s_add_u32 s3, s3, s4")
    a("s_lshl_b32 s3, s3, 11"); a("s_lshl_b32 s5, s5, 8"); a("s_add_u32 s3, s3, s5")
    a(f"v_lshrrev_b32 {vr(vt_)}, 1, {vr(vlane)}"); a(f"v_lshlrev_b32 {vr(vt_)}, 11, {vr(vt_)}")
    a(f"v_and_b32 {vr(vdum)}, 1, {vr(vlane)}") if False else None
    a("s_mov_b32 exec_lo, 0x5555")
    a(f"buffer_load_dword {vr(vdum)}, {vr(vt_)}, {sr(sW,4)}, s3 offen")
    a(f"buffer_load_dword {vr(vdum)}, {vr(vt_)}, {sr(sW,4)}, s3 offen offset:128")
    a("s_mov_b64 exec, -1")

def g3_sentinel(a, vl16, vq4, vt_, sZ, sW, s_wave):
    a(f"s_add_u32 {sr(sW)}, {sr(sZ)}, {WS_PART - WS_Z}"); a(f"s_addc_u32 {sr(sW+1)}, {sr(sZ+1)}, 0"); a(f"s_mov_b32 {sr(sW+2)}, {128*65536}")
    a("s_bfe_u32 s3, s2, 0x10002"); a("s_lshl_b32 s3, s3, 3"); a("s_bfe_u32 s4, s2, 0x30003"); a("s_add_u32 s3, s3, s4")
    a("s_bfe_u32 s5, s2, 0x10001"); a("s_lshl_b32 s5, s5, 2"); a("s_lshr_b32 s6, s2, 6"); a("s_add_u32 s5, s5, s6")
    a("s_lshl_b32 s3, s3, 3"); a("s_add_u32 s3, s3, s5"); a("s_lshl_b32 s3, s3, 2"); a(f"s_add_u32 s3, s3, {sr(s_wave)}")
    a("s_lshl_b32 s3, s3, 14"); a("s_and_b32 s4, s2, 1"); a("s_xor_b32 s4, s4, 1"); a("s_lshl_b32 s4, s4, 13"); a("s_add_u32 s3, s3, s4")
    a(f"v_add_u32 {vr(vt_)}, s3, {vr(vl16)}")
    for r in range(4): a(f"v_mov_b32 {vr(vq4+r)}, -1")
    a("s_mov_b32 s6, 4096")
    for k in range(8): a(f"buffer_store_dwordx4 {vr(vq4,4)}, {vr(vt_)}, {sr(sW,4)}, {'0' if k < 4 else 's6'} offen offset:{(k%4)*1024} sc1")

def phase_g3(a, name="g3"):
    cfg = GemmCfg(128, 128, 2, 2, native_a=True, swap=False, stages=4, ms=16)
    V = RegAlloc(4, 256, "v"); S = RegAlloc(36, 100, "s")
    core = GemmCore3(a, cfg, V, S, False)
    core.use_step4 = True; core.GX = int(os.environ.get("G3X", "3")); core.GW = int(os.environ.get("G3W", "3"))
    accH = core.accbase; accA = V.alloc("acc2", 64, 4)
    vw = V.alloc("vw", 4, 2)
    vlane = V.alloc("lane"); vt = [V.alloc(f"t{i}") for i in range(4)]
    vout = V.alloc("vout"); vg = V.alloc("g", 4); vpart = V.alloc("vpart")
    vpa = V.alloc("vpa"); vpw = V.alloc("vpw"); vdum = V.alloc("vdum"); vflag = V.alloc("vflag"); vfa = V.alloc("vfa")
    s_wave = S_WAVE; s_wt = S.alloc("wt"); s_wn = S.alloc("wn")
    s_tm = S.alloc("tm"); s_tn = S.alloc("tn"); s_half = S.alloc("half")
    s_ab = S.alloc("ab"); s_lda = S.alloc("lda"); s_bb = S.alloc("bb"); s_ldw = S.alloc("ldw"); s_fo = S.alloc("fo"); s_pid = S.alloc("pid")
    s_dA = S.alloc("dA"); s_dB = S.alloc("dB"); s_kA0 = S.alloc("kA0"); s_fx = S.alloc("fx"); s_fa = S.alloc("fa"); s_oob = S.alloc("oob")
    sO = S.alloc("srdO", 4, 4); sG = S.alloc("srdG", 4, 4); sP = S.alloc("srdP", 4, 4); sF = S.alloc("srdF", 4, 4); sBT = S.alloc("srdBT", 4, 4)
    PA, PB, SS = cfg.PA, cfg.PB, cfg.S
    a("s_load_dwordx16 s[8:23], s[0:1], 0")
    a("s_load_dwordx8 s[24:31], s[0:1], 64")
    a("s_load_dwordx4 s[32:35], s[0:1], 96")
    lane_id(a, vlane)
    a(f"s_lshr_b32 {sr(s_wt)}, {sr(s_wave)}, 1"); a(f"s_and_b32 {sr(s_wn)}, {sr(s_wave)}, 1")
    a(f"s_and_b32 {sr(s_half)}, s2, 1")
    a("s_lshr_b32 s4, s2, 3")
    a("s_bfe_u32 s5, s2, 0x10002"); a("s_lshl_b32 s5, s5, 3"); a("s_and_b32 s6, s4, 7"); a(f"s_add_u32 {sr(s_tm)}, s5, s6")
    a("s_bfe_u32 s5, s2, 0x10001"); a("s_lshl_b32 s5, s5, 2"); a("s_lshr_b32 s6, s4, 3"); a(f"s_add_u32 {sr(s_tn)}, s5, s6")
    a("s_waitcnt lgkmcnt(0)")
    srd(a, sF, 34, 35, FLAG_BYTES, WS_FLAG)
    a(f"s_lshr_b32 {sr(s_fo)}, {sr(s_tm)}, 1"); a(f"s_lshl_b32 {sr(s_fo)}, {sr(s_fo)}, 7"); a(f"s_add_u32 {sr(s_fo)}, {sr(s_fo)}, {F_GU}")
    a(f"s_cmp_eq_u32 s{S_PSIG}, 1"); a(f"s_cbranch_scc1 {name}_w0_ok")
    wait_flags(a, f"{name}_w0", sF, sr(s_fo), 32, False, vlane, vw)
    srd(a, core.sA, 34, 35, 128 * Z_KB * 1024, WS_Z)
    srd(a, core.sB, 26, 27, 3584 * 2048); srd(a, sBT, 26, 27, 3584 * 2048)
    a(f"s_mov_b32 {sr(s_lda)}, {Z_KB*1024}"); a(f"s_mov_b32 {sr(s_ldw)}, 2048")
    a(f"s_mul_i32 {sr(s_ab)}, {sr(s_tm)}, {8*Z_KB*1024}")
    H0 = int(os.environ.get("H0", "32")); H1 = 56 - H0
    a(f"s_mul_i32 s3, {sr(s_half)}, {H0*2048}"); a(f"s_add_u32 {sr(s_ab)}, {sr(s_ab)}, s3")
    a(f"s_mul_i32 s5, {sr(s_half)}, {H0*64*2048}")
    a(f"s_lshl_b32 s6, {sr(s_tn)}, 8"); a("s_add_u32 s7, s5, s6")
    a(f"s_lshl_b32 s3, {sr(s_wt)}, 7"); a(f"s_add_u32 {sr(s_bb)}, s7, s3")
    core.setup_src(vlane, s_wave, s_ab, s_lda, s_bb, s_ldw, vt)
    core.setup_lane_consts(vlane, s_wave, s_wt, s_wn, vt)
    core.prologue5()
    a(f"s_mov_b32 {sr(s_kA0)}, 2048")
    a(f"s_cmp_eq_u32 {sr(s_half)}, 0")
    a(f"s_mov_b32 s3, {112*1024 - H0*2048}"); a(f"s_cselect_b32 {sr(s_dA)}, s3, {32*2048}")
    a(f"s_mov_b32 s3, {(-H0*64*2048) & 0xffffffff}"); a(f"s_cselect_b32 {sr(s_dB)}, s3, {((32-56)*64*2048) & 0xffffffff}")
    a(f"s_cselect_b32 {sr(core.sLoop)}, {H0//4}, {H1//4}")
    srd(a, sO, 30, 31, 2048 * 1024 * 2); srd(a, sG, 34, 35, 8192, WS_G); srd(a, sP, 34, 35, 128 * 65536, WS_PART)
    a(f"s_and_b32 s3, {sr(s_tn)}, 3"); a("s_lshl_b32 s3, s3, 1"); a(f"s_add_u32 s3, s3, {sr(s_wt)}")
    a(f"s_mul_i32 s3, s3, {sr(s_lda)}"); a(f"s_add_u32 s3, s3, {sr(s_ab)}")
    a(f"s_lshl_b32 s4, {sr(s_wn)}, 12"); a("s_add_u32 s3, s3, s4")
    a(f"v_lshlrev_b32 {vr(vpa)}, 7, {vr(vlane)}"); a(f"v_add_u32 {vr(vpa)}, s3, {vr(vpa)}")
    a(f"v_bfrev_b32 {vr(vt[3])}, 1")
    a(f"v_cmp_gt_u32 vcc, 32, {vr(vlane)}"); a("s_nop 1")
    a(f"v_cndmask_b32 {vr(vpa)}, {vr(vt[3])}, {vr(vpa)}, vcc")
    a(f"s_and_b32 s3, {sr(s_tm)}, 7"); a("s_lshl_b32 s3, s3, 3"); a(f"s_lshl_b32 s4, {sr(s_wave)}, 6"); a("s_add_u32 s3, s3, s4")
    a(f"v_lshrrev_b32 {vr(vpw)}, 1, {vr(vlane)}"); a(f"v_add_u32 {vr(vpw)}, s3, {vr(vpw)}")
    a(f"v_lshlrev_b32 {vr(vpw)}, 11, {vr(vpw)}")
    a(f"v_and_b32 {vr(vt[2])}, 1, {vr(vlane)}"); a(f"v_lshl_add_u32 {vr(vpw)}, {vr(vt[2])}, 7, {vr(vpw)}")
    a(f"v_add_u32 {vr(vpw)}, s7, {vr(vpw)}")
    a(f"v_cmp_gt_u32 vcc, 16, {vr(vlane)}"); a("s_nop 1")
    a(f"v_cndmask_b32 {vr(vpw)}, {vr(vt[3])}, {vr(vpw)}, vcc")
    tA = [f"buffer_load_dword {vr(vdum)}, {vr(vpa)}, {sr(core.sA,4)}, 0 offen", f"v_add_u32 {vr(vpa)}, 0x2000, {vr(vpa)}"]
    tW = [f"buffer_load_dword {vr(vdum)}, {vr(vpw)}, {sr(sBT,4)}, 0 offen", f"v_add_u32 {vr(vpw)}, {4*64*2048}, {vr(vpw)}"]
    a(tA[1]); a(tW[1]); a(tA); a(tW)
    a(f"s_lshl_b32 {sr(s_fo)}, {sr(s_tm)}, 1"); a(f"s_add_u32 {sr(s_fo)}, {sr(s_fo)}, {sr(s_half)}"); a(f"s_lshl_b32 {sr(s_fo)}, {sr(s_fo)}, 6")
    a(f"s_add_u32 {sr(s_fo)}, {sr(s_fo)}, {F_CTX}")
    a(f"v_and_b32 {vr(vfa)}, 15, {vr(vlane)}"); a(f"v_lshlrev_b32 {vr(vfa)}, 2, {vr(vfa)}")
    tF = [f"buffer_load_dword {vr(vflag)}, {vr(vfa)}, {sr(sF,4)}, {sr(s_fa)} offen sc1"]
    a(f"s_brev_b32 {sr(s_oob)}, 1"); a(f"s_mov_b32 {sr(s_fa)}, {sr(s_oob)}")
    a(f"s_lshl_b32 s3, {sr(s_tm)}, 7"); a(f"s_lshl_b32 s4, {sr(s_wt)}, 6"); a("s_add_u32 s3, s3, s4")
    a(f"v_and_b32 {vr(vt[0])}, 15, {vr(vlane)}"); a(f"v_add_u32 {vr(vt[0])}, s3, {vr(vt[0])}")
    a(f"v_lshlrev_b32 {vr(vt[1])}, 2, {vr(vt[0])}")
    for j in range(4): a(f"buffer_load_dword {vr(vg+j)}, {vr(vt[1])}, {sr(sG,4)}, 0 offen offset:{j*64}")
    a(f"v_lshlrev_b32 {vr(vout)}, 11, {vr(vt[0])}")
    a(f"v_lshrrev_b32 {vr(vt[2])}, 4, {vr(vlane)}")
    a(f"v_lshl_add_u32 {vr(vout)}, {vr(vt[2])}, 3, {vr(vout)}")
    a(f"s_lshl_b32 s3, {sr(s_tn)}, 8"); a(f"s_lshl_b32 s4, {sr(s_wn)}, 7"); a("s_add_u32 s3, s3, s4")
    a(f"v_add_u32 {vr(vout)}, s3, {vr(vout)}")
    a(f"s_lshl_b32 s3, {sr(s_tm)}, 3"); a(f"s_add_u32 s3, s3, {sr(s_tn)}"); a("s_lshl_b32 s3, s3, 2"); a(f"s_add_u32 {sr(s_pid)}, s3, {sr(s_wave)}")
    a(f"s_lshl_b32 s3, {sr(s_pid)}, 14"); a(f"s_lshl_b32 s4, {sr(s_half)}, 13"); a("s_add_u32 s3, s3, s4")
    a(f"v_lshlrev_b32 {vr(vpart)}, 4, {vr(vlane)}"); a(f"v_add_u32 {vr(vpart)}, s3, {vr(vpart)}")
    a(f"s_lshl_b32 s3, {sr(s_pid)}, 3"); a(f"s_lshl_b32 s4, {sr(s_half)}, 2"); a("s_add_u32 s3, s3, s4"); a(f"s_add_u32 {sr(s_fx)}, s3, {F_EX}")
    core.accbase = accA; core.zero_acc(); core.accbase = accH; core.zero_acc()
    a(f"s_waitcnt vmcnt({(SS-2)*(PA+PB) + PB + 6})")
    a("s_barrier")
    a(core.next_reads(0))
    def trip(extras):
        cnt = {t: sum(1 for x in e if x.startswith("buffer_")) for t, e in extras.items()}
        for t in range(4):
            nx = sum(cnt.get(u % 4, 0) for u in range(t + 2 - SS, t + 1))
            core.step5(t, True, True, True, (SS - 2) * (PA + PB) + nx, extra=extras.get(t), advA=s_kA0 if t == 0 else None)
    core.accbase = accH
    a.label(f"{name}_l1")
    trip({0: tA + tF, 2: tW})
    a(f"s_sub_u32 {sr(core.sLoop)}, {sr(core.sLoop)}, 1")
    a(f"s_cmp_eq_u32 {sr(core.sLoop)}, 3"); a(f"s_cselect_b32 {sr(s_fa)}, {sr(s_fo)}, {sr(s_oob)}")
    a(f"s_cmp_gt_u32 {sr(core.sLoop)}, 2"); a(f"s_cbranch_scc1 {name}_l1")
    a(f"s_cmp_eq_u32 {sr(core.sLoop)}, 0"); a(f"s_cbranch_scc1 {name}_l2s")
    a(f"s_cmp_eq_u32 {sr(core.sLoop)}, 1"); a(f"s_cbranch_scc1 {name}_swd")
    a(f"v_cmp_eq_u32 vcc, 0, {vr(vflag)}")
    a(f"s_cbranch_vccz {name}_w1_ok")
    wait_flags(a, f"{name}_w1", sF, sr(s_fo), 16, False, vlane, vw)
    a(f"v_add_u32 {vr(vpa)}, {sr(s_dA)}, {vr(vpa)}"); a(f"v_add_u32 {vr(vpw)}, {sr(s_dB)}, {vr(vpw)}")
    srd(a, sBT, 18, 19, 4096 * 2048)
    a(f"s_branch {name}_l1")
    a.label(f"{name}_swd")
    a("s_mov_b64 exec, 1"); a(f"buffer_store_dword {vr(vt[3])}, {vr(vlane)}, {sr(sF,4)}, {sr(s_fx)} offen sc1"); a("s_mov_b64 exec, -1")
    a(f"s_add_u32 {sr(s_kA0)}, {sr(s_dA)}, 2048"); a(f"v_add_u32 {vr(core.vBsrc[0])}, {sr(s_dB)}, {vr(core.vBsrc[0])}")
    srd(a, core.sB, 18, 19, 4096 * 2048)
    a(f"s_branch {name}_l1")
    a.label(f"{name}_l2s")
    core.accbase = accA
    a(f"s_mov_b32 {sr(core.sLoop)}, 6"); a(f"s_mov_b32 {sr(s_kA0)}, 2048")
    a(f"s_xor_b32 {sr(s_fo)}, {sr(s_fx)}, 4"); a(f"v_mov_b32 {vr(vfa)}, 0")
    a.label(f"{name}_l2")
    trip({0: tA + tF, 2: tW})
    a(f"s_sub_u32 {sr(core.sLoop)}, {sr(core.sLoop)}, 1")
    a(f"s_cmp_eq_u32 {sr(core.sLoop)}, 1"); a(f"s_cselect_b32 {sr(s_fa)}, {sr(s_fo)}, {sr(s_oob)}")
    a(f"s_cmp_lg_u32 {sr(core.sLoop)}, 0"); a(f"s_cbranch_scc1 {name}_l2")
    core.tail5(8)
    stamp(a, 4)
    a("s_nop 7")
    a("s_mov_b32 s6, 4096")
    R = core.xf[0][0][0]; W = core.wf[0][0]
    def comb(blk):
        o = blk * 4; j = blk % 4
        for r in range(4): a(f"v_sub_f32 {vr(accA+o+r)}, {vr(accA+o+r)}, {vr(accH+o+r)}")
        for r in range(4): a(f"v_fma_f32 {vr(accA+o+r)}, {vr(accA+o+r)}, {vr(vg+j)}, {vr(accH+o+r)}")
    def fin(h):
        a(f"v_cmp_eq_u32 vcc, 0, {vr(vflag)}")
        a(f"s_cbranch_vccz {name}_wx{h}_ok")
        wait_flags(a, f"{name}_wx{h}", sF, sr(s_fo), 1, False, vlane, vw, sleep=1)
        for k in range(8):
            blk = (1 - h) * 8 + k
            comb(blk)
            a(f"buffer_store_dwordx4 {vr(accA+4*blk,4)}, {vr(vpart)}, {sr(sP,4)}, {'0' if k < 4 else 's6'} offen offset:{(k%4)*1024} sc1")
        a(f"v_xor_b32 {vr(vt[0])}, 0x2000, {vr(vpart)}")
        for k in range(8): comb(h * 8 + k)
        a("s_mov_b32 s3, 0")
        a.label(f"{name}_rd{h}")
        for k in range(8):
            a(f"buffer_load_dwordx4 {vr(R+4*k,4)}, {vr(vt[0])}, {sr(sP,4)}, {'0' if k < 4 else 's6'} offen offset:{(k%4)*1024} sc1")
        for k in range(8):
            a(f"s_waitcnt vmcnt({7-k})")
            if k == 0: a(f"v_max_u32 {vr(vt[1])}, {vr(R)}, {vr(R+1)}")
            else: a(f"v_max3_u32 {vr(vt[1])}, {vr(vt[1])}, {vr(R+4*k)}, {vr(R+4*k+1)}")
            a(f"v_max3_u32 {vr(vt[1])}, {vr(vt[1])}, {vr(R+4*k+2)}, {vr(R+4*k+3)}")
        a(f"v_cmp_eq_u32 vcc, -1, {vr(vt[1])}")
        a(f"s_cbranch_vccz {name}_rd{h}_ok")
        a("s_add_u32 s3, s3, 1"); a(f"s_cmp_lt_u32 s3, {SPIN_MAX}"); a(f"s_cbranch_scc1 {name}_rd{h}")
        a.label(f"{name}_rd{h}_ok")
        for k in range(8):
            blk = h * 8 + k; i, j = blk // 4, blk % 4
            b = W + (k % 4) * 8
            for r in range(4): a(f"v_add_f32 {vr(b+2+r)}, {vr(accA+4*blk+r)}, {vr(R+4*k+r)}")
            a(f"v_cvt_pk_bf16_f32 {vr(b)}, {vr(b+2)}, {vr(b+3)}"); a(f"v_cvt_pk_bf16_f32 {vr(b+1)}, {vr(b+4)}, {vr(b+5)}")
            a(f"s_mov_b32 s3, {j*16*2048}")
            a(f"buffer_store_dwordx2 {vr(b,2)}, {vr(vout)}, {sr(sO,4)}, s3 offen offset:{i*32}{os.environ.get('OUTM', ' sc1')}")
    a(f"s_cmp_lg_u32 {sr(s_half)}, 0"); a(f"s_cbranch_scc1 {name}_fin1")
    fin(0); a(f"s_branch {name}_end")
    a.label(f"{name}_fin1"); fin(1)
    a.label(f"{name}_end")

def gen_mega(a, name=KNAME):
    import sys
    from k2_gen import gen_k2
    mg = sys.modules[__name__]
    kernel_header(a, name)
    a("s_cmp_ge_u32 s2, 256"); a(f"s_cbranch_scc1 {name}_end")
    if STAMPS:
        a("v_lshrrev_b32 v1, 6, v0"); a("s_nop 0"); a(f"v_readfirstlane_b32 s{S_WAVE}, v1"); a("s_nop 3")
        stamp(a, 0)
    phase_g1(a)
    stamp(a, 1)
    cold = att2.gen_att(a, mg)
    stamp(a, 2)
    if os.environ.get("DIAG"):
        a("v_mov_b32 v2, s98"); a("buffer_store_dword v2, v1, s[8:11], 0 offen offset:48")
        a("v_mov_b32 v2, s99"); a("buffer_store_dword v2, v1, s[8:11], 0 offen offset:52")
        a("s_waitcnt vmcnt(0)")
    phase_g3(a)
    stamp(a, 5)
    a.label(f"{name}_end"); a("s_endpgm")
    a.label("mega_code_end")
    cold()
    return dict(name=name, nv=512, acc_off=256, grid=256, block=256, lds=131072 + 8192)

if __name__ == "__main__":
    import sys
    from gen_all import HEADER
    body = Asm()
    infos = [gen_mega(body)]
    out = HEADER
    for i in infos:
        if os.environ.get("LIST"): out += f"; @launch kernel={i['name']} grid=({i['grid']},1,1) block=({i['block']},1,1) lds={i['lds']}\n"
        else: out += f"; @launch grid=({i['grid']},1,1) block=({i['block']},1,1) lds={i['lds']}\n"
    out += '.amdgcn_target "amdgcn-amd-amdhsa--gfx950"\n' + body.text()
    d = Asm()
    for i in infos: kernel_desc(d, i["name"], i["nv"], i["acc_off"])
    open(sys.argv[1], "w").write(out + d.text())
```
